```python
import torch

def _softmax(x, axis=-1):
    return torch.softmax(x, dim=axis)
def _gelu(x):
    return torch.nn.functional.gelu(x, approximate="tanh")
def _silu(x):
    return torch.nn.functional.silu(x)
def _sigmoid(x):
    return torch.sigmoid(x)
def _layernorm(x, axis=-1, eps=1e-5):
    m = x.mean(dim=axis, keepdim=True)
    v = x.var(dim=axis, keepdim=True, unbiased=False)
    return (x - m) / torch.sqrt(v + eps)
def _scatter_add(tgt, idx, src, axis=0):
    return tgt.clone().index_add_(axis, idx, src)
def _segment_sum(src, seg, n):
    out = torch.zeros((n,) + src.shape[1:], dtype=src.dtype)
    return out.index_add_(0, seg, src)
def _pad(x, pw):
    flat = tuple(v for pair in reversed(pw) for v in pair)
    return torch.nn.functional.pad(x, flat)

kernel_name = 'parallel_sum__mha_block__dense_activation_relu__prompt'

def setup_inputs():

    _w = (lambda a: (lambda t: t.to(torch.bfloat16) if t.is_floating_point() else t)(torch.as_tensor(a)))
    def _A_setup():
        B, S, D, H = 1, 2048, 1024, 32
        return {
            "x": _w((lambda *s: torch.randn(*s, dtype=torch.bfloat16) * 0.05)(B, S, D)),
            "wqkv": _w((lambda *s: torch.randn(*s, dtype=torch.bfloat16) * 0.05)(D, 3 * D)),
            "wo": _w((lambda *s: torch.randn(*s, dtype=torch.bfloat16) * 0.05)(D, D)),
        }
    _A_in = _A_setup()

    def _B_setup():
        B, S, D, Dff = 1, 2048, 1024, 3584
        return {
            "x": _w((lambda *s: torch.randn(*s, dtype=torch.bfloat16) * 0.05)(B, S, D)),
            "w1": _w((lambda *s: torch.randn(*s, dtype=torch.bfloat16) * 0.05)(D, Dff)),
            "w2": _w((lambda *s: torch.randn(*s, dtype=torch.bfloat16) * 0.05)(Dff, D)),
        }
    _B_in = _B_setup()

    return {
        "A_x": _A_in["x"],
        "A_wqkv": _A_in["wqkv"],
        "A_wo": _A_in["wo"],
        "B_x": _B_in["x"],
        "B_w1": _B_in["w1"],
        "B_w2": _B_in["w2"],
    }

def reference(A_x, A_wqkv, A_wo, B_x, B_w1, B_w2):
    def _A_ref(x, wqkv, wo):
        B, S, D = x.shape
        H = 32
        Dh = D // H
        qkv = (lambda x, *d: x.permute(*d))((x @ wqkv).reshape(B, S, 3, H, Dh), 2, 0, 3, 1, 4)
        q, k, v = qkv[0], qkv[1], qkv[2]
        scores = torch.einsum("bhqd,bhkd->bhqk", q, k) * (Dh ** -0.5)
        p = _softmax(scores, axis=-1)
        o = torch.einsum("bhqk,bhkd->bhqd", p, v)
        return (lambda x, *d: x.permute(*d))(o, 0, 2, 1, 3).reshape(B, S, D) @ wo

    def _B_ref(x, w1, w2):
        h = torch.einsum("bsd,df->bsf", x, w1)
        zero = torch.zeros_like(h)
        h = torch.maximum(h, zero)
        return torch.einsum("bsf,fd->bsd", h, w2)

    x = A_x
    xn = _layernorm(x, axis=-1)
    return x + _A_ref(xn, A_wqkv, A_wo) + _B_ref(xn, B_w1, B_w2)
```

```python
import sys
NAME = "parallel_sum__mha_block__dense_activation_relu__prompt"
XN_OFF, QKV_OFF, CAT_OFF = 0, 0x400000, 0x1000000
WS_BYTES = 268435456
CATP = 4608 * 2
QKVP = 3072 * 2

class K:
    def __init__(s, name): s.name = name; s.L = []; s.uid = 0
    def __call__(s, t=""): s.L.append("    " + t)
    def label(s, l): s.L.append(l + ":")
    def new(s, p): s.uid += 1; return f"{s.name}_{p}{s.uid}"
    def srd(s, d, lo, nbytes, add=0):
        if add:
            s(f"s_add_u32 s{d}, s{lo}, 0x{add:x}"); s(f"s_addc_u32 s{d+1}, s{lo+1}, 0")
        else:
            s(f"s_mov_b32 s{d}, s{lo}"); s(f"s_mov_b32 s{d+1}, s{lo+1}")
        s(f"s_and_b32 s{d+1}, s{d+1}, 0xffff")
        s(f"s_mov_b32 s{d+2}, 0x{nbytes:x}"); s(f"s_mov_b32 s{d+3}, 0x00020000")
    def text(s, vgpr, agpr=0, sgpr=100):
        acc = (vgpr + 3) // 4 * 4
        nf = vgpr if agpr == 0 else acc + agpr
        h = [".text", f".globl {s.name}", ".p2align 8", f".type {s.name},@function", f"{s.name}:"]
        d = [".section .rodata,\"a\"", ".p2align 6", f".amdhsa_kernel {s.name}",
             f"  .amdhsa_next_free_vgpr {nf}", f"  .amdhsa_next_free_sgpr {sgpr}",
             f"  .amdhsa_accum_offset {acc}", "  .amdhsa_group_segment_fixed_size 0",
             "  .amdhsa_kernarg_size 72", "  .amdhsa_user_sgpr_count 2",
             "  .amdhsa_user_sgpr_kernarg_segment_ptr 1", "  .amdhsa_system_sgpr_workgroup_id_x 1",
             ".end_amdhsa_kernel"]
        return "\n".join(h + s.L + d) + "\n"

def load_args(k):
    k("s_load_dwordx16 s[64:79], s[0:1], 0")
    k("s_load_dwordx2 s[80:81], s[0:1], 64")

def wave_sum(k, v, t, sa, sb):
    for o in (0x041F, 0x081F, 0x101F, 0x201F, 0x401F):
        k(f"ds_swizzle_b32 v{t}, v{v} offset:0x{o:x}"); k("s_waitcnt lgkmcnt(0)")
        k(f"v_add_f32 v{v}, v{v}, v{t}")
    k("s_nop 0")
    k(f"v_readlane_b32 s{sa}, v{v}, 0"); k(f"v_readlane_b32 s{sb}, v{v}, 32"); k("s_nop 1")
    k(f"v_mov_b32 v{v}, s{sa}"); k(f"v_add_f32 v{v}, s{sb}, v{v}")

def rbf(k, v, t):
    k(f"v_cvt_pk_bf16_f32 v{t}, v{v}, v{v}"); k(f"v_lshlrev_b32 v{v}, 16, v{t}")

def ln_kernel():
    k = K("ln_kernel")
    load_args(k)
    k("s_cmp_ge_u32 s2, 512"); k(f"s_cbranch_scc1 ln_kernel_end")
    k("v_lshrrev_b32 v1, 6, v0")
    k("v_and_b32 v2, 63, v0")
    k("s_lshl_b32 s3, s2, 2")
    k("v_add_u32 v1, s3, v1")
    k("v_lshlrev_b32 v1, 11, v1")
    k("v_lshl_add_u32 v1, v2, 4, v1")
    k("s_waitcnt lgkmcnt(0)")
    k.srd(8, 64, 2048 * 2048)
    k.srd(12, 80, 2048 * 2048, XN_OFF)
    k("buffer_load_dwordx4 v[4:7], v1, s[8:11], 0 offen")
    k("buffer_load_dwordx4 v[8:11], v1, s[8:11], 0 offen offset:1024")
    k("s_waitcnt vmcnt(0)")
    for i in range(8):
        k(f"v_lshlrev_b32 v{16+2*i}, 16, v{4+i}"); k(f"v_and_b32 v{17+2*i}, 0xffff0000, v{4+i}")
    k("v_add_f32 v32, v16, v17")
    for i in range(2, 16): k(f"v_add_f32 v32, v32, v{16+i}")
    wave_sum(k, 32, 33, 20, 21)
    k("v_mul_f32 v32, 0x3a800000, v32")
    k("v_sub_f32 v34, v16, v32"); k("v_mul_f32 v35, v34, v34")
    for i in range(1, 16):
        k(f"v_sub_f32 v34, v{16+i}, v32"); k("v_fmac_f32 v35, v34, v34")
    wave_sum(k, 35, 33, 20, 21)
    k("v_mul_f32 v35, 0x3a800000, v35")
    rbf(k, 35, 33); rbf(k, 32, 33)
    k("v_add_f32 v35, 0x3727c5ac, v35"); rbf(k, 35, 33)
    k("v_sqrt_f32 v35, v35"); k("s_nop 0"); rbf(k, 35, 33)
    k("v_rcp_f32 v35, v35"); k("s_nop 0")
    for i in range(16):
        k(f"v_sub_f32 v{16+i}, v{16+i}, v32")
    for i in range(8):
        k(f"v_cvt_pk_bf16_f32 v33, v{16+2*i}, v{17+2*i}")
        k(f"v_lshlrev_b32 v{16+2*i}, 16, v33"); k(f"v_and_b32 v{17+2*i}, 0xffff0000, v33")
        k(f"v_mul_f32 v{16+2*i}, v{16+2*i}, v35"); k(f"v_mul_f32 v{17+2*i}, v{17+2*i}, v35")
        k(f"v_cvt_pk_bf16_f32 v{4+i}, v{16+2*i}, v{17+2*i}")
    k("buffer_store_dwordx4 v[4:7], v1, s[12:15], 0 offen")
    k("buffer_store_dwordx4 v[8:11], v1, s[12:15], 0 offen offset:1024")
    k.label("ln_kernel_end"); k("s_endpgm")
    return k.text(40)

def gemm_kernel(name, BM, BN, WM, WN, setup, pitchA, ksteps, kswitch=None, resid=False, nwg=0):
    k = K(name)
    NW = WM * WN; TM = BM // WM // 32; TN = BN // WN // 32
    ABY = BM * 128; RB = BN * 2; BBY = 64 * RB
    STG = 1
    while STG < ABY + BBY: STG *= 2
    IA = BM // 8 // NW; IB = BN // 8 // NW
    CPR = BN // 8; RPI = 1024 // RB
    load_args(k)
    k(f"s_cmp_ge_u32 s2, {nwg}"); k(f"s_cbranch_scc1 {name}_end")
    k("v_lshrrev_b32 v1, 6, v0"); k("v_and_b32 v0, 63, v0"); k("s_nop 0")
    k("v_readfirstlane_b32 s4, v1")
    k("s_waitcnt lgkmcnt(0)")
    setup(k)
    k(f"s_lshr_b32 s5, s4, {WN.bit_length()-1}")
    k(f"s_and_b32 s6, s4, {WN-1}")
    k("v_lshrrev_b32 v3, 3, v0"); k("s_lshl_b32 s7, s4, 3"); k("s_add_u32 s7, s7, s23")
    k("v_add_u32 v3, s7, v3"); k(f"s_mov_b32 s7, {pitchA}"); k("v_mul_lo_u32 v2, v3, s7")
    k("s_and_b32 s7, s4, 1"); k("s_lshl_b32 s7, s7, 2")
    k("v_lshrrev_b32 v3, 4, v0"); k("v_add_u32 v3, s7, v3"); k("v_and_b32 v3, 7, v3")
    k("v_and_b32 v4, 7, v0"); k("v_xor_b32 v3, v3, v4"); k("v_lshl_add_u32 v2, v3, 4, v2")
    k(f"v_lshrrev_b32 v4, {CPR.bit_length()-1}, v0"); k(f"s_mul_i32 s7, s4, {RPI}")
    k("v_add_u32 v4, s7, v4")
    k("v_mul_lo_u32 v3, v4, s20")
    if BN >= 128: k("v_and_b32 v4, 3, v4"); k("v_lshlrev_b32 v4, 2, v4")
    else: k("v_lshrrev_b32 v4, 1, v4"); k("v_and_b32 v4, 1, v4"); k("v_lshlrev_b32 v4, 2, v4")
    k(f"v_and_b32 v5, {CPR-1}, v0"); k("v_xor_b32 v4, v4, v5"); k("v_lshl_add_u32 v3, v4, 4, v3")
    k("s_lshl_b32 s7, s24, 1"); k("v_add_u32 v3, s7, v3")
    k("v_and_b32 v12, 31, v0"); k("v_lshrrev_b32 v13, 5, v0")
    k(f"s_mul_i32 s7, s5, {TM*32*128}")
    k("v_lshlrev_b32 v14, 7, v12"); k("v_add_u32 v14, s7, v14")
    k("v_lshrrev_b32 v15, 1, v0"); k("v_and_b32 v15, 7, v15")
    for kk in range(4):
        k(f"v_add_u32 v16, {2*kk}, v13"); k("v_xor_b32 v16, v16, v15"); k(f"v_lshl_add_u32 v{4+kk}, v16, 4, v14")
    k("v_lshrrev_b32 v14, 2, v0"); k("v_and_b32 v14, 3, v14")
    k("v_lshl_add_u32 v15, v13, 3, v14")
    k(f"s_mov_b32 s7, {RB}"); k("v_mul_lo_u32 v15, v15, s7")
    k("v_lshrrev_b32 v16, 4, v0"); k("v_and_b32 v16, 1, v16"); k("v_lshl_add_u32 v15, v16, 5, v15")
    k("v_and_b32 v16, 3, v0"); k("v_lshl_add_u32 v15, v16, 3, v15")
    k(f"v_add_u32 v15, {ABY}, v15")
    NB = 4 if BN >= 128 else 2
    if BN < 128: k("v_lshrrev_b32 v14, 1, v14")
    k(f"s_mul_i32 s7, s6, {TN}")
    NREG = min(TN, NB)
    for i in range(NREG):
        k(f"s_add_u32 s26, s7, {i}")
        k(f"s_and_b32 s27, s26, {NB-1}"); k(f"v_xor_b32 v16, s27, v14")
        k(f"s_andn2_b32 s26, s26, {NB-1}"); k("v_add_u32 v16, s26, v16")
        k(f"v_lshl_add_u32 v{8+i}, v16, 6, v15")
    assert TN <= NB or (TN % NB == 0)
    ACC = 128 if TM * TN > 4 else 64
    FR = 20
    nfr = (TM + TN) * 4
    for i in range(TM * TN * 16): k(f"v_mov_b32 v{ACC+i}, 0")
    k("s_mov_b32 s40, 0")
    k("s_mov_b32 s41, 0")
    k(f"s_lshl_b32 s42, s20, 6")
    k(f"s_mul_i32 s43, s20, {NW*RPI}")
    k(f"s_lshl_b32 s44, s4, 10")
    k("s_mov_b32 s45, 0")
    def dma():
        for t in range(IA):
            k(f"s_add_u32 s46, s40, {t*NW*8*pitchA}")
            k(f"s_add_u32 m0, s44, {t*NW*1024}"); k("s_nop 0")
            k("buffer_load_dwordx4 v2, s[8:11], s46 offen lds")
        k("s_mov_b32 s46, s41")
        for t in range(IB):
            k(f"s_add_u32 m0, s44, {ABY + t*NW*1024}")
            if t: k("s_add_u32 s46, s46, s43")
            else: k("s_nop 0")
            k("buffer_load_dwordx4 v3, s[12:15], s46 offen lds")
        k("s_add_u32 s40, s40, 128"); k("s_add_u32 s41, s41, s42"); k(f"s_xor_b32 s44, s44, {STG}")
    def reads(kk, buf):
        b = FR + buf * nfr
        for tn in range(TN):
            o = kk * 16 * RB + (tn // NB) * NB * 64
            k(f"ds_read_b64_tr_b16 v[{b+tn*4}:{b+tn*4+1}], v{8+tn%NB} offset:{o}")
            k(f"ds_read_b64_tr_b16 v[{b+tn*4+2}:{b+tn*4+3}], v{8+tn%NB} offset:{o+4*RB}")
        for tm in range(TM):
            k(f"ds_read_b128 v[{b+TN*4+tm*4}:{b+TN*4+tm*4+3}], v{4+kk} offset:{tm*4096}")
    def mfmas(buf):
        b = FR + buf * nfr
        for tm in range(TM):
            for tn in range(TN):
                a = ACC + (tm * TN + tn) * 16
                k(f"v_mfma_f32_32x32x16_bf16 v[{a}:{a+15}], v[{b+tn*4}:{b+tn*4+3}], v[{b+TN*4+tm*4}:{b+TN*4+tm*4+3}], v[{a}:{a+15}]")
    dma()
    lp = k.new("loop"); k.label(lp)
    k("s_waitcnt vmcnt(0)"); k("s_barrier")
    k("s_add_u32 s45, s45, 1")
    if kswitch is not None:
        sk = k.new("sw")
        k(f"s_cmp_lg_u32 s45, {kswitch}"); k(f"s_cbranch_scc1 {sk}")
        for i in range(4): k(f"s_mov_b32 s{12+i}, s{28+i}")
        k("s_mov_b32 s41, 0")
        k.label(sk)
    reads(0, 0)
    dma()
    nrd = 2 * TN + TM
    for kk in range(4):
        if kk < 3:
            reads(kk + 1, (kk + 1) % 2); k(f"s_waitcnt lgkmcnt({nrd})")
        else: k("s_waitcnt lgkmcnt(0)")
        mfmas(kk % 2)
    for i in range(4 + NREG): k(f"v_xor_b32 v{4+i}, {STG}, v{4+i}")
    k(f"s_cmp_lt_u32 s45, {ksteps}"); k(f"s_cbranch_scc1 {lp}")
    k("s_waitcnt vmcnt(0)")
    k(f"s_mul_i32 s7, s5, {TM*32}"); k("s_add_u32 s7, s7, s23")
    k("v_add_u32 v14, s7, v12")
    k("v_mul_lo_u32 v15, v14, s21")
    k(f"s_mul_i32 s7, s6, {TN*32}"); k("s_add_u32 s7, s7, s25"); k("s_lshl_b32 s7, s7, 1")
    k("v_add_u32 v15, s7, v15"); k("v_lshl_add_u32 v16, v13, 4, v15")
    k("v_lshl_add_u32 v17, v13, 3, v15")
    k("s_lshl_b32 s47, s21, 5")
    k("s_nop 7"); k("s_nop 7")
    for tm in range(TM):
        if tm: k("v_add_u32 v16, s47, v16"); k("v_add_u32 v17, s47, v17")
        if resid:
            for tn in range(TN):
                for q in range(4):
                    k(f"buffer_load_dwordx2 v[{FR+tn*8+2*q}:{FR+tn*8+2*q+1}], v17, s[32:35], 0 offen offset:{tn*64+q*16}")
            k("s_waitcnt vmcnt(0)")
        for tn in range(TN):
            a = ACC + (tm * TN + tn) * 16
            if resid:
                for q in range(4):
                    for d in range(2):
                        x = FR + tn * 8 + 2 * q + d
                        k(f"v_lshlrev_b32 v18, 16, v{x}"); k(f"v_and_b32 v19, 0xffff0000, v{x}")
                        k(f"v_add_f32 v{a+4*q+2*d}, v{a+4*q+2*d}, v18"); k(f"v_add_f32 v{a+4*q+2*d+1}, v{a+4*q+2*d+1}, v19")
            else:
                for j in range(16): k(f"v_max_f32 v{a+j}, s22, v{a+j}")
            for j in range(8): k(f"v_cvt_pk_bf16_f32 v{a+j}, v{a+2*j}, v{a+2*j+1}")
            k("s_nop 1")
            for qq in range(2):
                b = a + 4 * qq
                k(f"v_permlane32_swap_b32 v{b}, v{b+2}"); k(f"v_permlane32_swap_b32 v{b+1}, v{b+3}")
            for qq in range(2):
                b = a + 4 * qq
                k(f"buffer_store_dwordx4 v[{b}:{b+3}], v16, s[16:19], 0 offen offset:{tn*64+qq*32}")
    k.label(f"{name}_end"); k("s_endpgm")
    return k.text(ACC + TM * TN * 16), STG * 2

def setup_g1(BM, BN):
    nq = 3072 // BN; nt = 6656 // BN
    def f(k):
        nm = 2048 // BM
        k(f"s_and_b32 s23, s2, {nm-1}"); k(f"s_lshl_b32 s23, s23, {BM.bit_length()-1}")
        k(f"s_lshr_b32 s24, s2, {nm.bit_length()-1}"); k(f"s_mul_i32 s24, s24, {BN}")
        k.srd(8, 80, 2048 * 2048, XN_OFF)
        l1, l2 = k.new("ffn"), k.new("j")
        k("s_cmp_ge_u32 s24, 3072"); k(f"s_cbranch_scc1 {l1}")
        k.srd(12, 66, 1024 * 6144); k.srd(16, 80, 2048 * QKVP, QKV_OFF)
        k("s_mov_b32 s20, 6144"); k(f"s_mov_b32 s21, {QKVP}"); k("s_mov_b32 s22, 0xff800000"); k("s_mov_b32 s25, s24")
        k(f"s_branch {l2}")
        k.label(l1)
        k.srd(12, 72, 1024 * 7168); k.srd(16, 80, 2048 * CATP, CAT_OFF)
        k("s_mov_b32 s20, 7168"); k(f"s_mov_b32 s21, {CATP}"); k("s_mov_b32 s22, 0")
        k("s_sub_u32 s24, s24, 3072"); k("s_add_u32 s25, s24, 1024")
        k.label(l2)
    return f

def setup_g2(BM, BN):
    def f(k):
        nn = 1024 // BN
        k(f"s_and_b32 s24, s2, {nn-1}"); k(f"s_mul_i32 s24, s24, {BN}")
        k(f"s_lshr_b32 s23, s2, {nn.bit_length()-1}"); k(f"s_lshl_b32 s23, s23, {BM.bit_length()-1}")
        k.srd(8, 80, 2048 * CATP, CAT_OFF)
        k.srd(12, 68, 1024 * 2048); k.srd(28, 74, 3584 * 2048)
        k.srd(16, 76, 2048 * 2048); k.srd(32, 64, 2048 * 2048)
        k("s_mov_b32 s20, 2048"); k("s_mov_b32 s21, 2048"); k("s_mov_b32 s22, 0"); k("s_mov_b32 s25, s24")
    return f

def attn_kernel():
    k = K("attn_kernel")
    Q, ONE, KF, VF, S, P, O, Lr = 24, 20, 32, 48, 64, 96, 112, 128
    load_args(k)
    k("s_cmp_ge_u32 s2, 512"); k("s_cbranch_scc1 attn_kernel_end")
    k("v_lshrrev_b32 v1, 6, v0"); k("v_and_b32 v0, 63, v0"); k("s_nop 0")
    k("v_readfirstlane_b32 s4, v1")
    k("s_and_b32 s5, s2, 31"); k("s_lshr_b32 s6, s2, 5")
    k("s_waitcnt lgkmcnt(0)")
    k.srd(8, 80, 2048 * QKVP, QKV_OFF); k.srd(16, 80, 2048 * CATP, CAT_OFF)
    k("v_and_b32 v12, 31, v0"); k("v_lshrrev_b32 v13, 5, v0")
    k("s_lshl_b32 s7, s6, 7"); k("s_lshl_b32 s20, s4, 5"); k("s_add_u32 s7, s7, s20")
    k("v_add_u32 v14, s7, v12")
    k(f"s_mov_b32 s21, {QKVP}"); k("v_mul_lo_u32 v15, v14, s21")
    k("s_lshl_b32 s22, s5, 6"); k("v_add_u32 v15, s22, v15"); k("v_lshl_add_u32 v15, v13, 4, v15")
    k(f"buffer_load_dwordx4 v[{Q}:{Q+3}], v15, s[8:11], 0 offen")
    k(f"buffer_load_dwordx4 v[{Q+4}:{Q+7}], v15, s[8:11], 0 offen offset:32")
    k("v_lshrrev_b32 v4, 2, v0"); k("s_lshl_b32 s7, s4, 4"); k("v_add_u32 v4, s7, v4")
    k("v_mul_lo_u32 v4, v4, s21"); k("v_add_u32 v4, s22, v4")
    k("v_and_b32 v5, 3, v0"); k("v_lshrrev_b32 v6, 4, v0"); k("v_xor_b32 v6, v6, v5")
    k("v_lshl_add_u32 v2, v6, 4, v4"); k("v_add_u32 v2, 2048, v2")
    k("v_lshl_add_u32 v3, v5, 4, v4"); k("v_add_u32 v3, 4096, v3")
    k("v_lshrrev_b32 v7, 2, v0"); k("v_and_b32 v7, 3, v7")
    for kk in range(2):
        k(f"v_add_u32 v8, {2*kk}, v13"); k("v_xor_b32 v8, v8, v7"); k("v_lshlrev_b32 v8, 4, v8")
        k(f"v_lshl_add_u32 v{4+kk}, v12, 6, v8")
    k("v_lshl_add_u32 v8, v13, 2, v7"); k("v_lshlrev_b32 v8, 6, v8")
    k("v_lshrrev_b32 v9, 4, v0"); k("v_and_b32 v9, 1, v9"); k("v_lshl_add_u32 v8, v9, 5, v8")
    k("v_and_b32 v9, 3, v0"); k("v_lshl_add_u32 v8, v9, 3, v8"); k("v_add_u32 v6, 4096, v8")
    for i in range(4): k(f"v_mov_b32 v{ONE+i}, 0x3f803f80")
    for i in range(32): k(f"v_mov_b32 v{O+i}, 0")
    k("v_mov_b32 v10, 0xff800000")
    k("s_mov_b32 s40, 0"); k("s_lshl_b32 s44, s4, 10"); k("s_mov_b32 s45, 0")
    k("s_mov_b32 s30, 0x3e8293ee")
    def dma():
        k("s_mov_b32 m0, s44"); k("s_nop 0")
        k("buffer_load_dwordx4 v2, s[8:11], s40 offen lds")
        k("s_add_u32 m0, s44, 4096"); k("s_nop 0")
        k("buffer_load_dwordx4 v3, s[8:11], s40 offen lds")
        k(f"s_add_u32 s40, s40, {64*QKVP}"); k("s_xor_b32 s44, s44, 8192")
    dma()
    lp = k.new("loop"); k.label(lp)
    k("s_waitcnt vmcnt(0)"); k("s_barrier")
    for kt in range(2):
        for kk in range(2):
            b = KF + (kt * 2 + kk) * 4
            k(f"ds_read_b128 v[{b}:{b+3}], v{4+kk} offset:{kt*2048}")
    for b in range(4):
        r = VF + b * 4
        k(f"ds_read_b64_tr_b16 v[{r}:{r+1}], v6 offset:{b*1024}")
        k(f"ds_read_b64_tr_b16 v[{r+2}:{r+3}], v6 offset:{b*1024+512}")
    dma()
    k("s_waitcnt lgkmcnt(8)")
    for kt in range(2):
        b = KF + kt * 8
        k(f"v_mfma_f32_32x32x16_bf16 v[{S+kt*16}:{S+kt*16+15}], v[{b}:{b+3}], v[{Q}:{Q+3}], 0")
        k(f"v_mfma_f32_32x32x16_bf16 v[{S+kt*16}:{S+kt*16+15}], v[{b+4}:{b+7}], v[{Q+4}:{Q+7}], v[{S+kt*16}:{S+kt*16+15}]")
    for i in range(3): k(f"v_xor_b32 v{4+i}, 8192, v{4+i}")
    k("s_add_u32 s45, s45, 1")
    k("s_nop 7")
    k(f"v_max3_f32 v11, v{S}, v{S+1}, v{S+2}")
    for i in range(3, 15, 2): k(f"v_max3_f32 v11, v11, v{S+i}, v{S+i+1}")
    k(f"v_max3_f32 v9, v{S+15}, v{S+16}, v{S+17}")
    for i in range(18, 32, 2): k(f"v_max3_f32 v9, v9, v{S+i}, v{S+i+1}")
    k("v_max_f32 v11, v11, v9"); k("v_mov_b32 v9, v11"); k("s_nop 1")
    k("v_permlane32_swap_b32 v11, v9")
    k("v_max3_f32 v11, v11, v9, v10")
    k("v_cmp_gt_f32 vcc, v11, v10"); k("s_nop 1")
    sk = k.new("skip")
    k(f"s_cbranch_vccz {sk}")
    k("v_sub_f32 v9, v10, v11"); k("v_mul_f32 v9, s30, v9"); k("v_exp_f32 v9, v9"); k("s_nop 0")
    for i in range(17): k(f"v_mul_f32 v{O+i}, v{O+i}, v9")
    k.label(sk)
    k("v_mov_b32 v10, v11"); k("v_mul_f32 v9, s30, v11")
    for i in range(32): k(f"v_fma_f32 v{S+i}, v{S+i}, s30, -v9")
    for i in range(32): k(f"v_exp_f32 v{S+i}, v{S+i}")
    k("s_nop 0")
    for i in range(16): k(f"v_cvt_pk_bf16_f32 v{P+i}, v{S+2*i}, v{S+2*i+1}")
    k("s_waitcnt lgkmcnt(0)"); k("s_nop 0")
    for b in range(4):
        k(f"v_mfma_f32_32x32x16_bf16 v[{O}:{O+15}], v[{VF+b*4}:{VF+b*4+3}], v[{P+b*4}:{P+b*4+3}], v[{O}:{O+15}]")
        k(f"v_mfma_f32_32x32x16_bf16 v[{Lr}:{Lr+15}], v[{ONE}:{ONE+3}], v[{P+b*4}:{P+b*4+3}], v[{Lr}:{Lr+15}]")
    k("s_cmp_lt_u32 s45, 32"); k(f"s_cbranch_scc1 {lp}")
    k("s_waitcnt vmcnt(0)")
    k(f"s_mov_b32 s21, {CATP}"); k("v_mul_lo_u32 v15, v14, s21"); k("v_add_u32 v15, s22, v15")
    k("v_lshl_add_u32 v15, v13, 4, v15")
    k("s_nop 7"); k("s_nop 7")
    k(f"v_rcp_f32 v9, v{Lr}"); k("s_nop 0")
    for i in range(16): k(f"v_mul_f32 v{O+i}, v{O+i}, v9")
    for j in range(8): k(f"v_cvt_pk_bf16_f32 v{O+j}, v{O+2*j}, v{O+2*j+1}")
    k("s_nop 1")
    for qq in range(2):
        b = O + 4 * qq
        k(f"v_permlane32_swap_b32 v{b}, v{b+2}"); k(f"v_permlane32_swap_b32 v{b+1}, v{b+3}")
    for qq in range(2):
        k(f"buffer_store_dwordx4 v[{O+4*qq}:{O+4*qq+3}], v15, s[16:19], 0 offen offset:{qq*32}")
    k.label("attn_kernel_end"); k("s_endpgm")
    return k.text(144)

def main():
    out = sys.argv[1] if len(sys.argv) > 1 else f"cdna_kernels/{NAME}.s"
    hdr = [l for l in open(f"cdna_kernels/{NAME}.s.ref").read().split("\n") if l.startswith(";") and "@launch" not in l]
    g1, lds1 = gemm_kernel("gemm1_kernel", 256, 256, 4, 2, setup_g1(256, 256), 2048, 16, nwg=208)
    g2, lds2 = gemm_kernel("gemm2_kernel", 128, 64, 2, 2, setup_g2(128, 64), CATP, 72, kswitch=16, resid=True, nwg=256)
    hdr += ["; @launch kernel=ln_kernel grid=(512,1,1) block=(256,1,1) lds=0",
            f"; @launch kernel=gemm1_kernel grid=(208,1,1) block=(512,1,1) lds={lds1}",
            "; @launch kernel=attn_kernel grid=(512,1,1) block=(256,1,1) lds=16384",
            f"; @launch kernel=gemm2_kernel grid=(256,1,1) block=(256,1,1) lds={lds2}"]
    txt = "\n".join(hdr) + "\n.amdgcn_target \"amdgcn-amd-amdhsa--gfx950\"\n" + ln_kernel() + g1 + attn_kernel() + g2
    open(out, "w").write(txt)
main()
```

```python
import sys
NAME = "parallel_sum__mha_block__dense_activation_relu__prompt"
XN_OFF, QKV_OFF, CAT_OFF = 0, 0x400000, 0x1000000
WS_BYTES = 268435456
CATP = 4608 * 2
QKVP = 3072 * 2

class K:
    def __init__(s, name): s.name = name; s.L = []; s.uid = 0
    def __call__(s, t=""): s.L.append("    " + t)
    def label(s, l): s.L.append(l + ":")
    def new(s, p): s.uid += 1; return f"{s.name}_{p}{s.uid}"
    def srd(s, d, lo, nbytes, add=0):
        if add:
            s(f"s_add_u32 s{d}, s{lo}, 0x{add:x}"); s(f"s_addc_u32 s{d+1}, s{lo+1}, 0")
        else:
            s(f"s_mov_b32 s{d}, s{lo}"); s(f"s_mov_b32 s{d+1}, s{lo+1}")
        s(f"s_and_b32 s{d+1}, s{d+1}, 0xffff")
        s(f"s_mov_b32 s{d+2}, 0x{nbytes:x}"); s(f"s_mov_b32 s{d+3}, 0x00020000")
    def text(s, vgpr, agpr=0, sgpr=100):
        acc = (vgpr + 3) // 4 * 4
        nf = vgpr if agpr == 0 else acc + agpr
        h = [".text", f".globl {s.name}", ".p2align 8", f".type {s.name},@function", f"{s.name}:"]
        d = [".section .rodata,\"a\"", ".p2align 6", f".amdhsa_kernel {s.name}",
             f"  .amdhsa_next_free_vgpr {nf}", f"  .amdhsa_next_free_sgpr {sgpr}",
             f"  .amdhsa_accum_offset {acc}", "  .amdhsa_group_segment_fixed_size 0",
             "  .amdhsa_kernarg_size 72", "  .amdhsa_user_sgpr_count 2",
             "  .amdhsa_user_sgpr_kernarg_segment_ptr 1", "  .amdhsa_system_sgpr_workgroup_id_x 1",
             ".end_amdhsa_kernel"]
        return "\n".join(h + s.L + d) + "\n"

def load_args(k):
    k("s_load_dwordx16 s[64:79], s[0:1], 0")
    k("s_load_dwordx2 s[80:81], s[0:1], 64")

def wave_sum(k, v, t, sa, sb):
    for o in (0x041F, 0x081F, 0x101F, 0x201F, 0x401F):
        k(f"ds_swizzle_b32 v{t}, v{v} offset:0x{o:x}"); k("s_waitcnt lgkmcnt(0)")
        k(f"v_add_f32 v{v}, v{v}, v{t}")
    k("s_nop 0")
    k(f"v_readlane_b32 s{sa}, v{v}, 0"); k(f"v_readlane_b32 s{sb}, v{v}, 32"); k("s_nop 1")
    k(f"v_mov_b32 v{v}, s{sa}"); k(f"v_add_f32 v{v}, s{sb}, v{v}")

def rbf(k, v, t):
    k(f"v_cvt_pk_bf16_f32 v{t}, v{v}, v{v}"); k(f"v_lshlrev_b32 v{v}, 16, v{t}")

def ln_kernel():
    k = K("ln_kernel")
    load_args(k)
    k("s_cmp_ge_u32 s2, 512"); k(f"s_cbranch_scc1 ln_kernel_end")
    k("v_lshrrev_b32 v1, 6, v0")
    k("v_and_b32 v2, 63, v0")
    k("s_lshl_b32 s3, s2, 2")
    k("v_add_u32 v1, s3, v1")
    k("v_lshlrev_b32 v1, 11, v1")
    k("v_lshl_add_u32 v1, v2, 4, v1")
    k("s_waitcnt lgkmcnt(0)")
    k.srd(8, 64, 2048 * 2048)
    k.srd(12, 80, 2048 * 2048, XN_OFF)
    k("buffer_load_dwordx4 v[4:7], v1, s[8:11], 0 offen")
    k("buffer_load_dwordx4 v[8:11], v1, s[8:11], 0 offen offset:1024")
    k("s_waitcnt vmcnt(0)")
    for i in range(8):
        k(f"v_lshlrev_b32 v{16+2*i}, 16, v{4+i}"); k(f"v_and_b32 v{17+2*i}, 0xffff0000, v{4+i}")
    k("v_add_f32 v32, v16, v17")
    for i in range(2, 16): k(f"v_add_f32 v32, v32, v{16+i}")
    wave_sum(k, 32, 33, 20, 21)
    k("v_mul_f32 v32, 0x3a800000, v32")
    k("v_sub_f32 v34, v16, v32"); k("v_mul_f32 v35, v34, v34")
    for i in range(1, 16):
        k(f"v_sub_f32 v34, v{16+i}, v32"); k("v_fmac_f32 v35, v34, v34")
    wave_sum(k, 35, 33, 20, 21)
    k("v_mul_f32 v35, 0x3a800000, v35")
    rbf(k, 35, 33); rbf(k, 32, 33)
    k("v_add_f32 v35, 0x3727c5ac, v35"); rbf(k, 35, 33)
    k("v_sqrt_f32 v35, v35"); k("s_nop 0"); rbf(k, 35, 33)
    k("v_rcp_f32 v35, v35"); k("s_nop 0")
    for i in range(16):
        k(f"v_sub_f32 v{16+i}, v{16+i}, v32")
    for i in range(8):
        k(f"v_cvt_pk_bf16_f32 v33, v{16+2*i}, v{17+2*i}")
        k(f"v_lshlrev_b32 v{16+2*i}, 16, v33"); k(f"v_and_b32 v{17+2*i}, 0xffff0000, v33")
        k(f"v_mul_f32 v{16+2*i}, v{16+2*i}, v35"); k(f"v_mul_f32 v{17+2*i}, v{17+2*i}, v35")
        k(f"v_cvt_pk_bf16_f32 v{4+i}, v{16+2*i}, v{17+2*i}")
    k("buffer_store_dwordx4 v[4:7], v1, s[12:15], 0 offen")
    k("buffer_store_dwordx4 v[8:11], v1, s[12:15], 0 offen offset:1024")
    k.label("ln_kernel_end"); k("s_endpgm")
    return k.text(40)

def gemm_kernel(name, BM, BN, WM, WN, setup, pitchA, ksteps, kswitch=None, resid=False, nwg=0):
    k = K(name)
    NW = WM * WN; TM = BM // WM // 32; TN = BN // WN // 32
    ABY = BM * 128; RB = BN * 2; BBY = 64 * RB
    STG = 1
    while STG < ABY + BBY: STG *= 2
    IA = BM // 8 // NW; IB = BN // 8 // NW
    CPR = BN // 8; RPI = 1024 // RB
    load_args(k)
    k(f"s_cmp_ge_u32 s2, {nwg}"); k(f"s_cbranch_scc1 {name}_end")
    k("v_lshrrev_b32 v1, 6, v0"); k("v_and_b32 v0, 63, v0"); k("s_nop 0")
    k("v_readfirstlane_b32 s4, v1")
    k("s_waitcnt lgkmcnt(0)")
    setup(k)
    k(f"s_lshr_b32 s5, s4, {WN.bit_length()-1}")
    k(f"s_and_b32 s6, s4, {WN-1}")
    k("v_lshrrev_b32 v3, 3, v0"); k("s_lshl_b32 s7, s4, 3"); k("s_add_u32 s7, s7, s23")
    k("v_add_u32 v3, s7, v3"); k(f"s_mov_b32 s7, {pitchA}"); k("v_mul_lo_u32 v2, v3, s7")
    k("s_and_b32 s7, s4, 1"); k("s_lshl_b32 s7, s7, 2")
    k("v_lshrrev_b32 v3, 4, v0"); k("v_add_u32 v3, s7, v3"); k("v_and_b32 v3, 7, v3")
    k("v_and_b32 v4, 7, v0"); k("v_xor_b32 v3, v3, v4"); k("v_lshl_add_u32 v2, v3, 4, v2")
    k(f"v_lshrrev_b32 v4, {CPR.bit_length()-1}, v0"); k(f"s_mul_i32 s7, s4, {RPI}")
    k("v_add_u32 v4, s7, v4")
    k("v_mul_lo_u32 v3, v4, s20")
    if BN >= 128: k("v_and_b32 v4, 3, v4"); k("v_lshlrev_b32 v4, 2, v4")
    else: k("v_lshrrev_b32 v4, 1, v4"); k("v_and_b32 v4, 1, v4"); k("v_lshlrev_b32 v4, 2, v4")
    k(f"v_and_b32 v5, {CPR-1}, v0"); k("v_xor_b32 v4, v4, v5"); k("v_lshl_add_u32 v3, v4, 4, v3")
    k("s_lshl_b32 s7, s24, 1"); k("v_add_u32 v3, s7, v3")
    k("v_and_b32 v12, 31, v0"); k("v_lshrrev_b32 v13, 5, v0")
    k(f"s_mul_i32 s7, s5, {TM*32*128}")
    k("v_lshlrev_b32 v14, 7, v12"); k("v_add_u32 v14, s7, v14")
    k("v_lshrrev_b32 v15, 1, v0"); k("v_and_b32 v15, 7, v15")
    for kk in range(4):
        k(f"v_add_u32 v16, {2*kk}, v13"); k("v_xor_b32 v16, v16, v15"); k(f"v_lshl_add_u32 v{4+kk}, v16, 4, v14")
    k("v_lshrrev_b32 v14, 2, v0"); k("v_and_b32 v14, 3, v14")
    k("v_lshl_add_u32 v15, v13, 3, v14")
    k(f"s_mov_b32 s7, {RB}"); k("v_mul_lo_u32 v15, v15, s7")
    k("v_lshrrev_b32 v16, 4, v0"); k("v_and_b32 v16, 1, v16"); k("v_lshl_add_u32 v15, v16, 5, v15")
    k("v_and_b32 v16, 3, v0"); k("v_lshl_add_u32 v15, v16, 3, v15")
    k(f"v_add_u32 v15, {ABY}, v15")
    NB = 4 if BN >= 128 else 2
    if BN < 128: k("v_lshrrev_b32 v14, 1, v14")
    k(f"s_mul_i32 s7, s6, {TN}")
    NREG = min(TN, NB)
    for i in range(NREG):
        k(f"s_add_u32 s26, s7, {i}")
        k(f"s_and_b32 s27, s26, {NB-1}"); k(f"v_xor_b32 v16, s27, v14")
        k(f"s_andn2_b32 s26, s26, {NB-1}"); k("v_add_u32 v16, s26, v16")
        k(f"v_lshl_add_u32 v{8+i}, v16, 6, v15")
    assert TN <= NB or (TN % NB == 0)
    ACC = 128 if TM * TN > 4 else 64
    FR = 20
    nfr = (TM + TN) * 4
    for i in range(TM * TN * 16): k(f"v_mov_b32 v{ACC+i}, 0")
    k("s_mov_b32 s40, 0")
    k("s_mov_b32 s41, 0")
    k(f"s_lshl_b32 s42, s20, 6")
    k(f"s_mul_i32 s43, s20, {NW*RPI}")
    k(f"s_lshl_b32 s44, s4, 10")
    k("s_mov_b32 s45, 0")
    def dma():
        for t in range(IA):
            k(f"s_add_u32 s46, s40, {t*NW*8*pitchA}")
            k(f"s_add_u32 m0, s44, {t*NW*1024}"); k("s_nop 0")
            k("buffer_load_dwordx4 v2, s[8:11], s46 offen lds")
        k("s_mov_b32 s46, s41")
        for t in range(IB):
            k(f"s_add_u32 m0, s44, {ABY + t*NW*1024}")
            if t: k("s_add_u32 s46, s46, s43")
            else: k("s_nop 0")
            k("buffer_load_dwordx4 v3, s[12:15], s46 offen lds")
        k("s_add_u32 s40, s40, 128"); k("s_add_u32 s41, s41, s42"); k(f"s_xor_b32 s44, s44, {STG}")
    def reads(kk, buf):
        b = FR + buf * nfr
        for tn in range(TN):
            o = kk * 16 * RB + (tn // NB) * NB * 64
            k(f"ds_read_b64_tr_b16 v[{b+tn*4}:{b+tn*4+1}], v{8+tn%NB} offset:{o}")
            k(f"ds_read_b64_tr_b16 v[{b+tn*4+2}:{b+tn*4+3}], v{8+tn%NB} offset:{o+4*RB}")
        for tm in range(TM):
            k(f"ds_read_b128 v[{b+TN*4+tm*4}:{b+TN*4+tm*4+3}], v{4+kk} offset:{tm*4096}")
    def mfmas(buf):
        b = FR + buf * nfr
        for tm in range(TM):
            for tn in range(TN):
                a = ACC + (tm * TN + tn) * 16
                k(f"v_mfma_f32_32x32x16_bf16 v[{a}:{a+15}], v[{b+tn*4}:{b+tn*4+3}], v[{b+TN*4+tm*4}:{b+TN*4+tm*4+3}], v[{a}:{a+15}]")
    dma()
    lp = k.new("loop"); k.label(lp)
    k("s_waitcnt vmcnt(0)"); k("s_barrier")
    k("s_add_u32 s45, s45, 1")
    if kswitch is not None:
        sk = k.new("sw")
        k(f"s_cmp_lg_u32 s45, {kswitch}"); k(f"s_cbranch_scc1 {sk}")
        for i in range(4): k(f"s_mov_b32 s{12+i}, s{28+i}")
        k("s_mov_b32 s41, 0")
        k.label(sk)
    reads(0, 0)
    dma()
    nrd = 2 * TN + TM
    for kk in range(4):
        if kk < 3:
            reads(kk + 1, (kk + 1) % 2); k(f"s_waitcnt lgkmcnt({nrd})")
        else: k("s_waitcnt lgkmcnt(0)")
        mfmas(kk % 2)
    for i in range(4 + NREG): k(f"v_xor_b32 v{4+i}, {STG}, v{4+i}")
    k(f"s_cmp_lt_u32 s45, {ksteps}"); k(f"s_cbranch_scc1 {lp}")
    k("s_waitcnt vmcnt(0)")
    k(f"s_mul_i32 s7, s5, {TM*32}"); k("s_add_u32 s7, s7, s23")
    k("v_add_u32 v14, s7, v12")
    k("v_mul_lo_u32 v15, v14, s21")
    k(f"s_mul_i32 s7, s6, {TN*32}"); k("s_add_u32 s7, s7, s25"); k("s_lshl_b32 s7, s7, 1")
    k("v_add_u32 v15, s7, v15"); k("v_lshl_add_u32 v16, v13, 4, v15")
    k("v_lshl_add_u32 v17, v13, 3, v15")
    k("s_lshl_b32 s47, s21, 5")
    k("s_nop 7"); k("s_nop 7")
    for tm in range(TM):
        if tm: k("v_add_u32 v16, s47, v16"); k("v_add_u32 v17, s47, v17")
        if resid:
            for tn in range(TN):
                for q in range(4):
                    k(f"buffer_load_dwordx2 v[{FR+tn*8+2*q}:{FR+tn*8+2*q+1}], v17, s[32:35], 0 offen offset:{tn*64+q*16}")
            k("s_waitcnt vmcnt(0)")
        for tn in range(TN):
            a = ACC + (tm * TN + tn) * 16
            if resid:
                for q in range(4):
                    for d in range(2):
                        x = FR + tn * 8 + 2 * q + d
                        k(f"v_lshlrev_b32 v18, 16, v{x}"); k(f"v_and_b32 v19, 0xffff0000, v{x}")
                        k(f"v_add_f32 v{a+4*q+2*d}, v{a+4*q+2*d}, v18"); k(f"v_add_f32 v{a+4*q+2*d+1}, v{a+4*q+2*d+1}, v19")
            else:
                for j in range(16): k(f"v_max_f32 v{a+j}, s22, v{a+j}")
            for j in range(8): k(f"v_cvt_pk_bf16_f32 v{a+j}, v{a+2*j}, v{a+2*j+1}")
            k("s_nop 1")
            for qq in range(2):
                b = a + 4 * qq
                k(f"v_permlane32_swap_b32 v{b}, v{b+2}"); k(f"v_permlane32_swap_b32 v{b+1}, v{b+3}")
            for qq in range(2):
                b = a + 4 * qq
                k(f"buffer_store_dwordx4 v[{b}:{b+3}], v16, s[16:19], 0 offen offset:{tn*64+qq*32}")
    k.label(f"{name}_end"); k("s_endpgm")
    return k.text(ACC + TM * TN * 16), STG * 2

def setup_g1(BM, BN):
    nq = 3072 // BN; nt = 6656 // BN
    def f(k):
        nm = 2048 // BM
        k(f"s_and_b32 s23, s2, {nm-1}"); k(f"s_lshl_b32 s23, s23, {BM.bit_length()-1}")
        k(f"s_lshr_b32 s24, s2, {nm.bit_length()-1}"); k(f"s_mul_i32 s24, s24, {BN}")
        k.srd(8, 80, 2048 * 2048, XN_OFF)
        l1, l2 = k.new("ffn"), k.new("j")
        k("s_cmp_ge_u32 s24, 3072"); k(f"s_cbranch_scc1 {l1}")
        k.srd(12, 66, 1024 * 6144); k.srd(16, 80, 2048 * QKVP, QKV_OFF)
        k("s_mov_b32 s20, 6144"); k(f"s_mov_b32 s21, {QKVP}"); k("s_mov_b32 s22, 0xff800000"); k("s_mov_b32 s25, s24")
        k(f"s_branch {l2}")
        k.label(l1)
        k.srd(12, 72, 1024 * 7168); k.srd(16, 80, 2048 * CATP, CAT_OFF)
        k("s_mov_b32 s20, 7168"); k(f"s_mov_b32 s21, {CATP}"); k("s_mov_b32 s22, 0")
        k("s_sub_u32 s24, s24, 3072"); k("s_add_u32 s25, s24, 1024")
        k.label(l2)
    return f

def setup_g2(BM, BN):
    def f(k):
        nn = 1024 // BN
        k(f"s_and_b32 s24, s2, {nn-1}"); k(f"s_mul_i32 s24, s24, {BN}")
        k(f"s_lshr_b32 s23, s2, {nn.bit_length()-1}"); k(f"s_lshl_b32 s23, s23, {BM.bit_length()-1}")
        k.srd(8, 80, 2048 * CATP, CAT_OFF)
        k.srd(12, 68, 1024 * 2048); k.srd(28, 74, 3584 * 2048)
        k.srd(16, 76, 2048 * 2048); k.srd(32, 64, 2048 * 2048)
        k("s_mov_b32 s20, 2048"); k("s_mov_b32 s21, 2048"); k("s_mov_b32 s22, 0"); k("s_mov_b32 s25, s24")
    return f

def attn_body(k, wgid="s2"):
    Q, ONE, KF, VF, S, P, O, Lr = 24, 20, 32, 48, 64, 128, 160, 176
    k("v_lshrrev_b32 v1, 6, v0"); k("v_and_b32 v0, 63, v0"); k("s_nop 0")
    k("v_readfirstlane_b32 s4, v1")
    k(f"s_and_b32 s5, {wgid}, 31"); k(f"s_lshr_b32 s6, {wgid}, 5")
    k.srd(8, 80, 2048 * QKVP, QKV_OFF); k.srd(16, 80, 2048 * CATP, CAT_OFF)
    k("v_and_b32 v12, 31, v0"); k("v_lshrrev_b32 v13, 5, v0")
    k("s_lshl_b32 s7, s6, 7"); k("s_lshl_b32 s20, s4, 5"); k("s_add_u32 s7, s7, s20")
    k("v_add_u32 v14, s7, v12")
    k(f"s_mov_b32 s21, {QKVP}"); k("v_mul_lo_u32 v15, v14, s21")
    k("s_lshl_b32 s22, s5, 6"); k("v_add_u32 v15, s22, v15"); k("v_lshl_add_u32 v15, v13, 4, v15")
    k(f"buffer_load_dwordx4 v[{Q}:{Q+3}], v15, s[8:11], 0 offen")
    k(f"buffer_load_dwordx4 v[{Q+4}:{Q+7}], v15, s[8:11], 0 offen offset:32")
    k("v_lshrrev_b32 v4, 2, v0"); k("s_lshl_b32 s7, s4, 4"); k("v_add_u32 v4, s7, v4")
    k("v_mul_lo_u32 v4, v4, s21"); k("v_add_u32 v4, s22, v4")
    k("v_and_b32 v5, 3, v0"); k("v_lshrrev_b32 v6, 4, v0"); k("v_xor_b32 v6, v6, v5")
    k("v_lshl_add_u32 v2, v6, 4, v4"); k("v_add_u32 v2, 2048, v2")
    k("v_lshl_add_u32 v3, v5, 4, v4"); k("v_add_u32 v3, 4096, v3")
    k("v_lshrrev_b32 v7, 2, v0"); k("v_and_b32 v7, 3, v7")
    for kk in range(2):
        k(f"v_add_u32 v8, {2*kk}, v13"); k("v_xor_b32 v8, v8, v7"); k("v_lshlrev_b32 v8, 4, v8")
        k(f"v_lshl_add_u32 v{4+kk}, v12, 6, v8")
    k("v_lshl_add_u32 v8, v13, 2, v7"); k("v_lshlrev_b32 v8, 6, v8")
    k("v_lshrrev_b32 v9, 4, v0"); k("v_and_b32 v9, 1, v9"); k("v_lshl_add_u32 v8, v9, 5, v8")
    k("v_and_b32 v9, 3, v0"); k("v_lshl_add_u32 v8, v9, 3, v8"); k("v_add_u32 v6, 8192, v8")
    for i in range(4): k(f"v_mov_b32 v{ONE+i}, 0x3f803f80")
    for i in range(32): k(f"v_mov_b32 v{O+i}, 0")
    k("v_mov_b32 v10, 0xff800000")
    k("s_mov_b32 s40, 0"); k("s_mov_b32 s41, 0"); k("s_lshl_b32 s44, s4, 10"); k("s_mov_b32 s45, 0")
    k("s_mov_b32 s30, 0x3e8293ee")
    k("s_mov_b64 s[34:35], 0")
    BLK = 64 * QKVP
    def dmaK(par):
        k(f"s_add_u32 m0, s44, {par*4096}"); k("s_nop 0")
        k("buffer_load_dwordx4 v2, s[8:11], s40 offen lds"); k(f"s_add_u32 s40, s40, {BLK}")
    def dmaV(par):
        k(f"s_add_u32 m0, s44, {8192+par*4096}"); k("s_nop 0")
        k("buffer_load_dwordx4 v3, s[8:11], s41 offen lds"); k(f"s_add_u32 s41, s41, {BLK}")
    def readK(par):
        for kt in range(2):
            for kk in range(2):
                b = KF + (kt * 2 + kk) * 4
                k(f"ds_read_b128 v[{b}:{b+3}], v{4+kk} offset:{par*4096+kt*2048}")
    def readV(par):
        for b in range(4):
            r = VF + b * 4
            k(f"ds_read_b64_tr_b16 v[{r}:{r+1}], v6 offset:{par*4096+b*1024}")
            k(f"ds_read_b64_tr_b16 v[{r+2}:{r+3}], v6 offset:{par*4096+b*1024+512}")
    def mfA(par):
        r = []
        for kt in range(2):
            b = KF + kt * 8; s = S + par * 32 + kt * 16
            r.append(f"v_mfma_f32_32x32x16_bf16 v[{s}:{s+15}], v[{b}:{b+3}], v[{Q}:{Q+3}], 0")
            r.append(f"v_mfma_f32_32x32x16_bf16 v[{s}:{s+15}], v[{b+4}:{b+7}], v[{Q+4}:{Q+7}], v[{s}:{s+15}]")
        return r
    def mfC(par):
        r = []
        for b in range(4):
            p = P + par * 16 + b * 4
            r.append(f"v_mfma_f32_32x32x16_bf16 v[{O}:{O+15}], v[{VF+b*4}:{VF+b*4+3}], v[{p}:{p+3}], v[{O}:{O+15}]")
            r.append(f"v_mfma_f32_32x32x16_bf16 v[{Lr}:{Lr+15}], v[{ONE}:{ONE+3}], v[{p}:{p+3}], v[{Lr}:{Lr+15}]")
        return r
    def valuB(par):
        s = S + par * 32; p = P + par * 16; r = []
        r.append(f"v_max3_f32 v11, v{s}, v{s+1}, v{s+2}")
        r.append(f"v_max3_f32 v9, v{s+15}, v{s+16}, v{s+17}")
        for i in range(6):
            r.append(f"v_max3_f32 v11, v11, v{s+3+2*i}, v{s+4+2*i}")
            r.append(f"v_max3_f32 v9, v9, v{s+18+2*i}, v{s+19+2*i}")
        r.append(f"v_max3_f32 v9, v9, v{s+30}, v{s+31}")
        r += ["v_max_f32 v11, v11, v9", "v_mov_b32 v9, v11", "s_nop 1", "v_permlane32_swap_b32 v11, v9",
              "v_max3_f32 v11, v11, v9, v10", "v_cmp_gt_f32 s[34:35], v11, v10",
              "v_sub_f32 v17, v10, v11", "v_mul_f32 v9, s30, v11", "v_mul_f32 v17, s30, v17",
              "v_mov_b32 v10, v11", "v_exp_f32 v17, v17"]
        for g in range(5):
            if g < 4:
                for i in range(8): r.append(f"v_fma_f32 v{s+8*g+i}, v{s+8*g+i}, s30, -v9")
                for i in range(8): r.append(f"v_exp_f32 v{s+8*g+i}, v{s+8*g+i}")
            if g > 0:
                for i in range(4): r.append(f"v_cvt_pk_bf16_f32 v{p+4*(g-1)+i}, v{s+8*(g-1)+2*i}, v{s+8*(g-1)+2*i+1}")
        return r
    def rescale():
        sk = k.new("skip")
        k("s_cmp_eq_u64 s[34:35], 0"); k(f"s_cbranch_scc1 {sk}")
        for i in range(17): k(f"v_mul_f32 v{O+i}, v{O+i}, v17")
        k.label(sk)
    def body(par, doA, doB, doC):
        k("s_waitcnt vmcnt(0)"); k("s_barrier")
        if doA: readK(1 - par)
        if doC: readV(1 - par)
        if doA: dmaK(par)
        if doB: dmaV(par)
        if doC: rescale()
        mf = []
        if doA: mf += [("s_waitcnt lgkmcnt(%d)" % (8 if doC else 0), m) if i == 0 else (None, m) for i, m in enumerate(mfA(1 - par))]
        if doC: mf += [("s_waitcnt lgkmcnt(0)", m) if i == 0 else (None, m) for i, m in enumerate(mfC(1 - par))]
        va = valuB(par) if doB else []
        step = max(1, (len(va) - 6) // max(1, len(mf)))
        pos = 2
        for i, v in enumerate(va):
            if mf and i == pos:
                w, m = mf.pop(0)
                if w: k(w)
                k(m); pos += step
            k(v)
        for w, m in mf:
            if w: k(w)
            k(m)
    dmaK(0); dmaK(1)
    k("s_waitcnt vmcnt(0)"); k("s_barrier")
    readK(0); k("s_waitcnt lgkmcnt(0)")
    for m in mfA(0): k(m)
    k("s_nop 7"); k("s_nop 3")
    body(0, True, True, False)
    lp = k.new("loop"); k.label(lp)
    body(1, True, True, True)
    body(0, True, True, True)
    k("s_add_u32 s45, s45, 1"); k("s_cmp_lt_u32 s45, 15"); k(f"s_cbranch_scc1 {lp}")
    body(1, False, True, True)
    body(0, False, False, True)
    k("s_waitcnt vmcnt(0)")
    k(f"s_mov_b32 s21, {CATP}"); k("v_mul_lo_u32 v15, v14, s21"); k("v_add_u32 v15, s22, v15")
    k("v_lshl_add_u32 v15, v13, 4, v15")
    k("s_nop 7"); k("s_nop 7")
    k(f"v_rcp_f32 v9, v{Lr}"); k("s_nop 0")
    for i in range(16): k(f"v_mul_f32 v{O+i}, v{O+i}, v9")
    for j in range(8): k(f"v_cvt_pk_bf16_f32 v{O+j}, v{O+2*j}, v{O+2*j+1}")
    k("s_nop 1")
    for qq in range(2):
        b = O + 4 * qq
        k(f"v_permlane32_swap_b32 v{b}, v{b+2}"); k(f"v_permlane32_swap_b32 v{b+1}, v{b+3}")
    for qq in range(2):
        k(f"buffer_store_dwordx4 v[{O+4*qq}:{O+4*qq+3}], v15, s[16:19], 0 offen offset:{qq*32}")
    return 192

def attn_kernel():
    k = K("attn_kernel")
    load_args(k)
    k("s_cmp_ge_u32 s2, 512"); k("s_cbranch_scc1 attn_kernel_end")
    k("s_waitcnt lgkmcnt(0)")
    nv = attn_body(k)
    k.label("attn_kernel_end"); k("s_endpgm")
    return k.text(nv)

def main():
    out = sys.argv[1] if len(sys.argv) > 1 else f"cdna_kernels/{NAME}.s"
    hdr = [l for l in open(f"cdna_kernels/{NAME}.s.ref").read().split("\n") if l.startswith(";") and "@launch" not in l]
    g1, lds1 = gemm_kernel("gemm1_kernel", 256, 256, 4, 2, setup_g1(256, 256), 2048, 16, nwg=208)
    g2, lds2 = gemm_kernel("gemm2_kernel", 128, 64, 2, 2, setup_g2(128, 64), CATP, 72, kswitch=16, resid=True, nwg=256)
    hdr += ["; @launch kernel=ln_kernel grid=(512,1,1) block=(256,1,1) lds=0",
            f"; @launch kernel=gemm1_kernel grid=(208,1,1) block=(512,1,1) lds={lds1}",
            "; @launch kernel=attn_kernel grid=(512,1,1) block=(256,1,1) lds=16384",
            f"; @launch kernel=gemm2_kernel grid=(256,1,1) block=(256,1,1) lds={lds2}"]
    txt = "\n".join(hdr) + "\n.amdgcn_target \"amdgcn-amd-amdhsa--gfx950\"\n" + ln_kernel() + g1 + attn_kernel() + g2
    open(out, "w").write(txt)
main()
```

```python
import sys
NAME = "parallel_sum__mha_block__dense_activation_relu__prompt"
XN_OFF, QKV_OFF, CAT_OFF = 0, 0x400000, 0x1000000
WS_BYTES = 268435456
CATP = 4608 * 2
QKVP = 3072 * 2

class K:
    def __init__(s, name): s.name = name; s.L = []; s.uid = 0
    def __call__(s, t=""):
        import os
        X = os.environ.get("XP", "")
        if s.name == "mid_kernel":
            if "e" in X and t.startswith("v_exp_f32"): t = t.replace("v_exp_f32", "v_mov_b32")
            if "m" in X and t.startswith("v_mfma"): return
            if "b" in X and t.startswith("s_barrier"): return
            if "d" in X and t.startswith("buffer_load") and t.endswith("lds"): return
            if "v" in X and (t.startswith("v_fma") or t.startswith("v_exp") or t.startswith("v_cvt") or t.startswith("v_max3")): return
            if "l" in X and t.startswith("ds_read"): return
        s.L.append("    " + t)
    def label(s, l): s.L.append(l + ":")
    def new(s, p): s.uid += 1; return f"{s.name}_{p}{s.uid}"
    def srd(s, d, lo, nbytes, add=0):
        if add:
            s(f"s_add_u32 s{d}, s{lo}, 0x{add:x}"); s(f"s_addc_u32 s{d+1}, s{lo+1}, 0")
        else:
            s(f"s_mov_b32 s{d}, s{lo}"); s(f"s_mov_b32 s{d+1}, s{lo+1}")
        s(f"s_and_b32 s{d+1}, s{d+1}, 0xffff")
        s(f"s_mov_b32 s{d+2}, 0x{nbytes:x}"); s(f"s_mov_b32 s{d+3}, 0x00020000")
    def text(s, vgpr, agpr=0, sgpr=100):
        acc = (vgpr + 3) // 4 * 4
        nf = vgpr if agpr == 0 else acc + agpr
        h = [".text", f".globl {s.name}", ".p2align 8", f".type {s.name},@function", f"{s.name}:"]
        d = [".section .rodata,\"a\"", ".p2align 6", f".amdhsa_kernel {s.name}",
             f"  .amdhsa_next_free_vgpr {nf}", f"  .amdhsa_next_free_sgpr {sgpr}",
             f"  .amdhsa_accum_offset {acc}", "  .amdhsa_group_segment_fixed_size 0",
             "  .amdhsa_kernarg_size 72", "  .amdhsa_user_sgpr_count 2",
             "  .amdhsa_user_sgpr_kernarg_segment_ptr 1", "  .amdhsa_system_sgpr_workgroup_id_x 1",
             ".end_amdhsa_kernel"]
        return "\n".join(h + s.L + d) + "\n"

def load_args(k):
    k("s_load_dwordx16 s[64:79], s[0:1], 0")
    k("s_load_dwordx2 s[80:81], s[0:1], 64")

def wave_sum(k, v, t, sa, sb):
    for o in (0x041F, 0x081F, 0x101F, 0x201F, 0x401F):
        k(f"ds_swizzle_b32 v{t}, v{v} offset:0x{o:x}"); k("s_waitcnt lgkmcnt(0)")
        k(f"v_add_f32 v{v}, v{v}, v{t}")
    k("s_nop 0")
    k(f"v_readlane_b32 s{sa}, v{v}, 0"); k(f"v_readlane_b32 s{sb}, v{v}, 32"); k("s_nop 1")
    k(f"v_mov_b32 v{v}, s{sa}"); k(f"v_add_f32 v{v}, s{sb}, v{v}")

def rbf(k, v, t):
    k(f"v_cvt_pk_bf16_f32 v{t}, v{v}, v{v}"); k(f"v_lshlrev_b32 v{v}, 16, v{t}")

def ln_kernel():
    k = K("ln_kernel")
    load_args(k)
    k("s_cmp_ge_u32 s2, 512"); k(f"s_cbranch_scc1 ln_kernel_end")
    k("v_lshrrev_b32 v1, 6, v0")
    k("v_and_b32 v2, 63, v0")
    k("s_lshl_b32 s3, s2, 2")
    k("v_add_u32 v1, s3, v1")
    k("v_lshlrev_b32 v1, 11, v1")
    k("v_lshl_add_u32 v1, v2, 4, v1")
    k("s_waitcnt lgkmcnt(0)")
    k.srd(8, 64, 2048 * 2048)
    k.srd(12, 80, 2048 * 2048, XN_OFF)
    k("buffer_load_dwordx4 v[4:7], v1, s[8:11], 0 offen")
    k("buffer_load_dwordx4 v[8:11], v1, s[8:11], 0 offen offset:1024")
    k("s_waitcnt vmcnt(0)")
    for i in range(8):
        k(f"v_lshlrev_b32 v{16+2*i}, 16, v{4+i}"); k(f"v_and_b32 v{17+2*i}, 0xffff0000, v{4+i}")
    k("v_add_f32 v32, v16, v17")
    for i in range(2, 16): k(f"v_add_f32 v32, v32, v{16+i}")
    wave_sum(k, 32, 33, 20, 21)
    k("v_mul_f32 v32, 0x3a800000, v32")
    k("v_sub_f32 v34, v16, v32"); k("v_mul_f32 v35, v34, v34")
    for i in range(1, 16):
        k(f"v_sub_f32 v34, v{16+i}, v32"); k("v_fmac_f32 v35, v34, v34")
    wave_sum(k, 35, 33, 20, 21)
    k("v_mul_f32 v35, 0x3a800000, v35")
    rbf(k, 35, 33); rbf(k, 32, 33)
    k("v_add_f32 v35, 0x3727c5ac, v35"); rbf(k, 35, 33)
    k("v_sqrt_f32 v35, v35"); k("s_nop 0"); rbf(k, 35, 33)
    k("v_rcp_f32 v35, v35"); k("s_nop 0")
    for i in range(16):
        k(f"v_sub_f32 v{16+i}, v{16+i}, v32")
    for i in range(8):
        k(f"v_cvt_pk_bf16_f32 v33, v{16+2*i}, v{17+2*i}")
        k(f"v_lshlrev_b32 v{16+2*i}, 16, v33"); k(f"v_and_b32 v{17+2*i}, 0xffff0000, v33")
        k(f"v_mul_f32 v{16+2*i}, v{16+2*i}, v35"); k(f"v_mul_f32 v{17+2*i}, v{17+2*i}, v35")
        k(f"v_cvt_pk_bf16_f32 v{4+i}, v{16+2*i}, v{17+2*i}")
    k("buffer_store_dwordx4 v[4:7], v1, s[12:15], 0 offen")
    k("buffer_store_dwordx4 v[8:11], v1, s[12:15], 0 offen offset:1024")
    k.label("ln_kernel_end"); k("s_endpgm")
    return k.text(40)

def gemm_body(k, BM, BN, WM, WN, setup, pitchA, ksteps, mode):
    NW = WM * WN; TM = BM // WM // 32; TN = BN // WN // 32
    ABY = BM * 128; RB = BN * 2; BBY = 64 * RB
    STG = 1
    while STG < ABY + BBY: STG *= 2
    IA = BM // 8 // NW; IB = BN // 8 // NW
    CPR = BN // 8; RPI = 1024 // RB
    k("v_lshrrev_b32 v1, 6, v0"); k("v_and_b32 v0, 63, v0"); k("s_nop 0")
    k("v_readfirstlane_b32 s4, v1")
    setup(k)
    k(f"s_lshr_b32 s5, s4, {WN.bit_length()-1}")
    k(f"s_and_b32 s6, s4, {WN-1}")
    k("v_lshrrev_b32 v3, 3, v0"); k("s_lshl_b32 s7, s4, 3"); k("s_add_u32 s7, s7, s23")
    k("v_add_u32 v3, s7, v3"); k(f"s_mov_b32 s7, {pitchA}"); k("v_mul_lo_u32 v2, v3, s7")
    k("s_and_b32 s7, s4, 1"); k("s_lshl_b32 s7, s7, 2")
    k("v_lshrrev_b32 v3, 4, v0"); k("v_add_u32 v3, s7, v3"); k("v_and_b32 v3, 7, v3")
    k("v_and_b32 v4, 7, v0"); k("v_xor_b32 v3, v3, v4"); k("v_lshl_add_u32 v2, v3, 4, v2")
    k(f"v_lshrrev_b32 v4, {CPR.bit_length()-1}, v0"); k(f"s_mul_i32 s7, s4, {RPI}")
    k("v_add_u32 v4, s7, v4")
    k("v_mul_lo_u32 v3, v4, s20")
    if BN >= 128: k("v_and_b32 v4, 3, v4"); k("v_lshlrev_b32 v4, 2, v4")
    else: k("v_lshrrev_b32 v4, 1, v4"); k("v_and_b32 v4, 1, v4"); k("v_lshlrev_b32 v4, 2, v4")
    k(f"v_and_b32 v5, {CPR-1}, v0"); k("v_xor_b32 v4, v4, v5"); k("v_lshl_add_u32 v3, v4, 4, v3")
    k("s_lshl_b32 s7, s24, 1"); k("v_add_u32 v3, s7, v3")
    k("v_and_b32 v12, 31, v0"); k("v_lshrrev_b32 v13, 5, v0")
    k(f"s_mul_i32 s7, s5, {TM*32*128}")
    k("v_lshlrev_b32 v14, 7, v12"); k("v_add_u32 v14, s7, v14")
    k("v_lshrrev_b32 v15, 1, v0"); k("v_and_b32 v15, 7, v15")
    for kk in range(4):
        k(f"v_add_u32 v16, {2*kk}, v13"); k("v_xor_b32 v16, v16, v15"); k(f"v_lshl_add_u32 v{4+kk}, v16, 4, v14")
    k("v_lshrrev_b32 v14, 2, v0"); k("v_and_b32 v14, 3, v14")
    k("v_lshl_add_u32 v15, v13, 3, v14")
    k(f"s_mov_b32 s7, {RB}"); k("v_mul_lo_u32 v15, v15, s7")
    k("v_lshrrev_b32 v16, 4, v0"); k("v_and_b32 v16, 1, v16"); k("v_lshl_add_u32 v15, v16, 5, v15")
    k("v_and_b32 v16, 3, v0"); k("v_lshl_add_u32 v15, v16, 3, v15")
    k(f"v_add_u32 v15, {ABY}, v15")
    NB = 4 if BN >= 128 else 2
    if BN < 128: k("v_lshrrev_b32 v14, 1, v14")
    k(f"s_mul_i32 s7, s6, {TN}")
    NREG = min(TN, NB)
    for i in range(NREG):
        k(f"s_add_u32 s26, s7, {i}")
        k(f"s_and_b32 s27, s26, {NB-1}"); k(f"v_xor_b32 v16, s27, v14")
        k(f"s_andn2_b32 s26, s26, {NB-1}"); k("v_add_u32 v16, s26, v16")
        k(f"v_lshl_add_u32 v{8+i}, v16, 6, v15")
    assert TN <= NB or (TN % NB == 0)
    ACC = 128 if TM * TN > 4 else 64
    FR = 20
    nfr = (TM + TN) * 4
    for i in range(TM * TN * 16): k(f"v_mov_b32 v{ACC+i}, 0")
    k("s_mov_b32 s40, s36")
    k("s_mov_b32 s41, s37")
    k(f"s_lshl_b32 s42, s20, 6")
    k(f"s_mul_i32 s43, s20, {NW*RPI}")
    k(f"s_lshl_b32 s44, s4, 10")
    k("s_mov_b32 s45, 0")
    def dma():
        for t in range(IA):
            k(f"s_add_u32 s46, s40, {t*NW*8*pitchA}")
            k(f"s_add_u32 m0, s44, {t*NW*1024}"); k("s_nop 0")
            k("buffer_load_dwordx4 v2, s[8:11], s46 offen lds")
        k("s_mov_b32 s46, s41")
        for t in range(IB):
            k(f"s_add_u32 m0, s44, {ABY + t*NW*1024}")
            if t: k("s_add_u32 s46, s46, s43")
            else: k("s_nop 0")
            k("buffer_load_dwordx4 v3, s[12:15], s46 offen lds")
        k("s_add_u32 s40, s40, 128"); k("s_add_u32 s41, s41, s42"); k(f"s_xor_b32 s44, s44, {STG}")
    def reads(kk, buf):
        b = FR + buf * nfr
        for tn in range(TN):
            o = kk * 16 * RB + (tn // NB) * NB * 64
            k(f"ds_read_b64_tr_b16 v[{b+tn*4}:{b+tn*4+1}], v{8+tn%NB} offset:{o}")
            k(f"ds_read_b64_tr_b16 v[{b+tn*4+2}:{b+tn*4+3}], v{8+tn%NB} offset:{o+4*RB}")
        for tm in range(TM):
            k(f"ds_read_b128 v[{b+TN*4+tm*4}:{b+TN*4+tm*4+3}], v{4+kk} offset:{tm*4096}")
    def mfmas(buf):
        b = FR + buf * nfr
        for tm in range(TM):
            for tn in range(TN):
                a = ACC + (tm * TN + tn) * 16
                k(f"v_mfma_f32_32x32x16_bf16 v[{a}:{a+15}], v[{b+tn*4}:{b+tn*4+3}], v[{b+TN*4+tm*4}:{b+TN*4+tm*4+3}], v[{a}:{a+15}]")
    dma()
    lp = k.new("loop"); k.label(lp)
    k("s_waitcnt vmcnt(0)"); k("s_barrier")
    k("s_add_u32 s45, s45, 1")
    reads(0, 0)
    dma()
    nrd = 2 * TN + TM
    for kk in range(4):
        if kk < 3:
            reads(kk + 1, (kk + 1) % 2); k(f"s_waitcnt lgkmcnt({nrd})")
        else: k("s_waitcnt lgkmcnt(0)")
        mfmas(kk % 2)
    for i in range(4 + NREG): k(f"v_xor_b32 v{4+i}, {STG}, v{4+i}")
    k(f"s_cmp_lt_u32 s45, {ksteps}"); k(f"s_cbranch_scc1 {lp}")
    k("s_waitcnt vmcnt(0)")
    k(f"s_mul_i32 s7, s5, {TM*32}"); k("s_add_u32 s7, s7, s23")
    k("v_add_u32 v14, s7, v12")
    k("v_mul_lo_u32 v15, v14, s21")
    k(f"s_mul_i32 s7, s6, {TN*32}"); k("s_add_u32 s7, s7, s25")
    esz = 2 if mode == 'f32' else 1
    k(f"s_lshl_b32 s7, s7, {esz}")
    k("v_add_u32 v15, s7, v15"); k("v_lshl_add_u32 v16, v13, 4, v15")
    k("v_lshl_add_u32 v17, v13, 3, v15")
    k("v_lshlrev_b32 v18, 1, v17")
    k("s_lshl_b32 s47, s21, 5")
    k("s_nop 7"); k("s_nop 7")
    for tm in range(TM):
        if tm:
            k("v_add_u32 v16, s47, v16"); k("v_add_u32 v17, s47, v17"); k("v_lshlrev_b32 v18, 1, v17")
        if mode == 'f32':
            for tn in range(TN):
                a = ACC + (tm * TN + tn) * 16
                for q in range(4):
                    k(f"buffer_store_dwordx4 v[{a+4*q}:{a+4*q+3}], v16, s[16:19], 0 offen offset:{tn*128+q*32}")
            continue
        for tn in range(TN):
            a = ACC + (tm * TN + tn) * 16
            if mode == 'final':
                X, P0, P1 = FR, FR + 8, FR + 24
                for q in range(4):
                    k(f"buffer_load_dwordx2 v[{X+2*q}:{X+2*q+1}], v17, s[32:35], 0 offen offset:{tn*64+q*16}")
                    k(f"buffer_load_dwordx4 v[{P0+4*q}:{P0+4*q+3}], v18, s[28:31], 0 offen offset:{tn*128+q*32}")
                    k(f"buffer_load_dwordx4 v[{P1+4*q}:{P1+4*q+3}], v18, s[28:31], s39 offen offset:{tn*128+q*32}")
                k("s_waitcnt vmcnt(0)")
                for j in range(16):
                    k(f"v_add_f32 v{P0+j}, v{P0+j}, v{P1+j}")
                for j in range(8):
                    k(f"v_lshlrev_b32 v{P1+2*j}, 16, v{X+j}"); k(f"v_and_b32 v{P1+2*j+1}, 0xffff0000, v{X+j}")
                for j in range(16):
                    k(f"v_add_f32 v{a+j}, v{a+j}, v{P1+j}"); k(f"v_add_f32 v{a+j}, v{a+j}, v{P0+j}")
            else:
                for j in range(16):
                    k(f"v_max_f32 v{a+j}, s22, v{a+j}"); k(f"v_mul_f32 v{a+j}, s38, v{a+j}")
            for j in range(8): k(f"v_cvt_pk_bf16_f32 v{a+j}, v{a+2*j}, v{a+2*j+1}")
            k("s_nop 1")
            for qq in range(2):
                b = a + 4 * qq
                k(f"v_permlane32_swap_b32 v{b}, v{b+2}"); k(f"v_permlane32_swap_b32 v{b+1}, v{b+3}")
            for qq in range(2):
                b = a + 4 * qq
                k(f"buffer_store_dwordx4 v[{b}:{b+3}], v16, s[16:19], 0 offen offset:{tn*64+qq*32}")
    return max(ACC + TM * TN * 16, FR + 40), STG * 2

def simple_kernel(name, nwg, fn):
    k = K(name)
    load_args(k)
    k(f"s_cmp_ge_u32 s2, {nwg}"); k(f"s_cbranch_scc1 {name}_end")
    k("s_waitcnt lgkmcnt(0)")
    nv, lds = fn(k)
    k.label(f"{name}_end"); k("s_endpgm")
    return k.text(nv), lds

def setup_g1(BM, BN):
    nq = 3072 // BN; nt = 6656 // BN
    def f(k):
        nm = 2048 // BM
        k(f"s_and_b32 s23, s2, {nm-1}"); k(f"s_lshl_b32 s23, s23, {BM.bit_length()-1}")
        k(f"s_lshr_b32 s24, s2, {nm.bit_length()-1}"); k(f"s_mul_i32 s24, s24, {BN}")
        k.srd(8, 80, 2048 * 2048, XN_OFF)
        k("s_mov_b32 s36, 0"); k("s_mov_b32 s37, 0"); k("s_mov_b32 s38, 1.0")
        l1, l2 = k.new("ffn"), k.new("j")
        k("s_cmp_ge_u32 s24, 3072"); k(f"s_cbranch_scc1 {l1}")
        k.srd(12, 66, 1024 * 6144); k.srd(16, 80, 2048 * QKVP, QKV_OFF)
        k("s_mov_b32 s20, 6144"); k(f"s_mov_b32 s21, {QKVP}"); k("s_mov_b32 s22, 0xff800000"); k("s_mov_b32 s25, s24")
        k(f"s_branch {l2}")
        k.label(l1)
        k.srd(12, 72, 1024 * 7168); k.srd(16, 80, 2048 * CATP, CAT_OFF)
        k("s_mov_b32 s20, 7168"); k(f"s_mov_b32 s21, {CATP}"); k("s_mov_b32 s22, 0")
        k("s_sub_u32 s24, s24, 3072"); k("s_add_u32 s25, s24, 1024")
        k.label(l2)
    return f

PART_OFF = 0x2400000
def setup_ffn2(k):
    k("s_and_b32 s24, s2, 7"); k("s_lshl_b32 s24, s24, 7")
    k("s_lshr_b32 s23, s2, 3"); k("s_and_b32 s23, s23, 15"); k("s_lshl_b32 s23, s23, 7")
    k("s_lshr_b32 s7, s2, 7")
    k.srd(8, 80, 2048 * CATP, CAT_OFF); k.srd(12, 74, 3584 * 2048)
    k.srd(16, 80, 2 * 2048 * 4096, PART_OFF)
    k("s_mul_i32 s36, s7, 3584"); k("s_add_u32 s36, s36, 2048")
    k(f"s_mul_i32 s37, s7, {1792*2048}")
    k("s_mov_b32 s20, 2048"); k("s_mov_b32 s21, 4096")
    k(f"s_mul_i32 s25, s7, {2048*1024}"); k("s_add_u32 s25, s25, s24")

def setup_final(BM, BN):
    def f(k):
        nn = 1024 // BN
        k(f"s_and_b32 s24, s2, {nn-1}"); k(f"s_mul_i32 s24, s24, {BN}")
        k(f"s_lshr_b32 s23, s2, {nn.bit_length()-1}"); k(f"s_lshl_b32 s23, s23, {BM.bit_length()-1}")
        k.srd(8, 80, 2048 * CATP, CAT_OFF)
        k.srd(12, 68, 1024 * 2048); k.srd(28, 80, 2 * 2048 * 4096, PART_OFF)
        k.srd(16, 76, 2048 * 2048); k.srd(32, 64, 2048 * 2048)
        k("s_mov_b32 s20, 2048"); k("s_mov_b32 s21, 2048"); k("s_mov_b32 s25, s24")
        k("s_mov_b32 s36, 0"); k("s_mov_b32 s37, 0"); k(f"s_mov_b32 s39, {2048*4096}")
    return f

def attn_body(k, wgid="s2"):
    Q, ONE, KF, VF, S, P, O, Lr = 24, 20, 32, 48, 64, 128, 160, 176
    k("v_lshrrev_b32 v1, 6, v0"); k("v_and_b32 v0, 63, v0"); k("s_nop 0")
    k("v_readfirstlane_b32 s4, v1")
    k(f"s_and_b32 s5, {wgid}, 31"); k(f"s_lshr_b32 s6, {wgid}, 5")
    k.srd(8, 80, 2048 * QKVP, QKV_OFF); k.srd(16, 80, 2048 * CATP, CAT_OFF)
    k("v_and_b32 v12, 31, v0"); k("v_lshrrev_b32 v13, 5, v0")
    k("s_lshl_b32 s7, s6, 7"); k("s_lshl_b32 s20, s4, 5"); k("s_add_u32 s7, s7, s20")
    k("v_add_u32 v14, s7, v12")
    k(f"s_mov_b32 s21, {QKVP}"); k("v_mul_lo_u32 v15, v14, s21")
    k("s_lshl_b32 s22, s5, 6"); k("v_add_u32 v15, s22, v15"); k("v_lshl_add_u32 v15, v13, 4, v15")
    k(f"buffer_load_dwordx4 v[{Q}:{Q+3}], v15, s[8:11], 0 offen")
    k(f"buffer_load_dwordx4 v[{Q+4}:{Q+7}], v15, s[8:11], 0 offen offset:32")
    k("v_lshrrev_b32 v4, 2, v0"); k("s_lshl_b32 s7, s4, 4"); k("v_add_u32 v4, s7, v4")
    k("v_mul_lo_u32 v4, v4, s21"); k("v_add_u32 v4, s22, v4")
    k("v_and_b32 v5, 3, v0"); k("v_lshrrev_b32 v6, 4, v0"); k("v_xor_b32 v6, v6, v5")
    k("v_lshl_add_u32 v2, v6, 4, v4"); k("v_add_u32 v2, 2048, v2")
    k("v_lshl_add_u32 v3, v5, 4, v4"); k("v_add_u32 v3, 4096, v3")
    k("v_lshrrev_b32 v7, 2, v0"); k("v_and_b32 v7, 3, v7")
    for kk in range(2):
        k(f"v_add_u32 v8, {2*kk}, v13"); k("v_xor_b32 v8, v8, v7"); k("v_lshlrev_b32 v8, 4, v8")
        k(f"v_lshl_add_u32 v{4+kk}, v12, 6, v8")
    k("v_lshl_add_u32 v8, v13, 2, v7"); k("v_lshlrev_b32 v8, 6, v8")
    k("v_lshrrev_b32 v9, 4, v0"); k("v_and_b32 v9, 1, v9"); k("v_lshl_add_u32 v8, v9, 5, v8")
    k("v_and_b32 v9, 3, v0"); k("v_lshl_add_u32 v8, v9, 3, v8"); k("v_add_u32 v6, 8192, v8")
    for i in range(4): k(f"v_mov_b32 v{ONE+i}, 0x3f803f80")
    for i in range(32): k(f"v_mov_b32 v{O+i}, 0")
    k("v_mov_b32 v10, 0xff800000")
    k("s_mov_b32 s40, 0"); k("s_mov_b32 s41, 0"); k("s_lshl_b32 s44, s4, 10"); k("s_mov_b32 s45, 0")
    k("s_mov_b32 s30, 0x3e8293ee")
    k("s_mov_b64 s[34:35], 0")
    BLK = 64 * QKVP
    def dmaK(par):
        k(f"s_add_u32 m0, s44, {par*4096}"); k("s_nop 0")
        k("buffer_load_dwordx4 v2, s[8:11], s40 offen lds"); k(f"s_add_u32 s40, s40, {BLK}")
    def dmaV(par):
        k(f"s_add_u32 m0, s44, {8192+par*4096}"); k("s_nop 0")
        k("buffer_load_dwordx4 v3, s[8:11], s41 offen lds"); k(f"s_add_u32 s41, s41, {BLK}")
    def readK(par):
        for kt in range(2):
            for kk in range(2):
                b = KF + (kt * 2 + kk) * 4
                k(f"ds_read_b128 v[{b}:{b+3}], v{4+kk} offset:{par*4096+kt*2048}")
    def readV(par):
        for b in range(4):
            r = VF + b * 4
            k(f"ds_read_b64_tr_b16 v[{r}:{r+1}], v6 offset:{par*4096+b*1024}")
            k(f"ds_read_b64_tr_b16 v[{r+2}:{r+3}], v6 offset:{par*4096+b*1024+512}")
    def mfA(par):
        r = []
        for kt in range(2):
            b = KF + kt * 8; s = S + par * 32 + kt * 16
            r.append(f"v_mfma_f32_32x32x16_bf16 v[{s}:{s+15}], v[{b}:{b+3}], v[{Q}:{Q+3}], 0")
            r.append(f"v_mfma_f32_32x32x16_bf16 v[{s}:{s+15}], v[{b+4}:{b+7}], v[{Q+4}:{Q+7}], v[{s}:{s+15}]")
        return r
    def mfC(par):
        r = []
        for b in range(4):
            p = P + par * 16 + b * 4
            r.append(f"v_mfma_f32_32x32x16_bf16 v[{O}:{O+15}], v[{VF+b*4}:{VF+b*4+3}], v[{p}:{p+3}], v[{O}:{O+15}]")
            r.append(f"v_mfma_f32_32x32x16_bf16 v[{Lr}:{Lr+15}], v[{ONE}:{ONE+3}], v[{p}:{p+3}], v[{Lr}:{Lr+15}]")
        return r
    def valuB(par):
        s = S + par * 32; p = P + par * 16; r = []
        r.append(f"v_max3_f32 v11, v{s}, v{s+1}, v{s+2}")
        r.append(f"v_max3_f32 v9, v{s+15}, v{s+16}, v{s+17}")
        for i in range(6):
            r.append(f"v_max3_f32 v11, v11, v{s+3+2*i}, v{s+4+2*i}")
            r.append(f"v_max3_f32 v9, v9, v{s+18+2*i}, v{s+19+2*i}")
        r.append(f"v_max3_f32 v9, v9, v{s+30}, v{s+31}")
        r += ["v_max_f32 v11, v11, v9", "v_mov_b32 v9, v11", "s_nop 1", "v_permlane32_swap_b32 v11, v9",
              "v_max3_f32 v11, v11, v9, v10", "v_cmp_gt_f32 s[34:35], v11, v10",
              "v_sub_f32 v17, v10, v11", "v_mul_f32 v9, s30, v11", "v_mul_f32 v17, s30, v17",
              "v_mov_b32 v10, v11", "v_exp_f32 v17, v17"]
        for g in range(5):
            if g < 4:
                for i in range(8): r.append(f"v_fma_f32 v{s+8*g+i}, v{s+8*g+i}, s30, -v9")
                for i in range(8): r.append(f"v_exp_f32 v{s+8*g+i}, v{s+8*g+i}")
            if g > 0:
                for i in range(4): r.append(f"v_cvt_pk_bf16_f32 v{p+4*(g-1)+i}, v{s+8*(g-1)+2*i}, v{s+8*(g-1)+2*i+1}")
        return r
    def rescale():
        sk = k.new("skip")
        k("s_cmp_eq_u64 s[34:35], 0"); k(f"s_cbranch_scc1 {sk}")
        for i in range(17): k(f"v_mul_f32 v{O+i}, v{O+i}, v17")
        k.label(sk)
    def body(par, doA, doB, doC):
        k("s_waitcnt vmcnt(0)"); k("s_barrier")
        if doA: readK(1 - par)
        if doC: readV(1 - par)
        if doA: dmaK(par)
        if doB: dmaV(par)
        if doC: rescale()
        mf = []
        if doA: mf += [("s_waitcnt lgkmcnt(%d)" % (8 if doC else 0), m) if i == 0 else (None, m) for i, m in enumerate(mfA(1 - par))]
        if doC: mf += [("s_waitcnt lgkmcnt(0)", m) if i == 0 else (None, m) for i, m in enumerate(mfC(1 - par))]
        va = valuB(par) if doB else []
        step = max(1, (len(va) - 6) // max(1, len(mf)))
        pos = 2
        for i, v in enumerate(va):
            if mf and i == pos:
                w, m = mf.pop(0)
                if w: k(w)
                k(m); pos += step
            k(v)
        for w, m in mf:
            if w: k(w)
            k(m)
    dmaK(0); dmaK(1)
    k("s_waitcnt vmcnt(0)"); k("s_barrier")
    readK(0); k("s_waitcnt lgkmcnt(0)")
    for m in mfA(0): k(m)
    k("s_nop 7"); k("s_nop 3")
    body(0, True, True, False)
    lp = k.new("loop"); k.label(lp)
    body(1, True, True, True)
    body(0, True, True, True)
    k("s_add_u32 s45, s45, 1"); k("s_cmp_lt_u32 s45, 15"); k(f"s_cbranch_scc1 {lp}")
    body(1, False, True, True)
    body(0, False, False, True)
    k("s_waitcnt vmcnt(0)")
    k(f"s_mov_b32 s21, {CATP}"); k("v_mul_lo_u32 v15, v14, s21"); k("v_add_u32 v15, s22, v15")
    k("v_lshl_add_u32 v15, v13, 4, v15")
    k("s_nop 7"); k("s_nop 7")
    k(f"v_rcp_f32 v9, v{Lr}"); k("s_nop 0")
    for i in range(16): k(f"v_mul_f32 v{O+i}, v{O+i}, v9")
    for j in range(8): k(f"v_cvt_pk_bf16_f32 v{O+j}, v{O+2*j}, v{O+2*j+1}")
    k("s_nop 1")
    for qq in range(2):
        b = O + 4 * qq
        k(f"v_permlane32_swap_b32 v{b}, v{b+2}"); k(f"v_permlane32_swap_b32 v{b+1}, v{b+3}")
    for qq in range(2):
        k(f"buffer_store_dwordx4 v[{O+4*qq}:{O+4*qq+3}], v15, s[16:19], 0 offen offset:{qq*32}")
    return 192

def mid_kernel():
    k = K("mid_kernel")
    load_args(k)
    k("s_cmp_ge_u32 s2, 768"); k("s_cbranch_scc1 mid_kernel_end")
    k("s_waitcnt lgkmcnt(0)")
    k("s_cmp_ge_u32 s2, 256"); k("s_cbranch_scc1 mid_kernel_attn")
    nv, lds = gemm_body(k, 128, 128, 2, 2, setup_ffn2, CATP, 28, 'f32')
    k("s_endpgm")
    k.label("mid_kernel_attn")
    k("s_sub_u32 s3, s2, 256")
    nv2 = attn_body(k, "s3")
    k.label("mid_kernel_end"); k("s_endpgm")
    return k.text(max(nv, nv2)), max(lds, 16384)

def main():
    out = sys.argv[1] if len(sys.argv) > 1 else f"cdna_kernels/{NAME}.s"
    hdr = [l for l in open(f"cdna_kernels/{NAME}.s.ref").read().split("\n") if l.startswith(";") and "@launch" not in l]
    g1, lds1 = simple_kernel("gemm1_kernel", 208, lambda k: gemm_body(k, 256, 256, 4, 2, setup_g1(256, 256), 2048, 16, 'bf16'))
    md, ldsm = mid_kernel()
    g2, lds2 = simple_kernel("final_kernel", 256, lambda k: gemm_body(k, 128, 64, 2, 2, setup_final(128, 64), CATP, 16, 'final'))
    hdr += ["; @launch kernel=ln_kernel grid=(512,1,1) block=(256,1,1) lds=0",
            f"; @launch kernel=gemm1_kernel grid=(208,1,1) block=(512,1,1) lds={lds1}",
            f"; @launch kernel=mid_kernel grid=(768,1,1) block=(256,1,1) lds={ldsm}",
            f"; @launch kernel=final_kernel grid=(256,1,1) block=(256,1,1) lds={lds2}"]
    txt = "\n".join(hdr) + "\n.amdgcn_target \"amdgcn-amd-amdhsa--gfx950\"\n" + ln_kernel() + g1 + md + g2
    open(out, "w").write(txt)
main()
```

```python
import sys
NAME = "parallel_sum__mha_block__dense_activation_relu__prompt"
XN_OFF, QKV_OFF, CAT_OFF = 0, 0x400000, 0x1000000
WS_BYTES = 268435456
CATP = 4608 * 2
QKVP = 3072 * 2

class K:
    def __init__(s, name): s.name = name; s.L = []; s.uid = 0
    def __call__(s, t=""):
        import os
        X = os.environ.get("XP", "")
        if s.name == "mid_kernel":
            if "e" in X and t.startswith("v_exp_f32"): t = t.replace("v_exp_f32", "v_mov_b32")
            if "m" in X and t.startswith("v_mfma"): return
            if "b" in X and t.startswith("s_barrier"): return
            if "d" in X and t.startswith("buffer_load") and t.endswith("lds"): return
            if "v" in X and (t.startswith("v_fma") or t.startswith("v_exp") or t.startswith("v_cvt") or t.startswith("v_max3")): return
            if "l" in X and t.startswith("ds_read"): return
        s.L.append("    " + t)
    def label(s, l): s.L.append(l + ":")
    def new(s, p): s.uid += 1; return f"{s.name}_{p}{s.uid}"
    def srd(s, d, lo, nbytes, add=0):
        if add:
            s(f"s_add_u32 s{d}, s{lo}, 0x{add:x}"); s(f"s_addc_u32 s{d+1}, s{lo+1}, 0")
        else:
            s(f"s_mov_b32 s{d}, s{lo}"); s(f"s_mov_b32 s{d+1}, s{lo+1}")
        s(f"s_and_b32 s{d+1}, s{d+1}, 0xffff")
        s(f"s_mov_b32 s{d+2}, 0x{nbytes:x}"); s(f"s_mov_b32 s{d+3}, 0x00020000")
    def text(s, vgpr, agpr=0, sgpr=100):
        acc = (vgpr + 3) // 4 * 4
        nf = vgpr if agpr == 0 else acc + agpr
        h = [".text", f".globl {s.name}", ".p2align 8", f".type {s.name},@function", f"{s.name}:"]
        d = [".section .rodata,\"a\"", ".p2align 6", f".amdhsa_kernel {s.name}",
             f"  .amdhsa_next_free_vgpr {nf}", f"  .amdhsa_next_free_sgpr {sgpr}",
             f"  .amdhsa_accum_offset {acc}", "  .amdhsa_group_segment_fixed_size 0",
             "  .amdhsa_kernarg_size 72", "  .amdhsa_user_sgpr_count 2",
             "  .amdhsa_user_sgpr_kernarg_segment_ptr 1", "  .amdhsa_system_sgpr_workgroup_id_x 1",
             ".end_amdhsa_kernel"]
        return "\n".join(h + s.L + d) + "\n"

def load_args(k):
    k("s_load_dwordx16 s[64:79], s[0:1], 0")
    k("s_load_dwordx2 s[80:81], s[0:1], 64")

def wave_sum(k, v, t, sa, sb):
    for o in (0x041F, 0x081F, 0x101F, 0x201F, 0x401F):
        k(f"ds_swizzle_b32 v{t}, v{v} offset:0x{o:x}"); k("s_waitcnt lgkmcnt(0)")
        k(f"v_add_f32 v{v}, v{v}, v{t}")
    k("s_nop 0")
    k(f"v_readlane_b32 s{sa}, v{v}, 0"); k(f"v_readlane_b32 s{sb}, v{v}, 32"); k("s_nop 1")
    k(f"v_mov_b32 v{v}, s{sa}"); k(f"v_add_f32 v{v}, s{sb}, v{v}")

def rbf(k, v, t):
    k(f"v_cvt_pk_bf16_f32 v{t}, v{v}, v{v}"); k(f"v_lshlrev_b32 v{v}, 16, v{t}")

def ln_kernel():
    k = K("ln_kernel")
    load_args(k)
    k("s_cmp_ge_u32 s2, 512"); k(f"s_cbranch_scc1 ln_kernel_end")
    k("v_lshrrev_b32 v1, 6, v0")
    k("v_and_b32 v2, 63, v0")
    k("s_lshl_b32 s3, s2, 2")
    k("v_add_u32 v1, s3, v1")
    k("v_lshlrev_b32 v1, 11, v1")
    k("v_lshl_add_u32 v1, v2, 4, v1")
    k("s_waitcnt lgkmcnt(0)")
    k.srd(8, 64, 2048 * 2048)
    k.srd(12, 80, 2048 * 2048, XN_OFF)
    k("buffer_load_dwordx4 v[4:7], v1, s[8:11], 0 offen")
    k("buffer_load_dwordx4 v[8:11], v1, s[8:11], 0 offen offset:1024")
    k("s_waitcnt vmcnt(0)")
    for i in range(8):
        k(f"v_lshlrev_b32 v{16+2*i}, 16, v{4+i}"); k(f"v_and_b32 v{17+2*i}, 0xffff0000, v{4+i}")
    k("v_add_f32 v32, v16, v17")
    for i in range(2, 16): k(f"v_add_f32 v32, v32, v{16+i}")
    wave_sum(k, 32, 33, 20, 21)
    k("v_mul_f32 v32, 0x3a800000, v32")
    k("v_sub_f32 v34, v16, v32"); k("v_mul_f32 v35, v34, v34")
    for i in range(1, 16):
        k(f"v_sub_f32 v34, v{16+i}, v32"); k("v_fmac_f32 v35, v34, v34")
    wave_sum(k, 35, 33, 20, 21)
    k("v_mul_f32 v35, 0x3a800000, v35")
    rbf(k, 35, 33); rbf(k, 32, 33)
    k("v_add_f32 v35, 0x3727c5ac, v35"); rbf(k, 35, 33)
    k("v_sqrt_f32 v35, v35"); k("s_nop 0"); rbf(k, 35, 33)
    k("v_rcp_f32 v35, v35"); k("s_nop 0")
    for i in range(16):
        k(f"v_sub_f32 v{16+i}, v{16+i}, v32")
    for i in range(8):
        k(f"v_cvt_pk_bf16_f32 v33, v{16+2*i}, v{17+2*i}")
        k(f"v_lshlrev_b32 v{16+2*i}, 16, v33"); k(f"v_and_b32 v{17+2*i}, 0xffff0000, v33")
        k(f"v_mul_f32 v{16+2*i}, v{16+2*i}, v35"); k(f"v_mul_f32 v{17+2*i}, v{17+2*i}, v35")
        k(f"v_cvt_pk_bf16_f32 v{4+i}, v{16+2*i}, v{17+2*i}")
    k("buffer_store_dwordx4 v[4:7], v1, s[12:15], 0 offen")
    k("buffer_store_dwordx4 v[8:11], v1, s[12:15], 0 offen offset:1024")
    k.label("ln_kernel_end"); k("s_endpgm")
    return k.text(40)

def gemm_body(k, BM, BN, WM, WN, setup, pitchA, ksteps, mode):
    NW = WM * WN; TM = BM // WM // 32; TN = BN // WN // 32
    ABY = BM * 128; RB = BN * 2; BBY = 64 * RB
    STG = 1
    while STG < ABY + BBY: STG *= 2
    IA = BM // 8 // NW; IB = BN // 8 // NW
    CPR = BN // 8; RPI = 1024 // RB
    k("v_lshrrev_b32 v1, 6, v0"); k("v_and_b32 v0, 63, v0"); k("s_nop 0")
    k("v_readfirstlane_b32 s4, v1")
    setup(k)
    k(f"s_lshr_b32 s5, s4, {WN.bit_length()-1}")
    k(f"s_and_b32 s6, s4, {WN-1}")
    k("v_lshrrev_b32 v3, 3, v0"); k("s_lshl_b32 s7, s4, 3"); k("s_add_u32 s7, s7, s23")
    k("v_add_u32 v3, s7, v3"); k(f"s_mov_b32 s7, {pitchA}"); k("v_mul_lo_u32 v2, v3, s7")
    k("s_and_b32 s7, s4, 1"); k("s_lshl_b32 s7, s7, 2")
    k("v_lshrrev_b32 v3, 4, v0"); k("v_add_u32 v3, s7, v3"); k("v_and_b32 v3, 7, v3")
    k("v_and_b32 v4, 7, v0"); k("v_xor_b32 v3, v3, v4"); k("v_lshl_add_u32 v2, v3, 4, v2")
    k(f"v_lshrrev_b32 v4, {CPR.bit_length()-1}, v0"); k(f"s_mul_i32 s7, s4, {RPI}")
    k("v_add_u32 v4, s7, v4")
    k("v_mul_lo_u32 v3, v4, s20")
    if BN >= 128: k("v_and_b32 v4, 3, v4"); k("v_lshlrev_b32 v4, 2, v4")
    else: k("v_lshrrev_b32 v4, 1, v4"); k("v_and_b32 v4, 1, v4"); k("v_lshlrev_b32 v4, 2, v4")
    k(f"v_and_b32 v5, {CPR-1}, v0"); k("v_xor_b32 v4, v4, v5"); k("v_lshl_add_u32 v3, v4, 4, v3")
    k("s_lshl_b32 s7, s24, 1"); k("v_add_u32 v3, s7, v3")
    k("v_and_b32 v12, 31, v0"); k("v_lshrrev_b32 v13, 5, v0")
    k(f"s_mul_i32 s7, s5, {TM*32*128}")
    k("v_lshlrev_b32 v14, 7, v12"); k("v_add_u32 v14, s7, v14")
    k("v_lshrrev_b32 v15, 1, v0"); k("v_and_b32 v15, 7, v15")
    for kk in range(4):
        k(f"v_add_u32 v16, {2*kk}, v13"); k("v_xor_b32 v16, v16, v15"); k(f"v_lshl_add_u32 v{4+kk}, v16, 4, v14")
    k("v_lshrrev_b32 v14, 2, v0"); k("v_and_b32 v14, 3, v14")
    k("v_lshl_add_u32 v15, v13, 3, v14")
    k(f"s_mov_b32 s7, {RB}"); k("v_mul_lo_u32 v15, v15, s7")
    k("v_lshrrev_b32 v16, 4, v0"); k("v_and_b32 v16, 1, v16"); k("v_lshl_add_u32 v15, v16, 5, v15")
    k("v_and_b32 v16, 3, v0"); k("v_lshl_add_u32 v15, v16, 3, v15")
    k(f"v_add_u32 v15, {ABY}, v15")
    NB = 4 if BN >= 128 else 2
    if BN < 128: k("v_lshrrev_b32 v14, 1, v14")
    k(f"s_mul_i32 s7, s6, {TN}")
    NREG = min(TN, NB)
    for i in range(NREG):
        k(f"s_add_u32 s26, s7, {i}")
        k(f"s_and_b32 s27, s26, {NB-1}"); k(f"v_xor_b32 v16, s27, v14")
        k(f"s_andn2_b32 s26, s26, {NB-1}"); k("v_add_u32 v16, s26, v16")
        k(f"v_lshl_add_u32 v{8+i}, v16, 6, v15")
    assert TN <= NB or (TN % NB == 0)
    ACC = 128 if TM * TN > 4 else 64
    FR = 20
    nfr = (TM + TN) * 4
    for i in range(TM * TN * 16): k(f"v_mov_b32 v{ACC+i}, 0")
    k("s_mov_b32 s40, s36")
    k("s_mov_b32 s41, s37")
    k(f"s_lshl_b32 s42, s20, 6")
    k(f"s_mul_i32 s43, s20, {NW*RPI}")
    k(f"s_lshl_b32 s44, s4, 10")
    k("s_mov_b32 s45, 0")
    def dma():
        for t in range(IA):
            k(f"s_add_u32 s46, s40, {t*NW*8*pitchA}")
            k(f"s_add_u32 m0, s44, {t*NW*1024}"); k("s_nop 0")
            k("buffer_load_dwordx4 v2, s[8:11], s46 offen lds")
        k("s_mov_b32 s46, s41")
        for t in range(IB):
            k(f"s_add_u32 m0, s44, {ABY + t*NW*1024}")
            if t: k("s_add_u32 s46, s46, s43")
            else: k("s_nop 0")
            k("buffer_load_dwordx4 v3, s[12:15], s46 offen lds")
        k("s_add_u32 s40, s40, 128"); k("s_add_u32 s41, s41, s42"); k(f"s_xor_b32 s44, s44, {STG}")
    def reads(kk, buf):
        b = FR + buf * nfr
        for tn in range(TN):
            o = kk * 16 * RB + (tn // NB) * NB * 64
            k(f"ds_read_b64_tr_b16 v[{b+tn*4}:{b+tn*4+1}], v{8+tn%NB} offset:{o}")
            k(f"ds_read_b64_tr_b16 v[{b+tn*4+2}:{b+tn*4+3}], v{8+tn%NB} offset:{o+4*RB}")
        for tm in range(TM):
            k(f"ds_read_b128 v[{b+TN*4+tm*4}:{b+TN*4+tm*4+3}], v{4+kk} offset:{tm*4096}")
    def mfmas(buf):
        b = FR + buf * nfr
        for tm in range(TM):
            for tn in range(TN):
                a = ACC + (tm * TN + tn) * 16
                k(f"v_mfma_f32_32x32x16_bf16 v[{a}:{a+15}], v[{b+tn*4}:{b+tn*4+3}], v[{b+TN*4+tm*4}:{b+TN*4+tm*4+3}], v[{a}:{a+15}]")
    dma()
    lp = k.new("loop"); k.label(lp)
    k("s_waitcnt vmcnt(0)"); k("s_barrier")
    k("s_add_u32 s45, s45, 1")
    reads(0, 0)
    dma()
    nrd = 2 * TN + TM
    for kk in range(4):
        if kk < 3:
            reads(kk + 1, (kk + 1) % 2); k(f"s_waitcnt lgkmcnt({nrd})")
        else: k("s_waitcnt lgkmcnt(0)")
        mfmas(kk % 2)
    for i in range(4 + NREG): k(f"v_xor_b32 v{4+i}, {STG}, v{4+i}")
    k(f"s_cmp_lt_u32 s45, {ksteps}"); k(f"s_cbranch_scc1 {lp}")
    k("s_waitcnt vmcnt(0)")
    k(f"s_mul_i32 s7, s5, {TM*32}"); k("s_add_u32 s7, s7, s23")
    k("v_add_u32 v14, s7, v12")
    k("v_mul_lo_u32 v15, v14, s21")
    k(f"s_mul_i32 s7, s6, {TN*32}"); k("s_add_u32 s7, s7, s25")
    esz = 2 if mode == 'f32' else 1
    k(f"s_lshl_b32 s7, s7, {esz}")
    k("v_add_u32 v15, s7, v15"); k("v_lshl_add_u32 v16, v13, 4, v15")
    k("v_lshl_add_u32 v17, v13, 3, v15")
    k("v_lshlrev_b32 v18, 1, v17")
    k("s_lshl_b32 s47, s21, 5")
    k("s_nop 7"); k("s_nop 7")
    for tm in range(TM):
        if tm:
            k("v_add_u32 v16, s47, v16"); k("v_add_u32 v17, s47, v17"); k("v_lshlrev_b32 v18, 1, v17")
        if mode == 'f32':
            for tn in range(TN):
                a = ACC + (tm * TN + tn) * 16
                for q in range(4):
                    k(f"buffer_store_dwordx4 v[{a+4*q}:{a+4*q+3}], v16, s[16:19], 0 offen offset:{tn*128+q*32}")
            continue
        for tn in range(TN):
            a = ACC + (tm * TN + tn) * 16
            if mode == 'final':
                X, P0, P1 = FR, FR + 8, FR + 24
                for q in range(4):
                    k(f"buffer_load_dwordx2 v[{X+2*q}:{X+2*q+1}], v17, s[32:35], 0 offen offset:{tn*64+q*16}")
                    k(f"buffer_load_dwordx4 v[{P0+4*q}:{P0+4*q+3}], v18, s[28:31], 0 offen offset:{tn*128+q*32}")
                    k(f"buffer_load_dwordx4 v[{P1+4*q}:{P1+4*q+3}], v18, s[28:31], s39 offen offset:{tn*128+q*32}")
                k("s_waitcnt vmcnt(0)")
                for j in range(16):
                    k(f"v_add_f32 v{P0+j}, v{P0+j}, v{P1+j}")
                for j in range(8):
                    k(f"v_lshlrev_b32 v{P1+2*j}, 16, v{X+j}"); k(f"v_and_b32 v{P1+2*j+1}, 0xffff0000, v{X+j}")
                for j in range(16):
                    k(f"v_add_f32 v{a+j}, v{a+j}, v{P1+j}"); k(f"v_add_f32 v{a+j}, v{a+j}, v{P0+j}")
            else:
                for j in range(16):
                    k(f"v_max_f32 v{a+j}, s22, v{a+j}"); k(f"v_mul_f32 v{a+j}, s38, v{a+j}")
            for j in range(8): k(f"v_cvt_pk_bf16_f32 v{a+j}, v{a+2*j}, v{a+2*j+1}")
            k("s_nop 1")
            for qq in range(2):
                b = a + 4 * qq
                k(f"v_permlane32_swap_b32 v{b}, v{b+2}"); k(f"v_permlane32_swap_b32 v{b+1}, v{b+3}")
            for qq in range(2):
                b = a + 4 * qq
                k(f"buffer_store_dwordx4 v[{b}:{b+3}], v16, s[16:19], 0 offen offset:{tn*64+qq*32}")
    return max(ACC + TM * TN * 16, FR + 40), STG * 2

def simple_kernel(name, nwg, fn):
    k = K(name)
    load_args(k)
    k(f"s_cmp_ge_u32 s2, {nwg}"); k(f"s_cbranch_scc1 {name}_end")
    k("s_waitcnt lgkmcnt(0)")
    nv, lds = fn(k)
    k.label(f"{name}_end"); k("s_endpgm")
    return k.text(nv), lds

def setup_g1(BM, BN):
    nq = 3072 // BN; nt = 6656 // BN
    def f(k):
        nm = 2048 // BM
        k(f"s_and_b32 s23, s2, {nm-1}"); k(f"s_lshl_b32 s23, s23, {BM.bit_length()-1}")
        k(f"s_lshr_b32 s24, s2, {nm.bit_length()-1}"); k(f"s_mul_i32 s24, s24, {BN}")
        k.srd(8, 80, 2048 * 2048, XN_OFF)
        k("s_mov_b32 s36, 0"); k("s_mov_b32 s37, 0"); k("s_mov_b32 s38, 1.0")
        l1, l2 = k.new("ffn"), k.new("j")
        k("s_cmp_ge_u32 s24, 3072"); k(f"s_cbranch_scc1 {l1}")
        k.srd(12, 66, 1024 * 6144); k.srd(16, 80, 2048 * QKVP, QKV_OFF)
        k("s_mov_b32 s20, 6144"); k(f"s_mov_b32 s21, {QKVP}"); k("s_mov_b32 s22, 0xff800000"); k("s_mov_b32 s25, s24")
        k("s_cmp_lt_u32 s24, 1024"); k("s_cselect_b32 s38, 0x3e8293ee, s38")
        k(f"s_branch {l2}")
        k.label(l1)
        k.srd(12, 72, 1024 * 7168); k.srd(16, 80, 2048 * CATP, CAT_OFF)
        k("s_mov_b32 s20, 7168"); k(f"s_mov_b32 s21, {CATP}"); k("s_mov_b32 s22, 0")
        k("s_sub_u32 s24, s24, 3072"); k("s_add_u32 s25, s24, 1024")
        k.label(l2)
    return f

PART_OFF = 0x2400000
def setup_ffn2(k):
    k("s_and_b32 s24, s2, 7"); k("s_lshl_b32 s24, s24, 7")
    k("s_lshr_b32 s23, s2, 3"); k("s_and_b32 s23, s23, 15"); k("s_lshl_b32 s23, s23, 7")
    k("s_lshr_b32 s7, s2, 7")
    k.srd(8, 80, 2048 * CATP, CAT_OFF); k.srd(12, 74, 3584 * 2048)
    k.srd(16, 80, 2 * 2048 * 4096, PART_OFF)
    k("s_mul_i32 s36, s7, 3584"); k("s_add_u32 s36, s36, 2048")
    k(f"s_mul_i32 s37, s7, {1792*2048}")
    k("s_mov_b32 s20, 2048"); k("s_mov_b32 s21, 4096")
    k(f"s_mul_i32 s25, s7, {2048*1024}"); k("s_add_u32 s25, s25, s24")

def setup_final(BM, BN):
    def f(k):
        nn = 1024 // BN
        k(f"s_and_b32 s24, s2, {nn-1}"); k(f"s_mul_i32 s24, s24, {BN}")
        k(f"s_lshr_b32 s23, s2, {nn.bit_length()-1}"); k(f"s_lshl_b32 s23, s23, {BM.bit_length()-1}")
        k.srd(8, 80, 2048 * CATP, CAT_OFF)
        k.srd(12, 68, 1024 * 2048); k.srd(28, 80, 2 * 2048 * 4096, PART_OFF)
        k.srd(16, 76, 2048 * 2048); k.srd(32, 64, 2048 * 2048)
        k("s_mov_b32 s20, 2048"); k("s_mov_b32 s21, 2048"); k("s_mov_b32 s25, s24")
        k("s_mov_b32 s36, 0"); k("s_mov_b32 s37, 0"); k(f"s_mov_b32 s39, {2048*4096}")
    return f

def attn_body(k, wgid="s2"):
    Q, ONE, KF, VF, S, P, O, Lr, MB = 24, 20, 32, 48, 64, 128, 160, 176, 192
    k("v_lshrrev_b32 v1, 6, v0"); k("v_and_b32 v0, 63, v0"); k("s_nop 0")
    k("v_readfirstlane_b32 s4, v1")
    k(f"s_and_b32 s5, {wgid}, 31"); k(f"s_lshr_b32 s6, {wgid}, 5")
    k.srd(8, 80, 2048 * QKVP, QKV_OFF); k.srd(16, 80, 2048 * CATP, CAT_OFF)
    k("v_and_b32 v12, 31, v0"); k("v_lshrrev_b32 v13, 5, v0")
    k("s_lshl_b32 s7, s6, 7"); k("s_lshl_b32 s20, s4, 5"); k("s_add_u32 s7, s7, s20")
    k("v_add_u32 v14, s7, v12")
    k(f"s_mov_b32 s21, {QKVP}"); k("v_mul_lo_u32 v15, v14, s21")
    k("s_lshl_b32 s22, s5, 6"); k("v_add_u32 v15, s22, v15"); k("v_lshl_add_u32 v15, v13, 4, v15")
    k(f"buffer_load_dwordx4 v[{Q}:{Q+3}], v15, s[8:11], 0 offen")
    k(f"buffer_load_dwordx4 v[{Q+4}:{Q+7}], v15, s[8:11], 0 offen offset:32")
    k("v_lshrrev_b32 v4, 2, v0"); k("s_lshl_b32 s7, s4, 4"); k("v_add_u32 v4, s7, v4")
    k("v_mul_lo_u32 v4, v4, s21"); k("v_add_u32 v4, s22, v4")
    k("v_and_b32 v5, 3, v0"); k("v_lshrrev_b32 v6, 4, v0"); k("v_xor_b32 v6, v6, v5")
    k("v_lshl_add_u32 v2, v6, 4, v4"); k("v_add_u32 v2, 2048, v2")
    k("v_lshl_add_u32 v3, v5, 4, v4"); k("v_add_u32 v3, 4096, v3")
    k("v_lshrrev_b32 v7, 2, v0"); k("v_and_b32 v7, 3, v7")
    for kk in range(2):
        k(f"v_add_u32 v8, {2*kk}, v13"); k("v_xor_b32 v8, v8, v7"); k("v_lshlrev_b32 v8, 4, v8")
        k(f"v_lshl_add_u32 v{4+kk}, v12, 6, v8")
    k("v_lshl_add_u32 v8, v13, 2, v7"); k("v_lshlrev_b32 v8, 6, v8")
    k("v_lshrrev_b32 v9, 4, v0"); k("v_and_b32 v9, 1, v9"); k("v_lshl_add_u32 v8, v9, 5, v8")
    k("v_and_b32 v9, 3, v0"); k("v_lshl_add_u32 v8, v9, 3, v8"); k("v_add_u32 v6, 8192, v8")
    for i in range(4): k(f"v_mov_b32 v{ONE+i}, 0x3f803f80")
    for i in range(32): k(f"v_mov_b32 v{O+i}, 0")
    k("v_mov_b32 v10, 0")
    k("s_mov_b32 s40, 0"); k("s_mov_b32 s41, 0"); k("s_lshl_b32 s44, s4, 10"); k("s_mov_b32 s45, 0")
    k("s_mov_b32 s30, 0x3e8293ee")
    k("s_mov_b64 s[34:35], 0")
    BLK = 64 * QKVP
    def dmaK(par):
        k(f"s_add_u32 m0, s44, {par*4096}"); k("s_nop 0")
        k("buffer_load_dwordx4 v2, s[8:11], s40 offen lds"); k(f"s_add_u32 s40, s40, {BLK}")
    def dmaV(par):
        k(f"s_add_u32 m0, s44, {8192+par*4096}"); k("s_nop 0")
        k("buffer_load_dwordx4 v3, s[8:11], s41 offen lds"); k(f"s_add_u32 s41, s41, {BLK}")
    def readK(par):
        for kt in range(2):
            for kk in range(2):
                b = KF + (kt * 2 + kk) * 4
                k(f"ds_read_b128 v[{b}:{b+3}], v{4+kk} offset:{par*4096+kt*2048}")
    def readV(par):
        for b in range(4):
            r = VF + b * 4
            k(f"ds_read_b64_tr_b16 v[{r}:{r+1}], v6 offset:{par*4096+b*1024}")
            k(f"ds_read_b64_tr_b16 v[{r+2}:{r+3}], v6 offset:{par*4096+b*1024+512}")
    def mfA(par, first=False):
        r = []
        for kt in range(2):
            b = KF + kt * 8; s = S + par * 32 + kt * 16
            c = "0" if first else f"v[{MB}:{MB+15}]"
            r.append(f"v_mfma_f32_32x32x16_bf16 v[{s}:{s+15}], v[{b}:{b+3}], v[{Q}:{Q+3}], {c}")
            r.append(f"v_mfma_f32_32x32x16_bf16 v[{s}:{s+15}], v[{b+4}:{b+7}], v[{Q+4}:{Q+7}], v[{s}:{s+15}]")
        return r
    def mfC(par):
        r = []
        for b in range(4):
            p = P + par * 16 + b * 4
            r.append(f"v_mfma_f32_32x32x16_bf16 v[{O}:{O+15}], v[{VF+b*4}:{VF+b*4+3}], v[{p}:{p+3}], v[{O}:{O+15}]")
            r.append(f"v_mfma_f32_32x32x16_bf16 v[{Lr}:{Lr+15}], v[{ONE}:{ONE+3}], v[{p}:{p+3}], v[{Lr}:{Lr+15}]")
        return r
    def maxB(par, first):
        s = S + par * 32
        k(f"v_max3_f32 v11, v{s}, v{s+1}, v{s+2}")
        k(f"v_max3_f32 v9, v{s+15}, v{s+16}, v{s+17}")
        for i in range(6):
            k(f"v_max3_f32 v11, v11, v{s+3+2*i}, v{s+4+2*i}")
            k(f"v_max3_f32 v9, v9, v{s+18+2*i}, v{s+19+2*i}")
        k(f"v_max3_f32 v9, v9, v{s+30}, v{s+31}")
        k("v_max_f32 v11, v11, v9"); k("v_mov_b32 v9, v11"); k("s_nop 1"); k("v_permlane32_swap_b32 v11, v9")
        k("v_max_f32 v11, v11, v9")
        sk = k.new("nochg")
        if not first:
            k("v_cmp_lt_f32 s[34:35], 0, v11")
            k("v_max_f32 v11, 0, v11")
            k("s_cmp_eq_u64 s[34:35], 0"); k(f"s_cbranch_scc1 {sk}")
        for i in range(32): k(f"v_sub_f32 v{s+i}, v{s+i}, v11")
        k("v_add_f32 v10, v10, v11"); k("v_exp_f32 v17, -v11")
        for i in range(16): k(f"v_sub_f32 v{MB+i}, 0, v10")
        k.label(sk)
    def valuB(par):
        s = S + par * 32; p = P + par * 16; r = []
        for g in range(5):
            if g < 4:
                for i in range(8): r.append(f"v_exp_f32 v{s+8*g+i}, v{s+8*g+i}")
            if g > 0:
                for i in range(4): r.append(f"v_cvt_pk_bf16_f32 v{p+4*(g-1)+i}, v{s+8*(g-1)+2*i}, v{s+8*(g-1)+2*i+1}")
        return r
    def rescale():
        sk = k.new("skip")
        k("s_cmp_eq_u64 s[34:35], 0"); k(f"s_cbranch_scc1 {sk}")
        for i in range(17): k(f"v_mul_f32 v{O+i}, v{O+i}, v17")
        k.label(sk)
    def body(par, doA, doB, doC, first=False):
        k("s_waitcnt vmcnt(0)"); k("s_barrier")
        if doA: readK(1 - par)
        if doC: readV(1 - par)
        if doA: dmaK(par)
        if doB: dmaV(par)
        if doC: rescale()
        mf = []
        if doA: mf += [("s_waitcnt lgkmcnt(%d)" % (8 if doC else 0), m) if i == 0 else (None, m) for i, m in enumerate(mfA(1 - par))]
        if doC: mf += [("s_waitcnt lgkmcnt(0)", m) if i == 0 else (None, m) for i, m in enumerate(mfC(1 - par))]
        if doB: maxB(par, first)
        va = valuB(par) if doB else []
        step = max(1, (len(va) - 6) // max(1, len(mf)))
        pos = 2
        for i, v in enumerate(va):
            if mf and i == pos:
                w, m = mf.pop(0)
                if w: k(w)
                k(m); pos += step
            k(v)
        for w, m in mf:
            if w: k(w)
            k(m)
    dmaK(0); dmaK(1)
    k("s_waitcnt vmcnt(0)"); k("s_barrier")
    readK(0); k("s_waitcnt lgkmcnt(0)")
    for m in mfA(0, True): k(m)
    k("s_nop 7"); k("s_nop 3")
    body(0, True, True, False, True)
    lp = k.new("loop"); k.label(lp)
    body(1, True, True, True)
    body(0, True, True, True)
    k("s_add_u32 s45, s45, 1"); k("s_cmp_lt_u32 s45, 15"); k(f"s_cbranch_scc1 {lp}")
    body(1, False, True, True)
    body(0, False, False, True)
    k("s_waitcnt vmcnt(0)")
    k(f"s_mov_b32 s21, {CATP}"); k("v_mul_lo_u32 v15, v14, s21"); k("v_add_u32 v15, s22, v15")
    k("v_lshl_add_u32 v15, v13, 4, v15")
    k("s_nop 7"); k("s_nop 7")
    k(f"v_rcp_f32 v9, v{Lr}"); k("s_nop 0")
    for i in range(16): k(f"v_mul_f32 v{O+i}, v{O+i}, v9")
    for j in range(8): k(f"v_cvt_pk_bf16_f32 v{O+j}, v{O+2*j}, v{O+2*j+1}")
    k("s_nop 1")
    for qq in range(2):
        b = O + 4 * qq
        k(f"v_permlane32_swap_b32 v{b}, v{b+2}"); k(f"v_permlane32_swap_b32 v{b+1}, v{b+3}")
    for qq in range(2):
        k(f"buffer_store_dwordx4 v[{O+4*qq}:{O+4*qq+3}], v15, s[16:19], 0 offen offset:{qq*32}")
    return 208

def mid_kernel():
    k = K("mid_kernel")
    load_args(k)
    k("s_cmp_ge_u32 s2, 768"); k("s_cbranch_scc1 mid_kernel_end")
    k("s_waitcnt lgkmcnt(0)")
    k("s_cmp_ge_u32 s2, 256"); k("s_cbranch_scc1 mid_kernel_attn")
    nv, lds = gemm_body(k, 128, 128, 2, 2, setup_ffn2, CATP, 28, 'f32')
    k("s_endpgm")
    k.label("mid_kernel_attn")
    k("s_sub_u32 s3, s2, 256")
    nv2 = attn_body(k, "s3")
    k.label("mid_kernel_end"); k("s_endpgm")
    return k.text(max(nv, nv2)), max(lds, 16384)

def main():
    out = sys.argv[1] if len(sys.argv) > 1 else f"cdna_kernels/{NAME}.s"
    hdr = [l for l in open(f"cdna_kernels/{NAME}.s.ref").read().split("\n") if l.startswith(";") and "@launch" not in l]
    g1, lds1 = simple_kernel("gemm1_kernel", 208, lambda k: gemm_body(k, 256, 256, 4, 2, setup_g1(256, 256), 2048, 16, 'bf16'))
    md, ldsm = mid_kernel()
    g2, lds2 = simple_kernel("final_kernel", 256, lambda k: gemm_body(k, 128, 64, 2, 2, setup_final(128, 64), CATP, 16, 'final'))
    hdr += ["; @launch kernel=ln_kernel grid=(512,1,1) block=(256,1,1) lds=0",
            f"; @launch kernel=gemm1_kernel grid=(208,1,1) block=(512,1,1) lds={lds1}",
            f"; @launch kernel=mid_kernel grid=(768,1,1) block=(256,1,1) lds={ldsm}",
            f"; @launch kernel=final_kernel grid=(256,1,1) block=(256,1,1) lds={lds2}"]
    txt = "\n".join(hdr) + "\n.amdgcn_target \"amdgcn-amd-amdhsa--gfx950\"\n" + ln_kernel() + g1 + md + g2
    open(out, "w").write(txt)
main()
```

```python
import sys
NAME = "parallel_sum__mha_block__dense_activation_relu__prompt"
XN_OFF, QKV_OFF, CAT_OFF = 0, 0x400000, 0x1000000
WS_BYTES = 268435456
CATP = 4608 * 2
QKVP = 3072 * 2

class K:
    def __init__(s, name): s.name = name; s.L = []; s.uid = 0
    def __call__(s, t=""):
        import os
        X = os.environ.get("XP", "")
        if s.name == "mid_kernel":
            if "e" in X and t.startswith("v_exp_f32"): t = t.replace("v_exp_f32", "v_mov_b32")
            if "m" in X and t.startswith("v_mfma"): return
            if "b" in X and t.startswith("s_barrier"): return
            if "d" in X and t.startswith("buffer_load") and t.endswith("lds"): return
            if "v" in X and (t.startswith("v_fma") or t.startswith("v_exp") or t.startswith("v_cvt") or t.startswith("v_max3")): return
            if "l" in X and t.startswith("ds_read"): return
        s.L.append("    " + t)
    def label(s, l): s.L.append(l + ":")
    def new(s, p): s.uid += 1; return f"{s.name}_{p}{s.uid}"
    def srd(s, d, lo, nbytes, add=0):
        if add:
            s(f"s_add_u32 s{d}, s{lo}, 0x{add:x}"); s(f"s_addc_u32 s{d+1}, s{lo+1}, 0")
        else:
            s(f"s_mov_b32 s{d}, s{lo}"); s(f"s_mov_b32 s{d+1}, s{lo+1}")
        s(f"s_and_b32 s{d+1}, s{d+1}, 0xffff")
        s(f"s_mov_b32 s{d+2}, 0x{nbytes:x}"); s(f"s_mov_b32 s{d+3}, 0x00020000")
    def text(s, vgpr, agpr=0, sgpr=100):
        acc = (vgpr + 3) // 4 * 4
        nf = vgpr if agpr == 0 else acc + agpr
        h = [".text", f".globl {s.name}", ".p2align 8", f".type {s.name},@function", f"{s.name}:"]
        d = [".section .rodata,\"a\"", ".p2align 6", f".amdhsa_kernel {s.name}",
             f"  .amdhsa_next_free_vgpr {nf}", f"  .amdhsa_next_free_sgpr {sgpr}",
             f"  .amdhsa_accum_offset {acc}", "  .amdhsa_group_segment_fixed_size 0",
             "  .amdhsa_kernarg_size 72", "  .amdhsa_user_sgpr_count 2",
             "  .amdhsa_user_sgpr_kernarg_segment_ptr 1", "  .amdhsa_system_sgpr_workgroup_id_x 1",
             ".end_amdhsa_kernel"]
        return "\n".join(h + s.L + d) + "\n"

def load_args(k):
    k("s_load_dwordx16 s[64:79], s[0:1], 0")
    k("s_load_dwordx2 s[80:81], s[0:1], 64")

def wave_sum(k, v, t, sa, sb):
    for o in (0x041F, 0x081F, 0x101F, 0x201F, 0x401F):
        k(f"ds_swizzle_b32 v{t}, v{v} offset:0x{o:x}"); k("s_waitcnt lgkmcnt(0)")
        k(f"v_add_f32 v{v}, v{v}, v{t}")
    k("s_nop 0")
    k(f"v_readlane_b32 s{sa}, v{v}, 0"); k(f"v_readlane_b32 s{sb}, v{v}, 32"); k("s_nop 1")
    k(f"v_mov_b32 v{v}, s{sa}"); k(f"v_add_f32 v{v}, s{sb}, v{v}")

def rbf(k, v, t):
    k(f"v_cvt_pk_bf16_f32 v{t}, v{v}, v{v}"); k(f"v_lshlrev_b32 v{v}, 16, v{t}")

def ln_kernel():
    k = K("ln_kernel")
    load_args(k)
    k("s_cmp_ge_u32 s2, 512"); k(f"s_cbranch_scc1 ln_kernel_end")
    k("v_lshrrev_b32 v1, 6, v0")
    k("v_and_b32 v2, 63, v0")
    k("s_lshl_b32 s3, s2, 2")
    k("v_add_u32 v1, s3, v1")
    k("v_lshlrev_b32 v1, 11, v1")
    k("v_lshl_add_u32 v1, v2, 4, v1")
    k("s_waitcnt lgkmcnt(0)")
    k.srd(8, 64, 2048 * 2048)
    k.srd(12, 80, 2048 * 2048, XN_OFF)
    k("buffer_load_dwordx4 v[4:7], v1, s[8:11], 0 offen")
    k("buffer_load_dwordx4 v[8:11], v1, s[8:11], 0 offen offset:1024")
    k("s_waitcnt vmcnt(0)")
    for i in range(8):
        k(f"v_lshlrev_b32 v{16+2*i}, 16, v{4+i}"); k(f"v_and_b32 v{17+2*i}, 0xffff0000, v{4+i}")
    k("v_add_f32 v32, v16, v17")
    for i in range(2, 16): k(f"v_add_f32 v32, v32, v{16+i}")
    wave_sum(k, 32, 33, 20, 21)
    k("v_mul_f32 v32, 0x3a800000, v32")
    k("v_sub_f32 v34, v16, v32"); k("v_mul_f32 v35, v34, v34")
    for i in range(1, 16):
        k(f"v_sub_f32 v34, v{16+i}, v32"); k("v_fmac_f32 v35, v34, v34")
    wave_sum(k, 35, 33, 20, 21)
    k("v_mul_f32 v35, 0x3a800000, v35")
    rbf(k, 35, 33); rbf(k, 32, 33)
    k("v_add_f32 v35, 0x3727c5ac, v35"); rbf(k, 35, 33)
    k("v_sqrt_f32 v35, v35"); k("s_nop 0"); rbf(k, 35, 33)
    k("v_rcp_f32 v35, v35"); k("s_nop 0")
    for i in range(16):
        k(f"v_sub_f32 v{16+i}, v{16+i}, v32")
    for i in range(8):
        k(f"v_cvt_pk_bf16_f32 v33, v{16+2*i}, v{17+2*i}")
        k(f"v_lshlrev_b32 v{16+2*i}, 16, v33"); k(f"v_and_b32 v{17+2*i}, 0xffff0000, v33")
        k(f"v_mul_f32 v{16+2*i}, v{16+2*i}, v35"); k(f"v_mul_f32 v{17+2*i}, v{17+2*i}, v35")
        k(f"v_cvt_pk_bf16_f32 v{4+i}, v{16+2*i}, v{17+2*i}")
    k("buffer_store_dwordx4 v[4:7], v1, s[12:15], 0 offen")
    k("buffer_store_dwordx4 v[8:11], v1, s[12:15], 0 offen offset:1024")
    k.label("ln_kernel_end"); k("s_endpgm")
    return k.text(40)

def gemm_body(k, BM, BN, WM, WN, setup, pitchA, ksteps, mode):
    NW = WM * WN; TM = BM // WM // 32; TN = BN // WN // 32
    ABY = BM * 128; RB = BN * 2; BBY = 64 * RB
    STG = 1
    while STG < ABY + BBY: STG *= 2
    IA = BM // 8 // NW; IB = BN // 8 // NW
    CPR = BN // 8; RPI = 1024 // RB
    k("v_lshrrev_b32 v1, 6, v0"); k("v_and_b32 v0, 63, v0"); k("s_nop 0")
    k("v_readfirstlane_b32 s4, v1")
    setup(k)
    k(f"s_lshr_b32 s5, s4, {WN.bit_length()-1}")
    k(f"s_and_b32 s6, s4, {WN-1}")
    k("v_lshrrev_b32 v3, 3, v0"); k("s_lshl_b32 s7, s4, 3"); k("s_add_u32 s7, s7, s23")
    k("v_add_u32 v3, s7, v3"); k(f"s_mov_b32 s7, {pitchA}"); k("v_mul_lo_u32 v2, v3, s7")
    k("s_and_b32 s7, s4, 1"); k("s_lshl_b32 s7, s7, 2")
    k("v_lshrrev_b32 v3, 4, v0"); k("v_add_u32 v3, s7, v3"); k("v_and_b32 v3, 7, v3")
    k("v_and_b32 v4, 7, v0"); k("v_xor_b32 v3, v3, v4"); k("v_lshl_add_u32 v2, v3, 4, v2")
    k(f"v_lshrrev_b32 v4, {CPR.bit_length()-1}, v0"); k(f"s_mul_i32 s7, s4, {RPI}")
    k("v_add_u32 v4, s7, v4")
    k("v_mul_lo_u32 v3, v4, s20")
    if BN >= 128: k("v_and_b32 v4, 3, v4"); k("v_lshlrev_b32 v4, 2, v4")
    else: k("v_lshrrev_b32 v4, 1, v4"); k("v_and_b32 v4, 1, v4"); k("v_lshlrev_b32 v4, 2, v4")
    k(f"v_and_b32 v5, {CPR-1}, v0"); k("v_xor_b32 v4, v4, v5"); k("v_lshl_add_u32 v3, v4, 4, v3")
    k("s_lshl_b32 s7, s24, 1"); k("v_add_u32 v3, s7, v3")
    k("v_and_b32 v12, 31, v0"); k("v_lshrrev_b32 v13, 5, v0")
    k(f"s_mul_i32 s7, s5, {TM*32*128}")
    k("v_lshlrev_b32 v14, 7, v12"); k("v_add_u32 v14, s7, v14")
    k("v_lshrrev_b32 v15, 1, v0"); k("v_and_b32 v15, 7, v15")
    for kk in range(4):
        k(f"v_add_u32 v16, {2*kk}, v13"); k("v_xor_b32 v16, v16, v15"); k(f"v_lshl_add_u32 v{4+kk}, v16, 4, v14")
    k("v_lshrrev_b32 v14, 2, v0"); k("v_and_b32 v14, 3, v14")
    k("v_lshl_add_u32 v15, v13, 3, v14")
    k(f"s_mov_b32 s7, {RB}"); k("v_mul_lo_u32 v15, v15, s7")
    k("v_lshrrev_b32 v16, 4, v0"); k("v_and_b32 v16, 1, v16"); k("v_lshl_add_u32 v15, v16, 5, v15")
    k("v_and_b32 v16, 3, v0"); k("v_lshl_add_u32 v15, v16, 3, v15")
    k(f"v_add_u32 v15, {ABY}, v15")
    NB = 4 if BN >= 128 else 2
    if BN < 128: k("v_lshrrev_b32 v14, 1, v14")
    k(f"s_mul_i32 s7, s6, {TN}")
    NREG = min(TN, NB)
    for i in range(NREG):
        k(f"s_add_u32 s26, s7, {i}")
        k(f"s_and_b32 s27, s26, {NB-1}"); k(f"v_xor_b32 v16, s27, v14")
        k(f"s_andn2_b32 s26, s26, {NB-1}"); k("v_add_u32 v16, s26, v16")
        k(f"v_lshl_add_u32 v{8+i}, v16, 6, v15")
    assert TN <= NB or (TN % NB == 0)
    ACC = 128 if TM * TN > 4 else 64
    FR = 20
    nfr = (TM + TN) * 4
    for i in range(TM * TN * 16): k(f"v_mov_b32 v{ACC+i}, 0")
    k("s_mov_b32 s40, s36")
    k("s_mov_b32 s41, s37")
    k(f"s_lshl_b32 s42, s20, 6")
    k(f"s_mul_i32 s43, s20, {NW*RPI}")
    k(f"s_lshl_b32 s44, s4, 10")
    k("s_mov_b32 s45, 0")
    def dma():
        for t in range(IA):
            k(f"s_add_u32 s46, s40, {t*NW*8*pitchA}")
            k(f"s_add_u32 m0, s44, {t*NW*1024}"); k("s_nop 0")
            k("buffer_load_dwordx4 v2, s[8:11], s46 offen lds")
        k("s_mov_b32 s46, s41")
        for t in range(IB):
            k(f"s_add_u32 m0, s44, {ABY + t*NW*1024}")
            if t: k("s_add_u32 s46, s46, s43")
            else: k("s_nop 0")
            k("buffer_load_dwordx4 v3, s[12:15], s46 offen lds")
        k("s_add_u32 s40, s40, 128"); k("s_add_u32 s41, s41, s42"); k(f"s_xor_b32 s44, s44, {STG}")
    def reads(kk, buf):
        b = FR + buf * nfr
        for tn in range(TN):
            o = kk * 16 * RB + (tn // NB) * NB * 64
            k(f"ds_read_b64_tr_b16 v[{b+tn*4}:{b+tn*4+1}], v{8+tn%NB} offset:{o}")
            k(f"ds_read_b64_tr_b16 v[{b+tn*4+2}:{b+tn*4+3}], v{8+tn%NB} offset:{o+4*RB}")
        for tm in range(TM):
            k(f"ds_read_b128 v[{b+TN*4+tm*4}:{b+TN*4+tm*4+3}], v{4+kk} offset:{tm*4096}")
    def mfmas(buf):
        b = FR + buf * nfr
        for tm in range(TM):
            for tn in range(TN):
                a = ACC + (tm * TN + tn) * 16
                k(f"v_mfma_f32_32x32x16_bf16 v[{a}:{a+15}], v[{b+tn*4}:{b+tn*4+3}], v[{b+TN*4+tm*4}:{b+TN*4+tm*4+3}], v[{a}:{a+15}]")
    dma()
    lp = k.new("loop"); k.label(lp)
    k("s_waitcnt vmcnt(0)"); k("s_barrier")
    k("s_add_u32 s45, s45, 1")
    reads(0, 0)
    dma()
    nrd = 2 * TN + TM
    for kk in range(4):
        if kk < 3:
            reads(kk + 1, (kk + 1) % 2); k(f"s_waitcnt lgkmcnt({nrd})")
        else: k("s_waitcnt lgkmcnt(0)")
        mfmas(kk % 2)
    for i in range(4 + NREG): k(f"v_xor_b32 v{4+i}, {STG}, v{4+i}")
    k(f"s_cmp_lt_u32 s45, {ksteps}"); k(f"s_cbranch_scc1 {lp}")
    k("s_waitcnt vmcnt(0)")
    k(f"s_mul_i32 s7, s5, {TM*32}"); k("s_add_u32 s7, s7, s23")
    k("v_add_u32 v14, s7, v12")
    k("v_mul_lo_u32 v15, v14, s21")
    k(f"s_mul_i32 s7, s6, {TN*32}"); k("s_add_u32 s7, s7, s25")
    esz = 2 if mode == 'f32' else 1
    k(f"s_lshl_b32 s7, s7, {esz}")
    k("v_add_u32 v15, s7, v15"); k("v_lshl_add_u32 v16, v13, 4, v15")
    k("v_lshl_add_u32 v17, v13, 3, v15")
    k("v_lshlrev_b32 v18, 1, v17")
    k("s_lshl_b32 s47, s21, 5")
    k("s_nop 7"); k("s_nop 7")
    for tm in range(TM):
        if tm:
            k("v_add_u32 v16, s47, v16"); k("v_add_u32 v17, s47, v17"); k("v_lshlrev_b32 v18, 1, v17")
        if mode == 'f32':
            for tn in range(TN):
                a = ACC + (tm * TN + tn) * 16
                for q in range(4):
                    k(f"buffer_store_dwordx4 v[{a+4*q}:{a+4*q+3}], v16, s[16:19], 0 offen offset:{tn*128+q*32}")
            continue
        for tn in range(TN):
            a = ACC + (tm * TN + tn) * 16
            if mode == 'final':
                X, P0, P1 = FR, FR + 8, FR + 24
                for q in range(4):
                    k(f"buffer_load_dwordx2 v[{X+2*q}:{X+2*q+1}], v17, s[32:35], 0 offen offset:{tn*64+q*16}")
                    k(f"buffer_load_dwordx4 v[{P0+4*q}:{P0+4*q+3}], v18, s[28:31], 0 offen offset:{tn*128+q*32}")
                    k(f"buffer_load_dwordx4 v[{P1+4*q}:{P1+4*q+3}], v18, s[28:31], s39 offen offset:{tn*128+q*32}")
                k("s_waitcnt vmcnt(0)")
                for j in range(16):
                    k(f"v_add_f32 v{P0+j}, v{P0+j}, v{P1+j}")
                for j in range(8):
                    k(f"v_lshlrev_b32 v{P1+2*j}, 16, v{X+j}"); k(f"v_and_b32 v{P1+2*j+1}, 0xffff0000, v{X+j}")
                for j in range(16):
                    k(f"v_add_f32 v{a+j}, v{a+j}, v{P1+j}"); k(f"v_add_f32 v{a+j}, v{a+j}, v{P0+j}")
            else:
                for j in range(16):
                    k(f"v_max_f32 v{a+j}, s22, v{a+j}"); k(f"v_mul_f32 v{a+j}, s38, v{a+j}")
            for j in range(8): k(f"v_cvt_pk_bf16_f32 v{a+j}, v{a+2*j}, v{a+2*j+1}")
            k("s_nop 1")
            for qq in range(2):
                b = a + 4 * qq
                k(f"v_permlane32_swap_b32 v{b}, v{b+2}"); k(f"v_permlane32_swap_b32 v{b+1}, v{b+3}")
            for qq in range(2):
                b = a + 4 * qq
                k(f"buffer_store_dwordx4 v[{b}:{b+3}], v16, s[16:19], 0 offen offset:{tn*64+qq*32}")
    return max(ACC + TM * TN * 16, FR + 40), STG * 2

def simple_kernel(name, nwg, fn):
    k = K(name)
    load_args(k)
    k(f"s_cmp_ge_u32 s2, {nwg}"); k(f"s_cbranch_scc1 {name}_end")
    k("s_waitcnt lgkmcnt(0)")
    nv, lds = fn(k)
    k.label(f"{name}_end"); k("s_endpgm")
    return k.text(nv), lds

def setup_g1(BM, BN):
    nq = 3072 // BN; nt = 6656 // BN
    def f(k):
        nm = 2048 // BM
        k(f"s_and_b32 s23, s2, {nm-1}"); k(f"s_lshl_b32 s23, s23, {BM.bit_length()-1}")
        k(f"s_lshr_b32 s24, s2, {nm.bit_length()-1}"); k(f"s_mul_i32 s24, s24, {BN}")
        k.srd(8, 80, 2048 * 2048, XN_OFF)
        k("s_mov_b32 s36, 0"); k("s_mov_b32 s37, 0"); k("s_mov_b32 s38, 1.0")
        l1, l2 = k.new("ffn"), k.new("j")
        k("s_cmp_ge_u32 s24, 3072"); k(f"s_cbranch_scc1 {l1}")
        k.srd(12, 66, 1024 * 6144); k.srd(16, 80, 2048 * QKVP, QKV_OFF)
        k("s_mov_b32 s20, 6144"); k(f"s_mov_b32 s21, {QKVP}"); k("s_mov_b32 s22, 0xff800000"); k("s_mov_b32 s25, s24")
        k("s_cmp_lt_u32 s24, 1024"); k("s_cselect_b32 s38, 0x3e8293ee, s38")
        k(f"s_branch {l2}")
        k.label(l1)
        k.srd(12, 72, 1024 * 7168); k.srd(16, 80, 2048 * CATP, CAT_OFF)
        k("s_mov_b32 s20, 7168"); k(f"s_mov_b32 s21, {CATP}"); k("s_mov_b32 s22, 0")
        k("s_sub_u32 s24, s24, 3072"); k("s_add_u32 s25, s24, 1024")
        k.label(l2)
    return f

PART_OFF = 0x2400000
def setup_ffn2(k):
    k("s_and_b32 s24, s2, 7"); k("s_lshl_b32 s24, s24, 7")
    k("s_lshr_b32 s23, s2, 3"); k("s_and_b32 s23, s23, 15"); k("s_lshl_b32 s23, s23, 7")
    k("s_lshr_b32 s7, s2, 7")
    k.srd(8, 80, 2048 * CATP, CAT_OFF); k.srd(12, 74, 3584 * 2048)
    k.srd(16, 80, 2 * 2048 * 4096, PART_OFF)
    k("s_mul_i32 s36, s7, 3584"); k("s_add_u32 s36, s36, 2048")
    k(f"s_mul_i32 s37, s7, {1792*2048}")
    k("s_mov_b32 s20, 2048"); k("s_mov_b32 s21, 4096")
    k(f"s_mul_i32 s25, s7, {2048*1024}"); k("s_add_u32 s25, s25, s24")

def setup_final(BM, BN):
    def f(k):
        nn = 1024 // BN
        k(f"s_and_b32 s24, s2, {nn-1}"); k(f"s_mul_i32 s24, s24, {BN}")
        k(f"s_lshr_b32 s23, s2, {nn.bit_length()-1}"); k(f"s_lshl_b32 s23, s23, {BM.bit_length()-1}")
        k.srd(8, 80, 2048 * CATP, CAT_OFF)
        k.srd(12, 68, 1024 * 2048); k.srd(28, 80, 2 * 2048 * 4096, PART_OFF)
        k.srd(16, 76, 2048 * 2048); k.srd(32, 64, 2048 * 2048)
        k("s_mov_b32 s20, 2048"); k("s_mov_b32 s21, 2048"); k("s_mov_b32 s25, s24")
        k("s_mov_b32 s36, 0"); k("s_mov_b32 s37, 0"); k(f"s_mov_b32 s39, {2048*4096}")
    return f

def attn_body(k, wgid="s2"):
    Q, ONE, KF, VF, S, P, O, Lr, MB = 24, 20, 32, 48, 64, 128, 160, 176, 192
    k("v_lshrrev_b32 v1, 6, v0"); k("v_and_b32 v0, 63, v0"); k("s_nop 0")
    k("v_readfirstlane_b32 s4, v1")
    k(f"s_and_b32 s5, {wgid}, 31"); k(f"s_lshr_b32 s6, {wgid}, 5")
    k.srd(8, 80, 2048 * QKVP, QKV_OFF); k.srd(16, 80, 2048 * CATP, CAT_OFF)
    k("v_and_b32 v12, 31, v0"); k("v_lshrrev_b32 v13, 5, v0")
    k("s_lshl_b32 s7, s6, 7"); k("s_lshl_b32 s20, s4, 5"); k("s_add_u32 s7, s7, s20")
    k("v_add_u32 v14, s7, v12")
    k(f"s_mov_b32 s21, {QKVP}"); k("v_mul_lo_u32 v15, v14, s21")
    k("s_lshl_b32 s22, s5, 6"); k("v_add_u32 v15, s22, v15"); k("v_lshl_add_u32 v15, v13, 4, v15")
    k(f"buffer_load_dwordx4 v[{Q}:{Q+3}], v15, s[8:11], 0 offen")
    k(f"buffer_load_dwordx4 v[{Q+4}:{Q+7}], v15, s[8:11], 0 offen offset:32")
    k("v_lshrrev_b32 v4, 2, v0"); k("s_lshl_b32 s7, s4, 4"); k("v_add_u32 v4, s7, v4")
    k("v_mul_lo_u32 v4, v4, s21"); k("v_add_u32 v4, s22, v4")
    k("v_and_b32 v5, 3, v0"); k("v_lshrrev_b32 v6, 4, v0"); k("v_xor_b32 v6, v6, v5")
    k("v_lshl_add_u32 v2, v6, 4, v4"); k("v_add_u32 v2, 2048, v2")
    k("v_lshl_add_u32 v3, v5, 4, v4"); k("v_add_u32 v3, 4096, v3")
    k("v_lshrrev_b32 v7, 2, v0"); k("v_and_b32 v7, 3, v7")
    for kk in range(2):
        k(f"v_add_u32 v8, {2*kk}, v13"); k("v_xor_b32 v8, v8, v7"); k("v_lshlrev_b32 v8, 4, v8")
        k(f"v_lshl_add_u32 v{4+kk}, v12, 6, v8")
    k("v_lshl_add_u32 v8, v13, 2, v7"); k("v_lshlrev_b32 v8, 6, v8")
    k("v_lshrrev_b32 v9, 4, v0"); k("v_and_b32 v9, 1, v9"); k("v_lshl_add_u32 v8, v9, 5, v8")
    k("v_and_b32 v9, 3, v0"); k("v_lshl_add_u32 v8, v9, 3, v8"); k("v_add_u32 v6, 8192, v8")
    for i in range(4): k(f"v_mov_b32 v{ONE+i}, 0x3f803f80")
    for i in range(32): k(f"v_mov_b32 v{O+i}, 0")
    k("v_mov_b32 v10, 0")
    k("s_mov_b32 s40, 0"); k("s_mov_b32 s41, 0"); k("s_lshl_b32 s44, s4, 10"); k("s_mov_b32 s45, 0")
    k("s_mov_b32 s30, 0x3e8293ee")
    k("s_mov_b64 s[34:35], 0"); k("s_mov_b32 s31, 0x41000000")
    BLK = 64 * QKVP
    def dmaK(par):
        k(f"s_add_u32 m0, s44, {par*4096}"); k("s_nop 0")
        k("buffer_load_dwordx4 v2, s[8:11], s40 offen lds"); k(f"s_add_u32 s40, s40, {BLK}")
    def dmaV(par):
        k(f"s_add_u32 m0, s44, {8192+par*4096}"); k("s_nop 0")
        k("buffer_load_dwordx4 v3, s[8:11], s41 offen lds"); k(f"s_add_u32 s41, s41, {BLK}")
    def readK(par):
        for kt in range(2):
            for kk in range(2):
                b = KF + (kt * 2 + kk) * 4
                k(f"ds_read_b128 v[{b}:{b+3}], v{4+kk} offset:{par*4096+kt*2048}")
    def readV(par):
        for b in range(4):
            r = VF + b * 4
            k(f"ds_read_b64_tr_b16 v[{r}:{r+1}], v6 offset:{par*4096+b*1024}")
            k(f"ds_read_b64_tr_b16 v[{r+2}:{r+3}], v6 offset:{par*4096+b*1024+512}")
    def mfA(par, first=False):
        r = []
        for kt in range(2):
            b = KF + kt * 8; s = S + par * 32 + kt * 16
            c = "0" if first else f"v[{MB}:{MB+15}]"
            r.append(f"v_mfma_f32_32x32x16_bf16 v[{s}:{s+15}], v[{b}:{b+3}], v[{Q}:{Q+3}], {c}")
            r.append(f"v_mfma_f32_32x32x16_bf16 v[{s}:{s+15}], v[{b+4}:{b+7}], v[{Q+4}:{Q+7}], v[{s}:{s+15}]")
        return r
    def mfC(par):
        r = []
        for b in range(4):
            p = P + par * 16 + b * 4
            r.append(f"v_mfma_f32_32x32x16_bf16 v[{O}:{O+15}], v[{VF+b*4}:{VF+b*4+3}], v[{p}:{p+3}], v[{O}:{O+15}]")
            r.append(f"v_mfma_f32_32x32x16_bf16 v[{Lr}:{Lr+15}], v[{ONE}:{ONE+3}], v[{p}:{p+3}], v[{Lr}:{Lr+15}]")
        return r
    def maxB(par, first):
        s = S + par * 32
        k(f"v_max3_f32 v11, v{s}, v{s+1}, v{s+2}")
        k(f"v_max3_f32 v9, v{s+15}, v{s+16}, v{s+17}")
        for i in range(6):
            k(f"v_max3_f32 v11, v11, v{s+3+2*i}, v{s+4+2*i}")
            k(f"v_max3_f32 v9, v9, v{s+18+2*i}, v{s+19+2*i}")
        k(f"v_max3_f32 v9, v9, v{s+30}, v{s+31}")
        k("v_max_f32 v11, v11, v9"); k("v_mov_b32 v9, v11"); k("s_nop 1"); k("v_permlane32_swap_b32 v11, v9")
        k("v_max_f32 v11, v11, v9")
        sk = k.new("nochg")
        if not first:
            k("v_cmp_lt_f32 s[34:35], s31, v11")
            k("v_max_f32 v11, 0, v11")
            k("s_cmp_eq_u64 s[34:35], 0"); k(f"s_cbranch_scc1 {sk}")
        for i in range(32): k(f"v_sub_f32 v{s+i}, v{s+i}, v11")
        k("v_add_f32 v10, v10, v11"); k("v_exp_f32 v17, -v11")
        for i in range(16): k(f"v_sub_f32 v{MB+i}, 0, v10")
        k.label(sk)
    def valuB(par):
        s = S + par * 32; p = P + par * 16; r = []
        for g in range(5):
            if g < 4:
                for i in range(8): r.append(f"v_exp_f32 v{s+8*g+i}, v{s+8*g+i}")
            if g > 0:
                for i in range(4): r.append(f"v_cvt_pk_bf16_f32 v{p+4*(g-1)+i}, v{s+8*(g-1)+2*i}, v{s+8*(g-1)+2*i+1}")
        return r
    def rescale():
        sk = k.new("skip")
        k("s_cmp_eq_u64 s[34:35], 0"); k(f"s_cbranch_scc1 {sk}")
        for i in range(17): k(f"v_mul_f32 v{O+i}, v{O+i}, v17")
        k.label(sk)
    def body(par, doA, doB, doC, first=False):
        k("s_waitcnt vmcnt(0)"); k("s_barrier")
        if doA: readK(1 - par)
        if doC: readV(1 - par)
        if doA: dmaK(par)
        if doB: dmaV(par)
        if doC: rescale()
        mf = []
        if doA: mf += [("s_waitcnt lgkmcnt(%d)" % (8 if doC else 0), m) if i == 0 else (None, m) for i, m in enumerate(mfA(1 - par))]
        if doC: mf += [("s_waitcnt lgkmcnt(0)", m) if i == 0 else (None, m) for i, m in enumerate(mfC(1 - par))]
        if doB: maxB(par, first)
        va = valuB(par) if doB else []
        step = max(1, (len(va) - 6) // max(1, len(mf)))
        pos = 2
        for i, v in enumerate(va):
            if mf and i == pos:
                w, m = mf.pop(0)
                if w: k(w)
                k(m); pos += step
            k(v)
        for w, m in mf:
            if w: k(w)
            k(m)
    dmaK(0); dmaK(1)
    k("s_waitcnt vmcnt(0)"); k("s_barrier")
    readK(0); k("s_waitcnt lgkmcnt(0)")
    for m in mfA(0, True): k(m)
    k("s_nop 7"); k("s_nop 3")
    body(0, True, True, False, True)
    lp = k.new("loop"); k.label(lp)
    body(1, True, True, True)
    body(0, True, True, True)
    k("s_add_u32 s45, s45, 1"); k("s_cmp_lt_u32 s45, 15"); k(f"s_cbranch_scc1 {lp}")
    body(1, False, True, True)
    body(0, False, False, True)
    k("s_waitcnt vmcnt(0)")
    k(f"s_mov_b32 s21, {CATP}"); k("v_mul_lo_u32 v15, v14, s21"); k("v_add_u32 v15, s22, v15")
    k("v_lshl_add_u32 v15, v13, 4, v15")
    k("s_nop 7"); k("s_nop 7")
    k(f"v_rcp_f32 v9, v{Lr}"); k("s_nop 0")
    for i in range(16): k(f"v_mul_f32 v{O+i}, v{O+i}, v9")
    for j in range(8): k(f"v_cvt_pk_bf16_f32 v{O+j}, v{O+2*j}, v{O+2*j+1}")
    k("s_nop 1")
    for qq in range(2):
        b = O + 4 * qq
        k(f"v_permlane32_swap_b32 v{b}, v{b+2}"); k(f"v_permlane32_swap_b32 v{b+1}, v{b+3}")
    for qq in range(2):
        k(f"buffer_store_dwordx4 v[{O+4*qq}:{O+4*qq+3}], v15, s[16:19], 0 offen offset:{qq*32}")
    return 208

def mid_kernel():
    k = K("mid_kernel")
    load_args(k)
    k("s_cmp_ge_u32 s2, 768"); k("s_cbranch_scc1 mid_kernel_end")
    k("s_waitcnt lgkmcnt(0)")
    k("s_cmp_ge_u32 s2, 256"); k("s_cbranch_scc1 mid_kernel_attn")
    import os
    if "A" in os.environ.get("XP", ""): k("s_endpgm")
    nv, lds = gemm_body(k, 128, 128, 2, 2, setup_ffn2, CATP, 28, 'f32')
    k("s_endpgm")
    k.label("mid_kernel_attn")
    k("s_sub_u32 s3, s2, 256")
    nv2 = attn_body(k, "s3")
    k.label("mid_kernel_end"); k("s_endpgm")
    return k.text(max(nv, nv2)), max(lds, 16384)

def main():
    out = sys.argv[1] if len(sys.argv) > 1 else f"cdna_kernels/{NAME}.s"
    hdr = [l for l in open(f"cdna_kernels/{NAME}.s.ref").read().split("\n") if l.startswith(";") and "@launch" not in l]
    g1, lds1 = simple_kernel("gemm1_kernel", 208, lambda k: gemm_body(k, 256, 256, 4, 2, setup_g1(256, 256), 2048, 16, 'bf16'))
    md, ldsm = mid_kernel()
    g2, lds2 = simple_kernel("final_kernel", 256, lambda k: gemm_body(k, 128, 64, 2, 2, setup_final(128, 64), CATP, 16, 'final'))
    hdr += ["; @launch kernel=ln_kernel grid=(512,1,1) block=(256,1,1) lds=0",
            f"; @launch kernel=gemm1_kernel grid=(208,1,1) block=(512,1,1) lds={lds1}",
            f"; @launch kernel=mid_kernel grid=(768,1,1) block=(256,1,1) lds={ldsm}",
            f"; @launch kernel=final_kernel grid=(256,1,1) block=(256,1,1) lds={lds2}"]
    txt = "\n".join(hdr) + "\n.amdgcn_target \"amdgcn-amd-amdhsa--gfx950\"\n" + ln_kernel() + g1 + md + g2
    open(out, "w").write(txt)
main()
```

```python
import sys
NAME = "parallel_sum__mha_block__dense_activation_relu__prompt"
XN_OFF, QKV_OFF, CAT_OFF = 0, 0x400000, 0x1000000
WS_BYTES = 268435456
CATP = 4608 * 2
QKVP = 3072 * 2

class K:
    def __init__(s, name): s.name = name; s.L = []; s.uid = 0
    def __call__(s, t=""):
        import os
        X = os.environ.get("XP", "")
        if s.name == "mid_kernel":
            if "e" in X and t.startswith("v_exp_f32"): t = t.replace("v_exp_f32", "v_mov_b32")
            if "m" in X and t.startswith("v_mfma"): return
            if "b" in X and t.startswith("s_barrier"): return
            if "d" in X and t.startswith("buffer_load") and t.endswith("lds"): return
            if "v" in X and (t.startswith("v_fma") or t.startswith("v_exp") or t.startswith("v_cvt") or t.startswith("v_max3")): return
            if "l" in X and t.startswith("ds_read"): return
        s.L.append("    " + t)
    def label(s, l): s.L.append(l + ":")
    def new(s, p): s.uid += 1; return f"{s.name}_{p}{s.uid}"
    def srd(s, d, lo, nbytes, add=0):
        if add:
            s(f"s_add_u32 s{d}, s{lo}, 0x{add:x}"); s(f"s_addc_u32 s{d+1}, s{lo+1}, 0")
        else:
            s(f"s_mov_b32 s{d}, s{lo}"); s(f"s_mov_b32 s{d+1}, s{lo+1}")
        s(f"s_and_b32 s{d+1}, s{d+1}, 0xffff")
        s(f"s_mov_b32 s{d+2}, 0x{nbytes:x}"); s(f"s_mov_b32 s{d+3}, 0x00020000")
    def text(s, vgpr, agpr=0, sgpr=100):
        acc = (vgpr + 3) // 4 * 4
        nf = vgpr if agpr == 0 else acc + agpr
        h = [".text", f".globl {s.name}", ".p2align 8", f".type {s.name},@function", f"{s.name}:"]
        d = [".section .rodata,\"a\"", ".p2align 6", f".amdhsa_kernel {s.name}",
             f"  .amdhsa_next_free_vgpr {nf}", f"  .amdhsa_next_free_sgpr {sgpr}",
             f"  .amdhsa_accum_offset {acc}", "  .amdhsa_group_segment_fixed_size 0",
             "  .amdhsa_kernarg_size 72", "  .amdhsa_user_sgpr_count 2",
             "  .amdhsa_user_sgpr_kernarg_segment_ptr 1", "  .amdhsa_system_sgpr_workgroup_id_x 1",
             ".end_amdhsa_kernel"]
        return "\n".join(h + s.L + d) + "\n"

def load_args(k):
    k("s_load_dwordx16 s[64:79], s[0:1], 0")
    k("s_load_dwordx2 s[80:81], s[0:1], 64")

def wave_sum(k, v, t, sa, sb):
    for o in (0x041F, 0x081F, 0x101F, 0x201F, 0x401F):
        k(f"ds_swizzle_b32 v{t}, v{v} offset:0x{o:x}"); k("s_waitcnt lgkmcnt(0)")
        k(f"v_add_f32 v{v}, v{v}, v{t}")
    k("s_nop 0")
    k(f"v_readlane_b32 s{sa}, v{v}, 0"); k(f"v_readlane_b32 s{sb}, v{v}, 32"); k("s_nop 1")
    k(f"v_mov_b32 v{v}, s{sa}"); k(f"v_add_f32 v{v}, s{sb}, v{v}")

def rbf(k, v, t):
    k(f"v_cvt_pk_bf16_f32 v{t}, v{v}, v{v}"); k(f"v_lshlrev_b32 v{v}, 16, v{t}")

def ln_kernel():
    k = K("ln_kernel")
    load_args(k)
    k("s_cmp_ge_u32 s2, 512"); k(f"s_cbranch_scc1 ln_kernel_end")
    k("v_lshrrev_b32 v1, 6, v0")
    k("v_and_b32 v2, 63, v0")
    k("s_lshl_b32 s3, s2, 2")
    k("v_add_u32 v1, s3, v1")
    k("v_lshlrev_b32 v1, 11, v1")
    k("v_lshl_add_u32 v1, v2, 4, v1")
    k("s_waitcnt lgkmcnt(0)")
    k.srd(8, 64, 2048 * 2048)
    k.srd(12, 80, 2048 * 2048, XN_OFF)
    k("buffer_load_dwordx4 v[4:7], v1, s[8:11], 0 offen")
    k("buffer_load_dwordx4 v[8:11], v1, s[8:11], 0 offen offset:1024")
    k("s_waitcnt vmcnt(0)")
    for i in range(8):
        k(f"v_lshlrev_b32 v{16+2*i}, 16, v{4+i}"); k(f"v_and_b32 v{17+2*i}, 0xffff0000, v{4+i}")
    k("v_add_f32 v32, v16, v17")
    for i in range(2, 16): k(f"v_add_f32 v32, v32, v{16+i}")
    wave_sum(k, 32, 33, 20, 21)
    k("v_mul_f32 v32, 0x3a800000, v32")
    k("v_sub_f32 v34, v16, v32"); k("v_mul_f32 v35, v34, v34")
    for i in range(1, 16):
        k(f"v_sub_f32 v34, v{16+i}, v32"); k("v_fmac_f32 v35, v34, v34")
    wave_sum(k, 35, 33, 20, 21)
    k("v_mul_f32 v35, 0x3a800000, v35")
    rbf(k, 35, 33); rbf(k, 32, 33)
    k("v_add_f32 v35, 0x3727c5ac, v35"); rbf(k, 35, 33)
    k("v_sqrt_f32 v35, v35"); k("s_nop 0"); rbf(k, 35, 33)
    k("v_rcp_f32 v35, v35"); k("s_nop 0")
    for i in range(16):
        k(f"v_sub_f32 v{16+i}, v{16+i}, v32")
    for i in range(8):
        k(f"v_cvt_pk_bf16_f32 v33, v{16+2*i}, v{17+2*i}")
        k(f"v_lshlrev_b32 v{16+2*i}, 16, v33"); k(f"v_and_b32 v{17+2*i}, 0xffff0000, v33")
        k(f"v_mul_f32 v{16+2*i}, v{16+2*i}, v35"); k(f"v_mul_f32 v{17+2*i}, v{17+2*i}, v35")
        k(f"v_cvt_pk_bf16_f32 v{4+i}, v{16+2*i}, v{17+2*i}")
    k("buffer_store_dwordx4 v[4:7], v1, s[12:15], 0 offen")
    k("buffer_store_dwordx4 v[8:11], v1, s[12:15], 0 offen offset:1024")
    k.label("ln_kernel_end"); k("s_endpgm")
    return k.text(40)

def gemm_body(k, BM, BN, WM, WN, setup, pitchA, ksteps, mode, NS=2):
    NW = WM * WN; TM = BM // WM // 32; TN = BN // WN // 32
    ABY = BM * 128; RB = BN * 2; BBY = 64 * RB
    STG = ABY + BBY
    IA = BM // 8 // NW; IB = BN // 8 // NW
    CPR = BN // 8; RPI = 1024 // RB
    k("v_lshrrev_b32 v1, 6, v0"); k("v_and_b32 v0, 63, v0"); k("s_nop 0")
    k("v_readfirstlane_b32 s4, v1")
    setup(k)
    k(f"s_lshr_b32 s5, s4, {WN.bit_length()-1}")
    k(f"s_and_b32 s6, s4, {WN-1}")
    k("v_lshrrev_b32 v3, 3, v0"); k("s_lshl_b32 s7, s4, 3"); k("s_add_u32 s7, s7, s23")
    k("v_add_u32 v3, s7, v3"); k(f"s_mov_b32 s7, {pitchA}"); k("v_mul_lo_u32 v2, v3, s7")
    k("s_and_b32 s7, s4, 1"); k("s_lshl_b32 s7, s7, 2")
    k("v_lshrrev_b32 v3, 4, v0"); k("v_add_u32 v3, s7, v3"); k("v_and_b32 v3, 7, v3")
    k("v_and_b32 v4, 7, v0"); k("v_xor_b32 v3, v3, v4"); k("v_lshl_add_u32 v2, v3, 4, v2")
    k(f"v_lshrrev_b32 v4, {CPR.bit_length()-1}, v0"); k(f"s_mul_i32 s7, s4, {RPI}")
    k("v_add_u32 v4, s7, v4")
    k("v_mul_lo_u32 v3, v4, s20")
    if BN >= 128: k("v_and_b32 v4, 3, v4"); k("v_lshlrev_b32 v4, 2, v4")
    else: k("v_lshrrev_b32 v4, 1, v4"); k("v_and_b32 v4, 1, v4"); k("v_lshlrev_b32 v4, 2, v4")
    k(f"v_and_b32 v5, {CPR-1}, v0"); k("v_xor_b32 v4, v4, v5"); k("v_lshl_add_u32 v3, v4, 4, v3")
    k("s_lshl_b32 s7, s24, 1"); k("v_add_u32 v3, s7, v3")
    k("v_and_b32 v12, 31, v0"); k("v_lshrrev_b32 v13, 5, v0")
    k(f"s_mul_i32 s7, s5, {TM*32*128}")
    k("v_lshlrev_b32 v14, 7, v12"); k("v_add_u32 v14, s7, v14")
    k("v_lshrrev_b32 v15, 1, v0"); k("v_and_b32 v15, 7, v15")
    for kk in range(4):
        k(f"v_add_u32 v16, {2*kk}, v13"); k("v_xor_b32 v16, v16, v15"); k(f"v_lshl_add_u32 v{4+kk}, v16, 4, v14")
    k("v_lshrrev_b32 v14, 2, v0"); k("v_and_b32 v14, 3, v14")
    k("v_lshl_add_u32 v15, v13, 3, v14")
    k(f"s_mov_b32 s7, {RB}"); k("v_mul_lo_u32 v15, v15, s7")
    k("v_lshrrev_b32 v16, 4, v0"); k("v_and_b32 v16, 1, v16"); k("v_lshl_add_u32 v15, v16, 5, v15")
    k("v_and_b32 v16, 3, v0"); k("v_lshl_add_u32 v15, v16, 3, v15")
    k(f"v_add_u32 v15, {ABY}, v15")
    NB = 4 if BN >= 128 else 2
    if BN < 128: k("v_lshrrev_b32 v14, 1, v14")
    k(f"s_mul_i32 s7, s6, {TN}")
    NREG = min(TN, NB)
    for i in range(NREG):
        k(f"s_add_u32 s26, s7, {i}")
        k(f"s_and_b32 s27, s26, {NB-1}"); k(f"v_xor_b32 v16, s27, v14")
        k(f"s_andn2_b32 s26, s26, {NB-1}"); k("v_add_u32 v16, s26, v16")
        k(f"v_lshl_add_u32 v{8+i}, v16, 6, v15")
    assert TN <= NB or (TN % NB == 0)
    ACC = 128 if TM * TN > 4 else 80
    FR = 28; AB = 20
    nfr = (TM + TN) * 4
    for i in range(TM * TN * 16): k(f"v_mov_b32 v{ACC+i}, 0")
    k("s_mov_b32 s40, s36")
    k("s_mov_b32 s41, s37")
    k(f"s_lshl_b32 s42, s20, 6")
    k(f"s_mul_i32 s43, s20, {NW*RPI}")
    k(f"s_lshl_b32 s44, s4, 10")
    k("s_mov_b32 s45, 0")
    def dma_list():
        r = []
        for t in range(IA):
            r.append([f"s_add_u32 s46, s40, {t*NW*8*pitchA}", f"s_add_u32 m0, s44, {t*NW*1024}", "s_nop 0",
                      "buffer_load_dwordx4 v2, s[8:11], s46 offen lds"])
        for t in range(IB):
            r.append([f"s_add_u32 m0, s44, {ABY + t*NW*1024}",
                      "s_add_u32 s49, s49, s43" if t else "s_mov_b32 s49, s41",
                      "buffer_load_dwordx4 v3, s[12:15], s49 offen lds"])
        r[-1] += ["s_add_u32 s40, s40, 128", "s_add_u32 s41, s41, s42", f"s_add_u32 s44, s44, {STG}",
                  f"s_cmp_ge_u32 s44, {NS*STG}", f"s_cselect_b32 s46, {NS*STG}, 0", "s_sub_u32 s44, s44, s46"]
        return r
    def dma():
        for g in dma_list():
            for t in g: k(t)
    def reads(kk, buf):
        b = FR + buf * nfr
        for tn in range(TN):
            o = kk * 16 * RB + (tn // NB) * NB * 64
            k(f"ds_read_b64_tr_b16 v[{b+tn*4}:{b+tn*4+1}], v{8+tn%NB} offset:{o}")
            k(f"ds_read_b64_tr_b16 v[{b+tn*4+2}:{b+tn*4+3}], v{8+tn%NB} offset:{o+4*RB}")
        for tm in range(TM):
            k(f"ds_read_b128 v[{b+TN*4+tm*4}:{b+TN*4+tm*4+3}], v{4+kk} offset:{tm*4096}")
    def mfmas(buf, extra):
        b = FR + buf * nfr
        for tm in range(TM):
            for tn in range(TN):
                a = ACC + (tm * TN + tn) * 16
                k(f"v_mfma_f32_32x32x16_bf16 v[{a}:{a+15}], v[{b+tn*4}:{b+tn*4+3}], v[{b+TN*4+tm*4}:{b+TN*4+tm*4+3}], v[{a}:{a+15}]")
                if extra:
                    for t in extra.pop(0): k(t)
    ND = IA + IB
    for i in range(4 + NREG): k(f"v_mov_b32 v{AB+i}, v{4+i}")
    k("s_mov_b32 s48, 0")
    for i in range(NS - 1): dma()
    lp = k.new("loop"); k.label(lp)
    k(f"s_waitcnt vmcnt({(NS-2)*ND})"); k("s_barrier")
    k("s_add_u32 s45, s45, 1")
    reads(0, 0)
    nrd = 2 * TN + TM
    dl = dma_list()
    per = (ND + 3) // 4
    for kk in range(4):
        if kk < 3:
            reads(kk + 1, (kk + 1) % 2); k(f"s_waitcnt lgkmcnt({nrd})")
        else: k("s_waitcnt lgkmcnt(0)")
        ex = dl[:per]; dl = dl[per:]
        mfmas(kk % 2, ex)
        assert not ex
    k(f"s_add_u32 s48, s48, {STG}"); k(f"s_cmp_ge_u32 s48, {NS*STG}"); k("s_cselect_b32 s48, 0, s48")
    for i in range(4 + NREG): k(f"v_add_u32 v{4+i}, s48, v{AB+i}")
    k(f"s_cmp_lt_u32 s45, {ksteps}"); k(f"s_cbranch_scc1 {lp}")
    k("s_waitcnt vmcnt(0)")
    k(f"s_mul_i32 s7, s5, {TM*32}"); k("s_add_u32 s7, s7, s23")
    k("v_add_u32 v14, s7, v12")
    k("v_mul_lo_u32 v15, v14, s21")
    k(f"s_mul_i32 s7, s6, {TN*32}"); k("s_add_u32 s7, s7, s25")
    esz = 2 if mode == 'f32' else 1
    k(f"s_lshl_b32 s7, s7, {esz}")
    k("v_add_u32 v15, s7, v15"); k("v_lshl_add_u32 v16, v13, 4, v15")
    k("v_lshl_add_u32 v17, v13, 3, v15")
    k("v_lshlrev_b32 v18, 1, v17")
    k("s_lshl_b32 s47, s21, 5")
    k("s_nop 7"); k("s_nop 7")
    for tm in range(TM):
        if tm:
            k("v_add_u32 v16, s47, v16"); k("v_add_u32 v17, s47, v17"); k("v_lshlrev_b32 v18, 1, v17")
        if mode == 'f32':
            for tn in range(TN):
                a = ACC + (tm * TN + tn) * 16
                for q in range(4):
                    k(f"buffer_store_dwordx4 v[{a+4*q}:{a+4*q+3}], v16, s[16:19], 0 offen offset:{tn*128+q*32}")
            continue
        for tn in range(TN):
            a = ACC + (tm * TN + tn) * 16
            if mode == 'final':
                X, P0, P1 = FR, FR + 8, FR + 24
                for q in range(4):
                    k(f"buffer_load_dwordx2 v[{X+2*q}:{X+2*q+1}], v17, s[32:35], 0 offen offset:{tn*64+q*16}")
                    k(f"buffer_load_dwordx4 v[{P0+4*q}:{P0+4*q+3}], v18, s[28:31], 0 offen offset:{tn*128+q*32}")
                    k(f"buffer_load_dwordx4 v[{P1+4*q}:{P1+4*q+3}], v18, s[28:31], s39 offen offset:{tn*128+q*32}")
                k("s_waitcnt vmcnt(0)")
                for j in range(16):
                    k(f"v_add_f32 v{P0+j}, v{P0+j}, v{P1+j}")
                for j in range(8):
                    k(f"v_lshlrev_b32 v{P1+2*j}, 16, v{X+j}"); k(f"v_and_b32 v{P1+2*j+1}, 0xffff0000, v{X+j}")
                for j in range(16):
                    k(f"v_add_f32 v{a+j}, v{a+j}, v{P1+j}"); k(f"v_add_f32 v{a+j}, v{a+j}, v{P0+j}")
            else:
                for j in range(16):
                    k(f"v_max_f32 v{a+j}, s22, v{a+j}"); k(f"v_mul_f32 v{a+j}, s38, v{a+j}")
            for j in range(8): k(f"v_cvt_pk_bf16_f32 v{a+j}, v{a+2*j}, v{a+2*j+1}")
            k("s_nop 1")
            for qq in range(2):
                b = a + 4 * qq
                k(f"v_permlane32_swap_b32 v{b}, v{b+2}"); k(f"v_permlane32_swap_b32 v{b+1}, v{b+3}")
            for qq in range(2):
                b = a + 4 * qq
                k(f"buffer_store_dwordx4 v[{b}:{b+3}], v16, s[16:19], 0 offen offset:{tn*64+qq*32}")
    return max(ACC + TM * TN * 16, FR + 40), STG * NS

def simple_kernel(name, nwg, fn):
    k = K(name)
    load_args(k)
    k(f"s_cmp_ge_u32 s2, {nwg}"); k(f"s_cbranch_scc1 {name}_end")
    k("s_waitcnt lgkmcnt(0)")
    nv, lds = fn(k)
    k.label(f"{name}_end"); k("s_endpgm")
    return k.text(nv), lds

def setup_g1(BM, BN):
    nq = 3072 // BN; nt = 6656 // BN
    def f(k):
        nm = 2048 // BM
        k(f"s_and_b32 s23, s2, {nm-1}"); k(f"s_lshl_b32 s23, s23, {BM.bit_length()-1}")
        k(f"s_lshr_b32 s24, s2, {nm.bit_length()-1}"); k(f"s_mul_i32 s24, s24, {BN}")
        k.srd(8, 80, 2048 * 2048, XN_OFF)
        k("s_mov_b32 s36, 0"); k("s_mov_b32 s37, 0"); k("s_mov_b32 s38, 1.0")
        l1, l2 = k.new("ffn"), k.new("j")
        k("s_cmp_ge_u32 s24, 3072"); k(f"s_cbranch_scc1 {l1}")
        k.srd(12, 66, 1024 * 6144); k.srd(16, 80, 2048 * QKVP, QKV_OFF)
        k("s_mov_b32 s20, 6144"); k(f"s_mov_b32 s21, {QKVP}"); k("s_mov_b32 s22, 0xff800000"); k("s_mov_b32 s25, s24")
        k("s_cmp_lt_u32 s24, 1024"); k("s_cselect_b32 s38, 0x3e8293ee, s38")
        k(f"s_branch {l2}")
        k.label(l1)
        k.srd(12, 72, 1024 * 7168); k.srd(16, 80, 2048 * CATP, CAT_OFF)
        k("s_mov_b32 s20, 7168"); k(f"s_mov_b32 s21, {CATP}"); k("s_mov_b32 s22, 0")
        k("s_sub_u32 s24, s24, 3072"); k("s_add_u32 s25, s24, 1024")
        k.label(l2)
    return f

PART_OFF = 0x2400000
def setup_ffn2(k):
    k("s_and_b32 s24, s2, 7"); k("s_lshl_b32 s24, s24, 7")
    k("s_lshr_b32 s23, s2, 3"); k("s_and_b32 s23, s23, 15"); k("s_lshl_b32 s23, s23, 7")
    k("s_lshr_b32 s7, s2, 7")
    k.srd(8, 80, 2048 * CATP, CAT_OFF); k.srd(12, 74, 3584 * 2048)
    k.srd(16, 80, 2 * 2048 * 4096, PART_OFF)
    k("s_mul_i32 s36, s7, 3584"); k("s_add_u32 s36, s36, 2048")
    k(f"s_mul_i32 s37, s7, {1792*2048}")
    k("s_mov_b32 s20, 2048"); k("s_mov_b32 s21, 4096")
    k(f"s_mul_i32 s25, s7, {2048*1024}"); k("s_add_u32 s25, s25, s24")

def setup_final(BM, BN):
    def f(k):
        nn = 1024 // BN
        k(f"s_and_b32 s24, s2, {nn-1}"); k(f"s_mul_i32 s24, s24, {BN}")
        k(f"s_lshr_b32 s23, s2, {nn.bit_length()-1}"); k(f"s_lshl_b32 s23, s23, {BM.bit_length()-1}")
        k.srd(8, 80, 2048 * CATP, CAT_OFF)
        k.srd(12, 68, 1024 * 2048); k.srd(28, 80, 2 * 2048 * 4096, PART_OFF)
        k.srd(16, 76, 2048 * 2048); k.srd(32, 64, 2048 * 2048)
        k("s_mov_b32 s20, 2048"); k("s_mov_b32 s21, 2048"); k("s_mov_b32 s25, s24")
        k("s_mov_b32 s36, 0"); k("s_mov_b32 s37, 0"); k(f"s_mov_b32 s39, {2048*4096}")
    return f

def attn_body(k, wgid="s2"):
    Q, ONE, KF, VF, S, P, O, Lr, MB = 24, 20, 32, 48, 64, 128, 160, 176, 192
    k("v_lshrrev_b32 v1, 6, v0"); k("v_and_b32 v0, 63, v0"); k("s_nop 0")
    k("v_readfirstlane_b32 s4, v1")
    k(f"s_and_b32 s5, {wgid}, 31"); k(f"s_lshr_b32 s6, {wgid}, 5")
    k.srd(8, 80, 2048 * QKVP, QKV_OFF); k.srd(16, 80, 2048 * CATP, CAT_OFF)
    k("v_and_b32 v12, 31, v0"); k("v_lshrrev_b32 v13, 5, v0")
    k("s_lshl_b32 s7, s6, 7"); k("s_lshl_b32 s20, s4, 5"); k("s_add_u32 s7, s7, s20")
    k("v_add_u32 v14, s7, v12")
    k(f"s_mov_b32 s21, {QKVP}"); k("v_mul_lo_u32 v15, v14, s21")
    k("s_lshl_b32 s22, s5, 6"); k("v_add_u32 v15, s22, v15"); k("v_lshl_add_u32 v15, v13, 4, v15")
    k(f"buffer_load_dwordx4 v[{Q}:{Q+3}], v15, s[8:11], 0 offen")
    k(f"buffer_load_dwordx4 v[{Q+4}:{Q+7}], v15, s[8:11], 0 offen offset:32")
    k("v_lshrrev_b32 v4, 2, v0"); k("s_lshl_b32 s7, s4, 4"); k("v_add_u32 v4, s7, v4")
    k("v_mul_lo_u32 v4, v4, s21"); k("v_add_u32 v4, s22, v4")
    k("v_and_b32 v5, 3, v0"); k("v_lshrrev_b32 v6, 4, v0"); k("v_xor_b32 v6, v6, v5")
    k("v_lshl_add_u32 v2, v6, 4, v4"); k("v_add_u32 v2, 2048, v2")
    k("v_lshl_add_u32 v3, v5, 4, v4"); k("v_add_u32 v3, 4096, v3")
    k("v_lshrrev_b32 v7, 2, v0"); k("v_and_b32 v7, 3, v7")
    for kk in range(2):
        k(f"v_add_u32 v8, {2*kk}, v13"); k("v_xor_b32 v8, v8, v7"); k("v_lshlrev_b32 v8, 4, v8")
        k(f"v_lshl_add_u32 v{4+kk}, v12, 6, v8")
    k("v_lshl_add_u32 v8, v13, 2, v7"); k("v_lshlrev_b32 v8, 6, v8")
    k("v_lshrrev_b32 v9, 4, v0"); k("v_and_b32 v9, 1, v9"); k("v_lshl_add_u32 v8, v9, 5, v8")
    k("v_and_b32 v9, 3, v0"); k("v_lshl_add_u32 v8, v9, 3, v8"); k("v_add_u32 v6, 8192, v8")
    for i in range(4): k(f"v_mov_b32 v{ONE+i}, 0x3f803f80")
    for i in range(32): k(f"v_mov_b32 v{O+i}, 0")
    k("v_mov_b32 v10, 0")
    k("s_mov_b32 s40, 0"); k("s_mov_b32 s41, 0"); k("s_lshl_b32 s44, s4, 10"); k("s_mov_b32 s45, 0")
    k("s_mov_b32 s30, 0x3e8293ee")
    k("s_mov_b64 s[34:35], 0"); k("s_mov_b32 s31, 0x41000000")
    BLK = 64 * QKVP
    def dmaK(par):
        k(f"s_add_u32 m0, s44, {par*4096}"); k("s_nop 0")
        k("buffer_load_dwordx4 v2, s[8:11], s40 offen lds"); k(f"s_add_u32 s40, s40, {BLK}")
    def dmaV(par):
        k(f"s_add_u32 m0, s44, {8192+par*4096}"); k("s_nop 0")
        k("buffer_load_dwordx4 v3, s[8:11], s41 offen lds"); k(f"s_add_u32 s41, s41, {BLK}")
    def readK(par):
        for kt in range(2):
            for kk in range(2):
                b = KF + (kt * 2 + kk) * 4
                k(f"ds_read_b128 v[{b}:{b+3}], v{4+kk} offset:{par*4096+kt*2048}")
    def readV(par):
        for b in range(4):
            r = VF + b * 4
            k(f"ds_read_b64_tr_b16 v[{r}:{r+1}], v6 offset:{par*4096+b*1024}")
            k(f"ds_read_b64_tr_b16 v[{r+2}:{r+3}], v6 offset:{par*4096+b*1024+512}")
    def mfA(par, first=False):
        r = []
        for kt in range(2):
            b = KF + kt * 8; s = S + par * 32 + kt * 16
            c = "0" if first else f"v[{MB}:{MB+15}]"
            r.append(f"v_mfma_f32_32x32x16_bf16 v[{s}:{s+15}], v[{b}:{b+3}], v[{Q}:{Q+3}], {c}")
            r.append(f"v_mfma_f32_32x32x16_bf16 v[{s}:{s+15}], v[{b+4}:{b+7}], v[{Q+4}:{Q+7}], v[{s}:{s+15}]")
        return r
    def mfC(par):
        r = []
        for b in range(4):
            p = P + par * 16 + b * 4
            r.append(f"v_mfma_f32_32x32x16_bf16 v[{O}:{O+15}], v[{VF+b*4}:{VF+b*4+3}], v[{p}:{p+3}], v[{O}:{O+15}]")
            r.append(f"v_mfma_f32_32x32x16_bf16 v[{Lr}:{Lr+15}], v[{ONE}:{ONE+3}], v[{p}:{p+3}], v[{Lr}:{Lr+15}]")
        return r
    def maxB(par, first):
        s = S + par * 32
        k(f"v_max3_f32 v11, v{s}, v{s+1}, v{s+2}")
        k(f"v_max3_f32 v9, v{s+15}, v{s+16}, v{s+17}")
        for i in range(6):
            k(f"v_max3_f32 v11, v11, v{s+3+2*i}, v{s+4+2*i}")
            k(f"v_max3_f32 v9, v9, v{s+18+2*i}, v{s+19+2*i}")
        k(f"v_max3_f32 v9, v9, v{s+30}, v{s+31}")
        k("v_max_f32 v11, v11, v9"); k("v_mov_b32 v9, v11"); k("s_nop 1"); k("v_permlane32_swap_b32 v11, v9")
        k("v_max_f32 v11, v11, v9")
        sk = k.new("nochg")
        if not first:
            k("v_cmp_lt_f32 s[34:35], s31, v11")
            k("v_max_f32 v11, 0, v11")
            k("s_cmp_eq_u64 s[34:35], 0"); k(f"s_cbranch_scc1 {sk}")
        for i in range(32): k(f"v_sub_f32 v{s+i}, v{s+i}, v11")
        k("v_add_f32 v10, v10, v11"); k("v_exp_f32 v17, -v11")
        for i in range(16): k(f"v_sub_f32 v{MB+i}, 0, v10")
        k.label(sk)
    def valuB(par):
        s = S + par * 32; p = P + par * 16; r = []
        for g in range(5):
            if g < 4:
                for i in range(8): r.append(f"v_exp_f32 v{s+8*g+i}, v{s+8*g+i}")
            if g > 0:
                for i in range(4): r.append(f"v_cvt_pk_bf16_f32 v{p+4*(g-1)+i}, v{s+8*(g-1)+2*i}, v{s+8*(g-1)+2*i+1}")
        return r
    def rescale():
        sk = k.new("skip")
        k("s_cmp_eq_u64 s[34:35], 0"); k(f"s_cbranch_scc1 {sk}")
        for i in range(17): k(f"v_mul_f32 v{O+i}, v{O+i}, v17")
        k.label(sk)
    def body(par, doA, doB, doC, first=False):
        k("s_waitcnt vmcnt(0)"); k("s_barrier")
        if doA: readK(1 - par)
        if doC: readV(1 - par)
        if doA: dmaK(par)
        if doB: dmaV(par)
        if doC: rescale()
        mf = []
        if doA: mf += [("s_waitcnt lgkmcnt(%d)" % (8 if doC else 0), m) if i == 0 else (None, m) for i, m in enumerate(mfA(1 - par))]
        if doC: mf += [("s_waitcnt lgkmcnt(0)", m) if i == 0 else (None, m) for i, m in enumerate(mfC(1 - par))]
        if doB: maxB(par, first)
        va = valuB(par) if doB else []
        step = max(1, (len(va) - 6) // max(1, len(mf)))
        pos = 2
        for i, v in enumerate(va):
            if mf and i == pos:
                w, m = mf.pop(0)
                if w: k(w)
                k(m); pos += step
            k(v)
        for w, m in mf:
            if w: k(w)
            k(m)
    dmaK(0); dmaK(1)
    k("s_waitcnt vmcnt(0)"); k("s_barrier")
    readK(0); k("s_waitcnt lgkmcnt(0)")
    for m in mfA(0, True): k(m)
    k("s_nop 7"); k("s_nop 3")
    body(0, True, True, False, True)
    lp = k.new("loop"); k.label(lp)
    body(1, True, True, True)
    body(0, True, True, True)
    k("s_add_u32 s45, s45, 1"); k("s_cmp_lt_u32 s45, 15"); k(f"s_cbranch_scc1 {lp}")
    body(1, False, True, True)
    body(0, False, False, True)
    k("s_waitcnt vmcnt(0)")
    k(f"s_mov_b32 s21, {CATP}"); k("v_mul_lo_u32 v15, v14, s21"); k("v_add_u32 v15, s22, v15")
    k("v_lshl_add_u32 v15, v13, 4, v15")
    k("s_nop 7"); k("s_nop 7")
    k(f"v_rcp_f32 v9, v{Lr}"); k("s_nop 0")
    for i in range(16): k(f"v_mul_f32 v{O+i}, v{O+i}, v9")
    for j in range(8): k(f"v_cvt_pk_bf16_f32 v{O+j}, v{O+2*j}, v{O+2*j+1}")
    k("s_nop 1")
    for qq in range(2):
        b = O + 4 * qq
        k(f"v_permlane32_swap_b32 v{b}, v{b+2}"); k(f"v_permlane32_swap_b32 v{b+1}, v{b+3}")
    for qq in range(2):
        k(f"buffer_store_dwordx4 v[{O+4*qq}:{O+4*qq+3}], v15, s[16:19], 0 offen offset:{qq*32}")
    return 208

def mid_kernel():
    k = K("mid_kernel")
    load_args(k)
    k("s_cmp_ge_u32 s2, 768"); k("s_cbranch_scc1 mid_kernel_end")
    k("s_waitcnt lgkmcnt(0)")
    k("s_cmp_ge_u32 s2, 256"); k("s_cbranch_scc1 mid_kernel_attn")
    import os
    if "A" in os.environ.get("XP", ""): k("s_endpgm")
    nv, lds = gemm_body(k, 128, 128, 2, 2, setup_ffn2, CATP, 28, 'f32')
    k("s_endpgm")
    k.label("mid_kernel_attn")
    k("s_sub_u32 s3, s2, 256")
    nv2 = attn_body(k, "s3")
    k.label("mid_kernel_end"); k("s_endpgm")
    return k.text(max(nv, nv2)), max(lds, 16384)

def main():
    out = sys.argv[1] if len(sys.argv) > 1 else f"cdna_kernels/{NAME}.s"
    hdr = [l for l in open(f"cdna_kernels/{NAME}.s.ref").read().split("\n") if l.startswith(";") and "@launch" not in l]
    g1, lds1 = simple_kernel("gemm1_kernel", 208, lambda k: gemm_body(k, 256, 256, 4, 2, setup_g1(256, 256), 2048, 16, 'bf16'))
    md, ldsm = mid_kernel()
    g2, lds2 = simple_kernel("final_kernel", 256, lambda k: gemm_body(k, 128, 64, 2, 2, setup_final(128, 64), CATP, 16, 'final', NS=4))
    hdr += ["; @launch kernel=ln_kernel grid=(512,1,1) block=(256,1,1) lds=0",
            f"; @launch kernel=gemm1_kernel grid=(208,1,1) block=(512,1,1) lds={lds1}",
            f"; @launch kernel=mid_kernel grid=(768,1,1) block=(256,1,1) lds={ldsm}",
            f"; @launch kernel=final_kernel grid=(256,1,1) block=(256,1,1) lds={lds2}"]
    txt = "\n".join(hdr) + "\n.amdgcn_target \"amdgcn-amd-amdhsa--gfx950\"\n" + ln_kernel() + g1 + md + g2
    open(out, "w").write(txt)
main()
```

```python
import sys
NAME = "parallel_sum__mha_block__dense_activation_relu__prompt"
XN_OFF, QKV_OFF, CAT_OFF = 0, 0x400000, 0x1000000
WS_BYTES = 268435456
CATP = 4608 * 2
QKVP = 3072 * 2

class K:
    def __init__(s, name): s.name = name; s.L = []; s.uid = 0
    def __call__(s, t=""):
        import os
        X = os.environ.get("XP", "")
        if s.name == "mid_kernel":
            if "e" in X and t.startswith("v_exp_f32"): t = t.replace("v_exp_f32", "v_mov_b32")
            if "m" in X and t.startswith("v_mfma"): return
            if "b" in X and t.startswith("s_barrier"): return
            if "d" in X and t.startswith("buffer_load") and t.endswith("lds"): return
            if "v" in X and (t.startswith("v_fma") or t.startswith("v_exp") or t.startswith("v_cvt") or t.startswith("v_max3")): return
            if "l" in X and t.startswith("ds_read"): return
        s.L.append("    " + t)
    def label(s, l): s.L.append(l + ":")
    def new(s, p): s.uid += 1; return f"{s.name}_{p}{s.uid}"
    def srd(s, d, lo, nbytes, add=0):
        if add:
            s(f"s_add_u32 s{d}, s{lo}, 0x{add:x}"); s(f"s_addc_u32 s{d+1}, s{lo+1}, 0")
        else:
            s(f"s_mov_b32 s{d}, s{lo}"); s(f"s_mov_b32 s{d+1}, s{lo+1}")
        s(f"s_and_b32 s{d+1}, s{d+1}, 0xffff")
        s(f"s_mov_b32 s{d+2}, 0x{nbytes:x}"); s(f"s_mov_b32 s{d+3}, 0x00020000")
    def text(s, vgpr, agpr=0, sgpr=100):
        acc = (vgpr + 3) // 4 * 4
        nf = vgpr if agpr == 0 else acc + agpr
        h = [".text", f".globl {s.name}", ".p2align 8", f".type {s.name},@function", f"{s.name}:"]
        d = [".section .rodata,\"a\"", ".p2align 6", f".amdhsa_kernel {s.name}",
             f"  .amdhsa_next_free_vgpr {nf}", f"  .amdhsa_next_free_sgpr {sgpr}",
             f"  .amdhsa_accum_offset {acc}", "  .amdhsa_group_segment_fixed_size 0",
             "  .amdhsa_kernarg_size 72", "  .amdhsa_user_sgpr_count 2",
             "  .amdhsa_user_sgpr_kernarg_segment_ptr 1", "  .amdhsa_system_sgpr_workgroup_id_x 1",
             ".end_amdhsa_kernel"]
        return "\n".join(h + s.L + d) + "\n"

def load_args(k):
    k("s_load_dwordx16 s[64:79], s[0:1], 0")
    k("s_load_dwordx2 s[80:81], s[0:1], 64")

def wave_sum(k, v, t, sa, sb):
    for o in (0x041F, 0x081F, 0x101F, 0x201F, 0x401F):
        k(f"ds_swizzle_b32 v{t}, v{v} offset:0x{o:x}"); k("s_waitcnt lgkmcnt(0)")
        k(f"v_add_f32 v{v}, v{v}, v{t}")
    k("s_nop 0")
    k(f"v_readlane_b32 s{sa}, v{v}, 0"); k(f"v_readlane_b32 s{sb}, v{v}, 32"); k("s_nop 1")
    k(f"v_mov_b32 v{v}, s{sa}"); k(f"v_add_f32 v{v}, s{sb}, v{v}")

def rbf(k, v, t):
    k(f"v_cvt_pk_bf16_f32 v{t}, v{v}, v{v}"); k(f"v_lshlrev_b32 v{v}, 16, v{t}")

def ln_kernel():
    k = K("ln_kernel")
    load_args(k)
    k("s_cmp_ge_u32 s2, 512"); k(f"s_cbranch_scc1 ln_kernel_end")
    k("v_lshrrev_b32 v1, 6, v0")
    k("v_and_b32 v2, 63, v0")
    k("s_lshl_b32 s3, s2, 2")
    k("v_add_u32 v1, s3, v1")
    k("v_lshlrev_b32 v1, 11, v1")
    k("v_lshl_add_u32 v1, v2, 4, v1")
    k("s_waitcnt lgkmcnt(0)")
    k.srd(8, 64, 2048 * 2048)
    k.srd(12, 80, 2048 * 2048, XN_OFF)
    k("buffer_load_dwordx4 v[4:7], v1, s[8:11], 0 offen")
    k("buffer_load_dwordx4 v[8:11], v1, s[8:11], 0 offen offset:1024")
    k("s_waitcnt vmcnt(0)")
    for i in range(8):
        k(f"v_lshlrev_b32 v{16+2*i}, 16, v{4+i}"); k(f"v_and_b32 v{17+2*i}, 0xffff0000, v{4+i}")
    k("v_add_f32 v32, v16, v17")
    for i in range(2, 16): k(f"v_add_f32 v32, v32, v{16+i}")
    wave_sum(k, 32, 33, 20, 21)
    k("v_mul_f32 v32, 0x3a800000, v32")
    k("v_sub_f32 v34, v16, v32"); k("v_mul_f32 v35, v34, v34")
    for i in range(1, 16):
        k(f"v_sub_f32 v34, v{16+i}, v32"); k("v_fmac_f32 v35, v34, v34")
    wave_sum(k, 35, 33, 20, 21)
    k("v_mul_f32 v35, 0x3a800000, v35")
    rbf(k, 35, 33); rbf(k, 32, 33)
    k("v_add_f32 v35, 0x3727c5ac, v35"); rbf(k, 35, 33)
    k("v_sqrt_f32 v35, v35"); k("s_nop 0"); rbf(k, 35, 33)
    k("v_rcp_f32 v35, v35"); k("s_nop 0")
    for i in range(16):
        k(f"v_sub_f32 v{16+i}, v{16+i}, v32")
    for i in range(8):
        k(f"v_cvt_pk_bf16_f32 v33, v{16+2*i}, v{17+2*i}")
        k(f"v_lshlrev_b32 v{16+2*i}, 16, v33"); k(f"v_and_b32 v{17+2*i}, 0xffff0000, v33")
        k(f"v_mul_f32 v{16+2*i}, v{16+2*i}, v35"); k(f"v_mul_f32 v{17+2*i}, v{17+2*i}, v35")
        k(f"v_cvt_pk_bf16_f32 v{4+i}, v{16+2*i}, v{17+2*i}")
    k("buffer_store_dwordx4 v[4:7], v1, s[12:15], 0 offen")
    k("buffer_store_dwordx4 v[8:11], v1, s[12:15], 0 offen offset:1024")
    k.label("ln_kernel_end"); k("s_endpgm")
    return k.text(40)

def gemm_body(k, BM, BN, WM, WN, setup, pitchA, ksteps, mode, NS=2):
    NW = WM * WN; TM = BM // WM // 32; TN = BN // WN // 32
    ABY = BM * 128; RB = BN * 2; BBY = 64 * RB
    STG = ABY + BBY
    IA = BM // 8 // NW; IB = BN // 8 // NW
    CPR = BN // 8; RPI = 1024 // RB
    k("v_lshrrev_b32 v1, 6, v0"); k("v_and_b32 v0, 63, v0"); k("s_nop 0")
    k("v_readfirstlane_b32 s4, v1")
    setup(k)
    k(f"s_lshr_b32 s5, s4, {WN.bit_length()-1}")
    k(f"s_and_b32 s6, s4, {WN-1}")
    k("v_lshrrev_b32 v3, 3, v0"); k("s_lshl_b32 s7, s4, 3"); k("s_add_u32 s7, s7, s23")
    k("v_add_u32 v3, s7, v3"); k(f"s_mov_b32 s7, {pitchA}"); k("v_mul_lo_u32 v2, v3, s7")
    k("s_and_b32 s7, s4, 1"); k("s_lshl_b32 s7, s7, 2")
    k("v_lshrrev_b32 v3, 4, v0"); k("v_add_u32 v3, s7, v3"); k("v_and_b32 v3, 7, v3")
    k("v_and_b32 v4, 7, v0"); k("v_xor_b32 v3, v3, v4"); k("v_lshl_add_u32 v2, v3, 4, v2")
    k(f"v_lshrrev_b32 v4, {CPR.bit_length()-1}, v0"); k(f"s_mul_i32 s7, s4, {RPI}")
    k("v_add_u32 v4, s7, v4")
    k("v_mul_lo_u32 v3, v4, s20")
    if BN >= 128: k("v_and_b32 v4, 3, v4"); k("v_lshlrev_b32 v4, 2, v4")
    else: k("v_lshrrev_b32 v4, 1, v4"); k("v_and_b32 v4, 1, v4"); k("v_lshlrev_b32 v4, 2, v4")
    k(f"v_and_b32 v5, {CPR-1}, v0"); k("v_xor_b32 v4, v4, v5"); k("v_lshl_add_u32 v3, v4, 4, v3")
    k("s_lshl_b32 s7, s24, 1"); k("v_add_u32 v3, s7, v3")
    k("v_and_b32 v12, 31, v0"); k("v_lshrrev_b32 v13, 5, v0")
    k(f"s_mul_i32 s7, s5, {TM*32*128}")
    k("v_lshlrev_b32 v14, 7, v12"); k("v_add_u32 v14, s7, v14")
    k("v_lshrrev_b32 v15, 1, v0"); k("v_and_b32 v15, 7, v15")
    for kk in range(4):
        k(f"v_add_u32 v16, {2*kk}, v13"); k("v_xor_b32 v16, v16, v15"); k(f"v_lshl_add_u32 v{4+kk}, v16, 4, v14")
    k("v_lshrrev_b32 v14, 2, v0"); k("v_and_b32 v14, 3, v14")
    k("v_lshl_add_u32 v15, v13, 3, v14")
    k(f"s_mov_b32 s7, {RB}"); k("v_mul_lo_u32 v15, v15, s7")
    k("v_lshrrev_b32 v16, 4, v0"); k("v_and_b32 v16, 1, v16"); k("v_lshl_add_u32 v15, v16, 5, v15")
    k("v_and_b32 v16, 3, v0"); k("v_lshl_add_u32 v15, v16, 3, v15")
    k(f"v_add_u32 v15, {ABY}, v15")
    NB = 4 if BN >= 128 else 2
    if BN < 128: k("v_lshrrev_b32 v14, 1, v14")
    k(f"s_mul_i32 s7, s6, {TN}")
    NREG = min(TN, NB)
    for i in range(NREG):
        k(f"s_add_u32 s26, s7, {i}")
        k(f"s_and_b32 s27, s26, {NB-1}"); k(f"v_xor_b32 v16, s27, v14")
        k(f"s_andn2_b32 s26, s26, {NB-1}"); k("v_add_u32 v16, s26, v16")
        k(f"v_lshl_add_u32 v{8+i}, v16, 6, v15")
    assert TN <= NB or (TN % NB == 0)
    ACC = 128 if TM * TN > 4 else 80
    FR = 28; AB = 20
    nfr = (TM + TN) * 4
    for i in range(TM * TN * 16): k(f"v_mov_b32 v{ACC+i}, 0")
    k("s_mov_b32 s40, s36")
    k("s_mov_b32 s41, s37")
    k(f"s_lshl_b32 s42, s20, 6")
    k(f"s_mul_i32 s43, s20, {NW*RPI}")
    k(f"s_lshl_b32 s44, s4, 10")
    k("s_mov_b32 s45, 0")
    def dma_list():
        r = []
        for t in range(IA):
            r.append([f"s_add_u32 s46, s40, {t*NW*8*pitchA}", f"s_add_u32 m0, s44, {t*NW*1024}", "s_nop 0",
                      "buffer_load_dwordx4 v2, s[8:11], s46 offen lds"])
        for t in range(IB):
            r.append([f"s_add_u32 m0, s44, {ABY + t*NW*1024}",
                      "s_add_u32 s49, s49, s43" if t else "s_mov_b32 s49, s41",
                      "buffer_load_dwordx4 v3, s[12:15], s49 offen lds"])
        r[-1] += ["s_add_u32 s40, s40, 128", "s_add_u32 s41, s41, s42", f"s_add_u32 s44, s44, {STG}",
                  f"s_cmp_ge_u32 s44, {NS*STG}", f"s_cselect_b32 s46, {NS*STG}, 0", "s_sub_u32 s44, s44, s46"]
        return r
    def dma():
        for g in dma_list():
            for t in g: k(t)
    def reads(kk, buf):
        b = FR + buf * nfr
        for tn in range(TN):
            o = kk * 16 * RB + (tn // NB) * NB * 64
            k(f"ds_read_b64_tr_b16 v[{b+tn*4}:{b+tn*4+1}], v{8+tn%NB} offset:{o}")
            k(f"ds_read_b64_tr_b16 v[{b+tn*4+2}:{b+tn*4+3}], v{8+tn%NB} offset:{o+4*RB}")
        for tm in range(TM):
            k(f"ds_read_b128 v[{b+TN*4+tm*4}:{b+TN*4+tm*4+3}], v{4+kk} offset:{tm*4096}")
    def mfmas(buf, extra):
        b = FR + buf * nfr
        for tm in range(TM):
            for tn in range(TN):
                a = ACC + (tm * TN + tn) * 16
                k(f"v_mfma_f32_32x32x16_bf16 v[{a}:{a+15}], v[{b+tn*4}:{b+tn*4+3}], v[{b+TN*4+tm*4}:{b+TN*4+tm*4+3}], v[{a}:{a+15}]")
                if extra:
                    for t in extra.pop(0): k(t)
    ND = IA + IB
    for i in range(4 + NREG): k(f"v_mov_b32 v{AB+i}, v{4+i}")
    k("s_mov_b32 s48, 0")
    for i in range(NS - 1): dma()
    lp = k.new("loop"); k.label(lp)
    k(f"s_waitcnt vmcnt({(NS-2)*ND})"); k("s_barrier")
    k("s_add_u32 s45, s45, 1")
    reads(0, 0)
    nrd = 2 * TN + TM
    dl = dma_list()
    per = (ND + 3) // 4
    for kk in range(4):
        if kk < 3:
            reads(kk + 1, (kk + 1) % 2); k(f"s_waitcnt lgkmcnt({nrd})")
        else: k("s_waitcnt lgkmcnt(0)")
        ex = dl[:per]; dl = dl[per:]
        mfmas(kk % 2, ex)
        assert not ex
    k(f"s_add_u32 s48, s48, {STG}"); k(f"s_cmp_ge_u32 s48, {NS*STG}"); k("s_cselect_b32 s48, 0, s48")
    for i in range(4 + NREG): k(f"v_add_u32 v{4+i}, s48, v{AB+i}")
    k(f"s_cmp_lt_u32 s45, {ksteps}"); k(f"s_cbranch_scc1 {lp}")
    k("s_waitcnt vmcnt(0)")
    k(f"s_mul_i32 s7, s5, {TM*32}"); k("s_add_u32 s7, s7, s23")
    k("v_add_u32 v14, s7, v12")
    k("v_mul_lo_u32 v15, v14, s21")
    k(f"s_mul_i32 s7, s6, {TN*32}"); k("s_add_u32 s7, s7, s25")
    esz = 2 if mode == 'f32' else 1
    k(f"s_lshl_b32 s7, s7, {esz}")
    k("v_add_u32 v15, s7, v15"); k("v_lshl_add_u32 v16, v13, 4, v15")
    k("v_lshl_add_u32 v17, v13, 3, v15")
    k("v_lshlrev_b32 v18, 1, v17")
    k("s_lshl_b32 s47, s21, 5")
    k("s_nop 7"); k("s_nop 7")
    for tm in range(TM):
        if tm:
            k("v_add_u32 v16, s47, v16"); k("v_add_u32 v17, s47, v17"); k("v_lshlrev_b32 v18, 1, v17")
        if mode == 'f32':
            for tn in range(TN):
                a = ACC + (tm * TN + tn) * 16
                for q in range(4):
                    k(f"buffer_store_dwordx4 v[{a+4*q}:{a+4*q+3}], v16, s[16:19], 0 offen offset:{tn*128+q*32}")
            continue
        for tn in range(TN):
            a = ACC + (tm * TN + tn) * 16
            if mode == 'final':
                X, P0, P1 = FR, FR + 8, FR + 24
                for q in range(4):
                    k(f"buffer_load_dwordx2 v[{X+2*q}:{X+2*q+1}], v17, s[32:35], 0 offen offset:{tn*64+q*16}")
                    k(f"buffer_load_dwordx4 v[{P0+4*q}:{P0+4*q+3}], v18, s[28:31], 0 offen offset:{tn*128+q*32}")
                    k(f"buffer_load_dwordx4 v[{P1+4*q}:{P1+4*q+3}], v18, s[28:31], s39 offen offset:{tn*128+q*32}")
                k("s_waitcnt vmcnt(0)")
                for j in range(16):
                    k(f"v_add_f32 v{P0+j}, v{P0+j}, v{P1+j}")
                for j in range(8):
                    k(f"v_lshlrev_b32 v{P1+2*j}, 16, v{X+j}"); k(f"v_and_b32 v{P1+2*j+1}, 0xffff0000, v{X+j}")
                for j in range(16):
                    k(f"v_add_f32 v{a+j}, v{a+j}, v{P1+j}"); k(f"v_add_f32 v{a+j}, v{a+j}, v{P0+j}")
            else:
                for j in range(16):
                    k(f"v_max_f32 v{a+j}, s22, v{a+j}"); k(f"v_mul_f32 v{a+j}, s38, v{a+j}")
            for j in range(8): k(f"v_cvt_pk_bf16_f32 v{a+j}, v{a+2*j}, v{a+2*j+1}")
            k("s_nop 1")
            for qq in range(2):
                b = a + 4 * qq
                k(f"v_permlane32_swap_b32 v{b}, v{b+2}"); k(f"v_permlane32_swap_b32 v{b+1}, v{b+3}")
            for qq in range(2):
                b = a + 4 * qq
                k(f"buffer_store_dwordx4 v[{b}:{b+3}], v16, s[16:19], 0 offen offset:{tn*64+qq*32}")
    return max(ACC + TM * TN * 16, FR + 40), STG * NS

def simple_kernel(name, nwg, fn):
    k = K(name)
    load_args(k)
    k(f"s_cmp_ge_u32 s2, {nwg}"); k(f"s_cbranch_scc1 {name}_end")
    k("s_waitcnt lgkmcnt(0)")
    nv, lds = fn(k)
    k.label(f"{name}_end"); k("s_endpgm")
    return k.text(nv), lds

def setup_g1(BM, BN):
    nq = 3072 // BN; nt = 6656 // BN
    def f(k):
        k("s_and_b32 s23, s2, 7"); k("s_mul_i32 s23, s23, 26"); k("s_lshr_b32 s24, s2, 3"); k("s_add_u32 s24, s24, s23")
        k("s_and_b32 s23, s24, 7"); k("s_lshl_b32 s23, s23, 8")
        k("s_lshr_b32 s24, s24, 3"); k("s_lshl_b32 s24, s24, 8")
        k.srd(8, 80, 2048 * 2048, XN_OFF)
        k("s_mov_b32 s36, 0"); k("s_mov_b32 s37, 0"); k("s_mov_b32 s38, 1.0")
        l1, l2 = k.new("ffn"), k.new("j")
        k("s_cmp_ge_u32 s24, 3072"); k(f"s_cbranch_scc1 {l1}")
        k.srd(12, 66, 1024 * 6144); k.srd(16, 80, 2048 * QKVP, QKV_OFF)
        k("s_mov_b32 s20, 6144"); k(f"s_mov_b32 s21, {QKVP}"); k("s_mov_b32 s22, 0xff800000"); k("s_mov_b32 s25, s24")
        k("s_cmp_lt_u32 s24, 1024"); k("s_cselect_b32 s38, 0x3e8293ee, s38")
        k(f"s_branch {l2}")
        k.label(l1)
        k.srd(12, 72, 1024 * 7168); k.srd(16, 80, 2048 * CATP, CAT_OFF)
        k("s_mov_b32 s20, 7168"); k(f"s_mov_b32 s21, {CATP}"); k("s_mov_b32 s22, 0")
        k("s_sub_u32 s24, s24, 3072"); k("s_add_u32 s25, s24, 1024")
        k.label(l2)
    return f

PART_OFF = 0x2400000
def setup_ffn2(k):
    k("s_lshr_b32 s7, s2, 3")
    k("s_and_b32 s23, s7, 7"); k("s_lshr_b32 s24, s2, 1"); k("s_and_b32 s24, s24, 1"); k("s_lshl_b32 s24, s24, 3")
    k("s_add_u32 s23, s23, s24"); k("s_lshl_b32 s23, s23, 7")
    k("s_lshr_b32 s24, s7, 3"); k("s_and_b32 s7, s2, 1"); k("s_lshl_b32 s7, s7, 2"); k("s_add_u32 s24, s24, s7"); k("s_lshl_b32 s24, s24, 7")
    k("s_lshr_b32 s7, s2, 2"); k("s_and_b32 s7, s7, 1")
    k.srd(8, 80, 2048 * CATP, CAT_OFF); k.srd(12, 74, 3584 * 2048)
    k.srd(16, 80, 2 * 2048 * 4096, PART_OFF)
    k("s_mul_i32 s36, s7, 3584"); k("s_add_u32 s36, s36, 2048")
    k(f"s_mul_i32 s37, s7, {1792*2048}")
    k("s_mov_b32 s20, 2048"); k("s_mov_b32 s21, 4096")
    k(f"s_mul_i32 s25, s7, {2048*1024}"); k("s_add_u32 s25, s25, s24")

def setup_final(BM, BN):
    def f(k):
        nn = 1024 // BN
        k(f"s_and_b32 s24, s2, {nn-1}"); k(f"s_mul_i32 s24, s24, {BN}")
        k(f"s_lshr_b32 s23, s2, {nn.bit_length()-1}"); k(f"s_lshl_b32 s23, s23, {BM.bit_length()-1}")
        k.srd(8, 80, 2048 * CATP, CAT_OFF)
        k.srd(12, 68, 1024 * 2048); k.srd(28, 80, 2 * 2048 * 4096, PART_OFF)
        k.srd(16, 76, 2048 * 2048); k.srd(32, 64, 2048 * 2048)
        k("s_mov_b32 s20, 2048"); k("s_mov_b32 s21, 2048"); k("s_mov_b32 s25, s24")
        k("s_mov_b32 s36, 0"); k("s_mov_b32 s37, 0"); k(f"s_mov_b32 s39, {2048*4096}")
    return f

def attn_body(k, wgid="s2"):
    Q, ONE, KF, VF, S, P, O, Lr, MB = 24, 20, 32, 48, 64, 128, 160, 176, 192
    k("v_lshrrev_b32 v1, 6, v0"); k("v_and_b32 v0, 63, v0"); k("s_nop 0")
    k("v_readfirstlane_b32 s4, v1")
    k(f"s_and_b32 s5, {wgid}, 31"); k(f"s_lshr_b32 s6, {wgid}, 5")
    k.srd(8, 80, 2048 * QKVP, QKV_OFF); k.srd(16, 80, 2048 * CATP, CAT_OFF)
    k("v_and_b32 v12, 31, v0"); k("v_lshrrev_b32 v13, 5, v0")
    k("s_lshl_b32 s7, s6, 7"); k("s_lshl_b32 s20, s4, 5"); k("s_add_u32 s7, s7, s20")
    k("v_add_u32 v14, s7, v12")
    k(f"s_mov_b32 s21, {QKVP}"); k("v_mul_lo_u32 v15, v14, s21")
    k("s_lshl_b32 s22, s5, 6"); k("v_add_u32 v15, s22, v15"); k("v_lshl_add_u32 v15, v13, 4, v15")
    k(f"buffer_load_dwordx4 v[{Q}:{Q+3}], v15, s[8:11], 0 offen")
    k(f"buffer_load_dwordx4 v[{Q+4}:{Q+7}], v15, s[8:11], 0 offen offset:32")
    k("v_lshrrev_b32 v4, 2, v0"); k("s_lshl_b32 s7, s4, 4"); k("v_add_u32 v4, s7, v4")
    k("v_mul_lo_u32 v4, v4, s21"); k("v_add_u32 v4, s22, v4")
    k("v_and_b32 v5, 3, v0"); k("v_lshrrev_b32 v6, 4, v0"); k("v_xor_b32 v6, v6, v5")
    k("v_lshl_add_u32 v2, v6, 4, v4"); k("v_add_u32 v2, 2048, v2")
    k("v_lshl_add_u32 v3, v5, 4, v4"); k("v_add_u32 v3, 4096, v3")
    k("v_lshrrev_b32 v7, 2, v0"); k("v_and_b32 v7, 3, v7")
    for kk in range(2):
        k(f"v_add_u32 v8, {2*kk}, v13"); k("v_xor_b32 v8, v8, v7"); k("v_lshlrev_b32 v8, 4, v8")
        k(f"v_lshl_add_u32 v{4+kk}, v12, 6, v8")
    k("v_lshl_add_u32 v8, v13, 2, v7"); k("v_lshlrev_b32 v8, 6, v8")
    k("v_lshrrev_b32 v9, 4, v0"); k("v_and_b32 v9, 1, v9"); k("v_lshl_add_u32 v8, v9, 5, v8")
    k("v_and_b32 v9, 3, v0"); k("v_lshl_add_u32 v8, v9, 3, v8"); k("v_add_u32 v6, 8192, v8")
    for i in range(4): k(f"v_mov_b32 v{ONE+i}, 0x3f803f80")
    for i in range(32): k(f"v_mov_b32 v{O+i}, 0")
    k("v_mov_b32 v10, 0")
    k("s_mov_b32 s40, 0"); k("s_mov_b32 s41, 0"); k("s_lshl_b32 s44, s4, 10"); k("s_mov_b32 s45, 0")
    k("s_mov_b32 s30, 0x3e8293ee")
    k("s_mov_b64 s[34:35], 0"); k("s_mov_b32 s31, 0x41000000")
    BLK = 64 * QKVP
    def dmaK(par):
        k(f"s_add_u32 m0, s44, {par*4096}"); k("s_nop 0")
        k("buffer_load_dwordx4 v2, s[8:11], s40 offen lds"); k(f"s_add_u32 s40, s40, {BLK}")
    def dmaV(par):
        k(f"s_add_u32 m0, s44, {8192+par*4096}"); k("s_nop 0")
        k("buffer_load_dwordx4 v3, s[8:11], s41 offen lds"); k(f"s_add_u32 s41, s41, {BLK}")
    def readK(par):
        for kt in range(2):
            for kk in range(2):
                b = KF + (kt * 2 + kk) * 4
                k(f"ds_read_b128 v[{b}:{b+3}], v{4+kk} offset:{par*4096+kt*2048}")
    def readV(par):
        for b in range(4):
            r = VF + b * 4
            k(f"ds_read_b64_tr_b16 v[{r}:{r+1}], v6 offset:{par*4096+b*1024}")
            k(f"ds_read_b64_tr_b16 v[{r+2}:{r+3}], v6 offset:{par*4096+b*1024+512}")
    def mfA(par, first=False):
        r = []
        for kt in range(2):
            b = KF + kt * 8; s = S + par * 32 + kt * 16
            c = "0" if first else f"v[{MB}:{MB+15}]"
            r.append(f"v_mfma_f32_32x32x16_bf16 v[{s}:{s+15}], v[{b}:{b+3}], v[{Q}:{Q+3}], {c}")
            r.append(f"v_mfma_f32_32x32x16_bf16 v[{s}:{s+15}], v[{b+4}:{b+7}], v[{Q+4}:{Q+7}], v[{s}:{s+15}]")
        return r
    def mfC(par):
        r = []
        for b in range(4):
            p = P + par * 16 + b * 4
            r.append(f"v_mfma_f32_32x32x16_bf16 v[{O}:{O+15}], v[{VF+b*4}:{VF+b*4+3}], v[{p}:{p+3}], v[{O}:{O+15}]")
            r.append(f"v_mfma_f32_32x32x16_bf16 v[{Lr}:{Lr+15}], v[{ONE}:{ONE+3}], v[{p}:{p+3}], v[{Lr}:{Lr+15}]")
        return r
    def maxB(par, first):
        s = S + par * 32
        k(f"v_max3_f32 v11, v{s}, v{s+1}, v{s+2}")
        k(f"v_max3_f32 v9, v{s+15}, v{s+16}, v{s+17}")
        for i in range(6):
            k(f"v_max3_f32 v11, v11, v{s+3+2*i}, v{s+4+2*i}")
            k(f"v_max3_f32 v9, v9, v{s+18+2*i}, v{s+19+2*i}")
        k(f"v_max3_f32 v9, v9, v{s+30}, v{s+31}")
        k("v_max_f32 v11, v11, v9"); k("v_mov_b32 v9, v11"); k("s_nop 1"); k("v_permlane32_swap_b32 v11, v9")
        k("v_max_f32 v11, v11, v9")
        sk = k.new("nochg")
        if not first:
            k("v_cmp_lt_f32 s[34:35], s31, v11")
            k("v_max_f32 v11, 0, v11")
            k("s_cmp_eq_u64 s[34:35], 0"); k(f"s_cbranch_scc1 {sk}")
        for i in range(32): k(f"v_sub_f32 v{s+i}, v{s+i}, v11")
        k("v_add_f32 v10, v10, v11"); k("v_exp_f32 v17, -v11")
        for i in range(16): k(f"v_sub_f32 v{MB+i}, 0, v10")
        k.label(sk)
    def valuB(par):
        s = S + par * 32; p = P + par * 16; r = []
        for g in range(5):
            if g < 4:
                for i in range(8): r.append(f"v_exp_f32 v{s+8*g+i}, v{s+8*g+i}")
            if g > 0:
                for i in range(4): r.append(f"v_cvt_pk_bf16_f32 v{p+4*(g-1)+i}, v{s+8*(g-1)+2*i}, v{s+8*(g-1)+2*i+1}")
        return r
    def rescale():
        sk = k.new("skip")
        k("s_cmp_eq_u64 s[34:35], 0"); k(f"s_cbranch_scc1 {sk}")
        for i in range(17): k(f"v_mul_f32 v{O+i}, v{O+i}, v17")
        k.label(sk)
    def body(par, doA, doB, doC, first=False):
        k("s_waitcnt vmcnt(0)"); k("s_barrier")
        if doA: readK(1 - par)
        if doC: readV(1 - par)
        if doA: dmaK(par)
        if doB: dmaV(par)
        if doC: rescale()
        mf = []
        if doA: mf += [("s_waitcnt lgkmcnt(%d)" % (8 if doC else 0), m) if i == 0 else (None, m) for i, m in enumerate(mfA(1 - par))]
        if doC: mf += [("s_waitcnt lgkmcnt(0)", m) if i == 0 else (None, m) for i, m in enumerate(mfC(1 - par))]
        if doB: maxB(par, first)
        va = valuB(par) if doB else []
        step = max(1, (len(va) - 6) // max(1, len(mf)))
        pos = 2
        for i, v in enumerate(va):
            if mf and i == pos:
                w, m = mf.pop(0)
                if w: k(w)
                k(m); pos += step
            k(v)
        for w, m in mf:
            if w: k(w)
            k(m)
    dmaK(0); dmaK(1)
    k("s_waitcnt vmcnt(0)"); k("s_barrier")
    readK(0); k("s_waitcnt lgkmcnt(0)")
    for m in mfA(0, True): k(m)
    k("s_nop 7"); k("s_nop 3")
    body(0, True, True, False, True)
    lp = k.new("loop"); k.label(lp)
    body(1, True, True, True)
    body(0, True, True, True)
    k("s_add_u32 s45, s45, 1"); k("s_cmp_lt_u32 s45, 15"); k(f"s_cbranch_scc1 {lp}")
    body(1, False, True, True)
    body(0, False, False, True)
    k("s_waitcnt vmcnt(0)")
    k(f"s_mov_b32 s21, {CATP}"); k("v_mul_lo_u32 v15, v14, s21"); k("v_add_u32 v15, s22, v15")
    k("v_lshl_add_u32 v15, v13, 4, v15")
    k("s_nop 7"); k("s_nop 7")
    k(f"v_rcp_f32 v9, v{Lr}"); k("s_nop 0")
    for i in range(16): k(f"v_mul_f32 v{O+i}, v{O+i}, v9")
    for j in range(8): k(f"v_cvt_pk_bf16_f32 v{O+j}, v{O+2*j}, v{O+2*j+1}")
    k("s_nop 1")
    for qq in range(2):
        b = O + 4 * qq
        k(f"v_permlane32_swap_b32 v{b}, v{b+2}"); k(f"v_permlane32_swap_b32 v{b+1}, v{b+3}")
    for qq in range(2):
        k(f"buffer_store_dwordx4 v[{O+4*qq}:{O+4*qq+3}], v15, s[16:19], 0 offen offset:{qq*32}")
    return 208

def mid_kernel():
    k = K("mid_kernel")
    load_args(k)
    k("s_cmp_ge_u32 s2, 768"); k("s_cbranch_scc1 mid_kernel_end")
    k("s_waitcnt lgkmcnt(0)")
    k("s_cmp_ge_u32 s2, 256"); k("s_cbranch_scc1 mid_kernel_attn")
    import os
    if "A" in os.environ.get("XP", ""): k("s_endpgm")
    nv, lds = gemm_body(k, 128, 128, 2, 2, setup_ffn2, CATP, 28, 'f32')
    k("s_endpgm")
    k.label("mid_kernel_attn")
    k("s_sub_u32 s3, s2, 256")
    nv2 = attn_body(k, "s3")
    k.label("mid_kernel_end"); k("s_endpgm")
    return k.text(max(nv, nv2)), max(lds, 16384)

def main():
    out = sys.argv[1] if len(sys.argv) > 1 else f"cdna_kernels/{NAME}.s"
    hdr = [l for l in open(f"cdna_kernels/{NAME}.s.ref").read().split("\n") if l.startswith(";") and "@launch" not in l]
    g1, lds1 = simple_kernel("gemm1_kernel", 208, lambda k: gemm_body(k, 256, 256, 4, 2, setup_g1(256, 256), 2048, 16, 'bf16'))
    md, ldsm = mid_kernel()
    g2, lds2 = simple_kernel("final_kernel", 256, lambda k: gemm_body(k, 128, 64, 2, 2, setup_final(128, 64), CATP, 16, 'final', NS=4))
    hdr += ["; @launch kernel=ln_kernel grid=(512,1,1) block=(256,1,1) lds=0",
            f"; @launch kernel=gemm1_kernel grid=(208,1,1) block=(512,1,1) lds={lds1}",
            f"; @launch kernel=mid_kernel grid=(768,1,1) block=(256,1,1) lds={ldsm}",
            f"; @launch kernel=final_kernel grid=(256,1,1) block=(256,1,1) lds={lds2}"]
    txt = "\n".join(hdr) + "\n.amdgcn_target \"amdgcn-amd-amdhsa--gfx950\"\n" + ln_kernel() + g1 + md + g2
    open(out, "w").write(txt)
main()
```

```python
import sys
NAME = "parallel_sum__mha_block__dense_activation_relu__prompt"
XN_OFF, QKV_OFF, CAT_OFF = 0, 0x400000, 0x1000000
WS_BYTES = 268435456
CATP = 4608 * 2
QKVP = 3072 * 2

class K:
    def __init__(s, name): s.name = name; s.L = []; s.uid = 0
    def __call__(s, t=""):
        import os
        X = os.environ.get("XP", "")
        if s.name == "mid_kernel":
            if "e" in X and t.startswith("v_exp_f32"): t = t.replace("v_exp_f32", "v_mov_b32")
            if "m" in X and t.startswith("v_mfma"): return
            if "b" in X and t.startswith("s_barrier"): return
            if "d" in X and t.startswith("buffer_load") and t.endswith("lds"): return
            if "v" in X and (t.startswith("v_fma") or t.startswith("v_exp") or t.startswith("v_cvt") or t.startswith("v_max3")): return
            if "l" in X and t.startswith("ds_read"): return
        s.L.append("    " + t)
    def label(s, l): s.L.append(l + ":")
    def new(s, p): s.uid += 1; return f"{s.name}_{p}{s.uid}"
    def srd(s, d, lo, nbytes, add=0):
        if add:
            s(f"s_add_u32 s{d}, s{lo}, 0x{add:x}"); s(f"s_addc_u32 s{d+1}, s{lo+1}, 0")
        else:
            s(f"s_mov_b32 s{d}, s{lo}"); s(f"s_mov_b32 s{d+1}, s{lo+1}")
        s(f"s_and_b32 s{d+1}, s{d+1}, 0xffff")
        s(f"s_mov_b32 s{d+2}, 0x{nbytes:x}"); s(f"s_mov_b32 s{d+3}, 0x00020000")
    def text(s, vgpr, agpr=0, sgpr=100):
        acc = (vgpr + 3) // 4 * 4
        nf = vgpr if agpr == 0 else acc + agpr
        h = [".text", f".globl {s.name}", ".p2align 8", f".type {s.name},@function", f"{s.name}:"]
        d = [".section .rodata,\"a\"", ".p2align 6", f".amdhsa_kernel {s.name}",
             f"  .amdhsa_next_free_vgpr {nf}", f"  .amdhsa_next_free_sgpr {sgpr}",
             f"  .amdhsa_accum_offset {acc}", "  .amdhsa_group_segment_fixed_size 0",
             "  .amdhsa_kernarg_size 72", "  .amdhsa_user_sgpr_count 2",
             "  .amdhsa_user_sgpr_kernarg_segment_ptr 1", "  .amdhsa_system_sgpr_workgroup_id_x 1",
             ".end_amdhsa_kernel"]
        return "\n".join(h + s.L + d) + "\n"

def load_args(k):
    k("s_load_dwordx16 s[64:79], s[0:1], 0")
    k("s_load_dwordx2 s[80:81], s[0:1], 64")

def wave_sum(k, v, t, sa, sb):
    for o in (0x041F, 0x081F, 0x101F, 0x201F, 0x401F):
        k(f"ds_swizzle_b32 v{t}, v{v} offset:0x{o:x}"); k("s_waitcnt lgkmcnt(0)")
        k(f"v_add_f32 v{v}, v{v}, v{t}")
    k("s_nop 0")
    k(f"v_readlane_b32 s{sa}, v{v}, 0"); k(f"v_readlane_b32 s{sb}, v{v}, 32"); k("s_nop 1")
    k(f"v_mov_b32 v{v}, s{sa}"); k(f"v_add_f32 v{v}, s{sb}, v{v}")

def rbf(k, v, t):
    k(f"v_cvt_pk_bf16_f32 v{t}, v{v}, v{v}"); k(f"v_lshlrev_b32 v{v}, 16, v{t}")

def ln_kernel():
    k = K("ln_kernel")
    load_args(k)
    k("s_cmp_ge_u32 s2, 512"); k(f"s_cbranch_scc1 ln_kernel_end")
    k("v_lshrrev_b32 v1, 6, v0")
    k("v_and_b32 v2, 63, v0")
    k("s_lshl_b32 s3, s2, 2")
    k("v_add_u32 v1, s3, v1")
    k("v_lshlrev_b32 v1, 11, v1")
    k("v_lshl_add_u32 v1, v2, 4, v1")
    k("s_waitcnt lgkmcnt(0)")
    k.srd(8, 64, 2048 * 2048)
    k.srd(12, 80, 2048 * 2048, XN_OFF)
    k("buffer_load_dwordx4 v[4:7], v1, s[8:11], 0 offen")
    k("buffer_load_dwordx4 v[8:11], v1, s[8:11], 0 offen offset:1024")
    k("s_waitcnt vmcnt(0)")
    for i in range(8):
        k(f"v_lshlrev_b32 v{16+2*i}, 16, v{4+i}"); k(f"v_and_b32 v{17+2*i}, 0xffff0000, v{4+i}")
    k("v_add_f32 v32, v16, v17")
    for i in range(2, 16): k(f"v_add_f32 v32, v32, v{16+i}")
    wave_sum(k, 32, 33, 20, 21)
    k("v_mul_f32 v32, 0x3a800000, v32")
    k("v_sub_f32 v34, v16, v32"); k("v_mul_f32 v35, v34, v34")
    for i in range(1, 16):
        k(f"v_sub_f32 v34, v{16+i}, v32"); k("v_fmac_f32 v35, v34, v34")
    wave_sum(k, 35, 33, 20, 21)
    k("v_mul_f32 v35, 0x3a800000, v35")
    rbf(k, 35, 33); rbf(k, 32, 33)
    k("v_add_f32 v35, 0x3727c5ac, v35"); rbf(k, 35, 33)
    k("v_sqrt_f32 v35, v35"); k("s_nop 0"); rbf(k, 35, 33)
    k("v_rcp_f32 v35, v35"); k("s_nop 0")
    for i in range(16):
        k(f"v_sub_f32 v{16+i}, v{16+i}, v32")
    for i in range(8):
        k(f"v_cvt_pk_bf16_f32 v33, v{16+2*i}, v{17+2*i}")
        k(f"v_lshlrev_b32 v{16+2*i}, 16, v33"); k(f"v_and_b32 v{17+2*i}, 0xffff0000, v33")
        k(f"v_mul_f32 v{16+2*i}, v{16+2*i}, v35"); k(f"v_mul_f32 v{17+2*i}, v{17+2*i}, v35")
        k(f"v_cvt_pk_bf16_f32 v{4+i}, v{16+2*i}, v{17+2*i}")
    k("buffer_store_dwordx4 v[4:7], v1, s[12:15], 0 offen")
    k("buffer_store_dwordx4 v[8:11], v1, s[12:15], 0 offen offset:1024")
    k.label("ln_kernel_end"); k("s_endpgm")
    return k.text(40)

def gemm_body(k, BM, BN, WM, WN, setup, pitchA, ksteps, mode, NS=2):
    NW = WM * WN; TM = BM // WM // 32; TN = BN // WN // 32
    ABY = BM * 128; RB = BN * 2; BBY = 64 * RB
    STG = ABY + BBY
    IA = BM // 8 // NW; IB = BN // 8 // NW
    CPR = BN // 8; RPI = 1024 // RB
    k("v_lshrrev_b32 v1, 6, v0"); k("v_and_b32 v0, 63, v0"); k("s_nop 0")
    k("v_readfirstlane_b32 s4, v1")
    setup(k)
    k(f"s_lshr_b32 s5, s4, {WN.bit_length()-1}")
    k(f"s_and_b32 s6, s4, {WN-1}")
    k("v_lshrrev_b32 v3, 3, v0"); k("s_lshl_b32 s7, s4, 3"); k("s_add_u32 s7, s7, s23")
    k("v_add_u32 v3, s7, v3"); k(f"s_mov_b32 s7, {pitchA}"); k("v_mul_lo_u32 v2, v3, s7")
    k("s_and_b32 s7, s4, 1"); k("s_lshl_b32 s7, s7, 2")
    k("v_lshrrev_b32 v3, 4, v0"); k("v_add_u32 v3, s7, v3"); k("v_and_b32 v3, 7, v3")
    k("v_and_b32 v4, 7, v0"); k("v_xor_b32 v3, v3, v4"); k("v_lshl_add_u32 v2, v3, 4, v2")
    k(f"v_lshrrev_b32 v4, {CPR.bit_length()-1}, v0"); k(f"s_mul_i32 s7, s4, {RPI}")
    k("v_add_u32 v4, s7, v4")
    k("v_mul_lo_u32 v3, v4, s20")
    if BN >= 128: k("v_and_b32 v4, 3, v4"); k("v_lshlrev_b32 v4, 2, v4")
    else: k("v_lshrrev_b32 v4, 1, v4"); k("v_and_b32 v4, 1, v4"); k("v_lshlrev_b32 v4, 2, v4")
    k(f"v_and_b32 v5, {CPR-1}, v0"); k("v_xor_b32 v4, v4, v5"); k("v_lshl_add_u32 v3, v4, 4, v3")
    k("s_lshl_b32 s7, s24, 1"); k("v_add_u32 v3, s7, v3")
    k("v_and_b32 v12, 31, v0"); k("v_lshrrev_b32 v13, 5, v0")
    k(f"s_mul_i32 s7, s5, {TM*32*128}")
    k("v_lshlrev_b32 v14, 7, v12"); k("v_add_u32 v14, s7, v14")
    k("v_lshrrev_b32 v15, 1, v0"); k("v_and_b32 v15, 7, v15")
    for kk in range(4):
        k(f"v_add_u32 v16, {2*kk}, v13"); k("v_xor_b32 v16, v16, v15"); k(f"v_lshl_add_u32 v{4+kk}, v16, 4, v14")
    k("v_lshrrev_b32 v14, 2, v0"); k("v_and_b32 v14, 3, v14")
    k("v_lshl_add_u32 v15, v13, 3, v14")
    k(f"s_mov_b32 s7, {RB}"); k("v_mul_lo_u32 v15, v15, s7")
    k("v_lshrrev_b32 v16, 4, v0"); k("v_and_b32 v16, 1, v16"); k("v_lshl_add_u32 v15, v16, 5, v15")
    k("v_and_b32 v16, 3, v0"); k("v_lshl_add_u32 v15, v16, 3, v15")
    k(f"v_add_u32 v15, {ABY}, v15")
    NB = 4 if BN >= 128 else 2
    if BN < 128: k("v_lshrrev_b32 v14, 1, v14")
    k(f"s_mul_i32 s7, s6, {TN}")
    NREG = min(TN, NB)
    for i in range(NREG):
        k(f"s_add_u32 s26, s7, {i}")
        k(f"s_and_b32 s27, s26, {NB-1}"); k(f"v_xor_b32 v16, s27, v14")
        k(f"s_andn2_b32 s26, s26, {NB-1}"); k("v_add_u32 v16, s26, v16")
        k(f"v_lshl_add_u32 v{8+i}, v16, 6, v15")
    assert TN <= NB or (TN % NB == 0)
    ACC = 128 if TM * TN > 4 else 80
    FR = 28; AB = 20
    nfr = (TM + TN) * 4
    for i in range(TM * TN * 16): k(f"v_mov_b32 v{ACC+i}, 0")
    k("s_mov_b32 s40, s36")
    k("s_mov_b32 s41, s37")
    k(f"s_lshl_b32 s42, s20, 6")
    k(f"s_mul_i32 s43, s20, {NW*RPI}")
    k(f"s_lshl_b32 s44, s4, 10")
    k("s_mov_b32 s45, 0")
    def dma_list():
        r = []
        for t in range(IA):
            r.append([f"s_add_u32 s46, s40, {t*NW*8*pitchA}", f"s_add_u32 m0, s44, {t*NW*1024}", "s_nop 0",
                      "buffer_load_dwordx4 v2, s[8:11], s46 offen lds"])
        for t in range(IB):
            r.append([f"s_add_u32 m0, s44, {ABY + t*NW*1024}",
                      "s_add_u32 s49, s49, s43" if t else "s_mov_b32 s49, s41",
                      "buffer_load_dwordx4 v3, s[12:15], s49 offen lds"])
        r[-1] += ["s_add_u32 s40, s40, 128", "s_add_u32 s41, s41, s42", f"s_add_u32 s44, s44, {STG}",
                  f"s_cmp_ge_u32 s44, {NS*STG}", f"s_cselect_b32 s46, {NS*STG}, 0", "s_sub_u32 s44, s44, s46"]
        return r
    def dma():
        for g in dma_list():
            for t in g: k(t)
    def reads(kk, buf):
        b = FR + buf * nfr
        for tn in range(TN):
            o = kk * 16 * RB + (tn // NB) * NB * 64
            k(f"ds_read_b64_tr_b16 v[{b+tn*4}:{b+tn*4+1}], v{8+tn%NB} offset:{o}")
            k(f"ds_read_b64_tr_b16 v[{b+tn*4+2}:{b+tn*4+3}], v{8+tn%NB} offset:{o+4*RB}")
        for tm in range(TM):
            k(f"ds_read_b128 v[{b+TN*4+tm*4}:{b+TN*4+tm*4+3}], v{4+kk} offset:{tm*4096}")
    def mfmas(buf, extra):
        b = FR + buf * nfr
        for tm in range(TM):
            for tn in range(TN):
                a = ACC + (tm * TN + tn) * 16
                k(f"v_mfma_f32_32x32x16_bf16 v[{a}:{a+15}], v[{b+tn*4}:{b+tn*4+3}], v[{b+TN*4+tm*4}:{b+TN*4+tm*4+3}], v[{a}:{a+15}]")
                if extra:
                    for t in extra.pop(0): k(t)
    def epi_addr():
        k(f"s_mul_i32 s7, s5, {TM*32}"); k("s_add_u32 s7, s7, s23")
        k("v_add_u32 v14, s7, v12")
        k("v_mul_lo_u32 v15, v14, s21")
        k(f"s_mul_i32 s7, s6, {TN*32}"); k("s_add_u32 s7, s7, s25")
        esz = 2 if mode == 'f32' else 1
        k(f"s_lshl_b32 s7, s7, {esz}")
        k("v_add_u32 v15, s7, v15"); k("v_lshl_add_u32 v16, v13, 4, v15")
        k("v_lshl_add_u32 v17, v13, 3, v15")
        k("v_lshlrev_b32 v18, 1, v17")
        k("s_lshl_b32 s47, s21, 5")
    NPART = 4; PB = ACC + TM * TN * 16; PSZ = 8 + 16 * NPART
    if mode == 'final':
        epi_addr()
        for tm in range(TM):
            if tm:
                k("v_add_u32 v17, s47, v17"); k("v_lshlrev_b32 v18, 1, v17")
            for tn in range(TN):
                X = PB + (tm * TN + tn) * PSZ
                for q in range(4):
                    k(f"buffer_load_dwordx2 v[{X+2*q}:{X+2*q+1}], v17, s[32:35], 0 offen offset:{tn*64+q*16}")
                    for pi in range(NPART):
                        so = ["0", "s39", "s50", "s51"][pi]
                        R = X + 8 + 16 * pi + 4 * q
                        k(f"buffer_load_dwordx4 v[{R}:{R+3}], v18, s[28:31], {so} offen offset:{tn*128+q*32}")
    ND = IA + IB
    for i in range(4 + NREG): k(f"v_mov_b32 v{AB+i}, v{4+i}")
    k("s_mov_b32 s48, 0")
    for i in range(NS - 1): dma()
    lp = k.new("loop"); k.label(lp)
    k(f"s_waitcnt vmcnt({(NS-2)*ND})"); k("s_barrier")
    k("s_add_u32 s45, s45, 1")
    reads(0, 0)
    nrd = 2 * TN + TM
    dl = dma_list()
    per = (ND + 3) // 4
    for kk in range(4):
        if kk < 3:
            reads(kk + 1, (kk + 1) % 2); k(f"s_waitcnt lgkmcnt({nrd})")
        else: k("s_waitcnt lgkmcnt(0)")
        ex = dl[:per]; dl = dl[per:]
        mfmas(kk % 2, ex)
        assert not ex
    k(f"s_add_u32 s48, s48, {STG}"); k(f"s_cmp_ge_u32 s48, {NS*STG}"); k("s_cselect_b32 s48, 0, s48")
    for i in range(4 + NREG): k(f"v_add_u32 v{4+i}, s48, v{AB+i}")
    k(f"s_cmp_lt_u32 s45, {ksteps}"); k(f"s_cbranch_scc1 {lp}")
    k("s_waitcnt vmcnt(0)")
    epi_addr()
    k("s_nop 7"); k("s_nop 7")
    for tm in range(TM):
        if tm:
            k("v_add_u32 v16, s47, v16"); k("v_add_u32 v17, s47, v17"); k("v_lshlrev_b32 v18, 1, v17")
        if mode == 'f32':
            for tn in range(TN):
                a = ACC + (tm * TN + tn) * 16
                for q in range(4):
                    k(f"buffer_store_dwordx4 v[{a+4*q}:{a+4*q+3}], v16, s[16:19], 0 offen offset:{tn*128+q*32}")
            continue
        for tn in range(TN):
            a = ACC + (tm * TN + tn) * 16
            if mode == 'final':
                X = PB + (tm * TN + tn) * PSZ; P0 = X + 8; P1 = X + 24; P2 = X + 40; P3 = X + 56
                for j in range(16):
                    k(f"v_add_f32 v{P0+j}, v{P0+j}, v{P1+j}"); k(f"v_add_f32 v{P2+j}, v{P2+j}, v{P3+j}")
                for j in range(16):
                    k(f"v_add_f32 v{P0+j}, v{P0+j}, v{P2+j}")
                for j in range(8):
                    k(f"v_lshlrev_b32 v{P1+2*j}, 16, v{X+j}"); k(f"v_and_b32 v{P1+2*j+1}, 0xffff0000, v{X+j}")
                for j in range(16):
                    k(f"v_add_f32 v{a+j}, v{a+j}, v{P1+j}"); k(f"v_add_f32 v{a+j}, v{a+j}, v{P0+j}")
            else:
                for j in range(16):
                    k(f"v_max_f32 v{a+j}, s22, v{a+j}"); k(f"v_mul_f32 v{a+j}, s38, v{a+j}")
            for j in range(8): k(f"v_cvt_pk_bf16_f32 v{a+j}, v{a+2*j}, v{a+2*j+1}")
            k("s_nop 1")
            for qq in range(2):
                b = a + 4 * qq
                k(f"v_permlane32_swap_b32 v{b}, v{b+2}"); k(f"v_permlane32_swap_b32 v{b+1}, v{b+3}")
            for qq in range(2):
                b = a + 4 * qq
                k(f"buffer_store_dwordx4 v[{b}:{b+3}], v16, s[16:19], 0 offen offset:{tn*64+qq*32}")
    return (PB + TM * TN * PSZ if mode == 'final' else ACC + TM * TN * 16), STG * NS

def simple_kernel(name, nwg, fn):
    k = K(name)
    load_args(k)
    k(f"s_cmp_ge_u32 s2, {nwg}"); k(f"s_cbranch_scc1 {name}_end")
    k("s_waitcnt lgkmcnt(0)")
    nv, lds = fn(k)
    k.label(f"{name}_end"); k("s_endpgm")
    return k.text(nv), lds

def setup_g1(BM, BN):
    nq = 3072 // BN; nt = 6656 // BN
    def f(k):
        k("s_and_b32 s23, s2, 7"); k("s_mul_i32 s23, s23, 26"); k("s_lshr_b32 s24, s2, 3"); k("s_add_u32 s24, s24, s23")
        k("s_and_b32 s23, s24, 7"); k("s_lshl_b32 s23, s23, 8")
        k("s_lshr_b32 s24, s24, 3"); k("s_lshl_b32 s24, s24, 8")
        k.srd(8, 80, 2048 * 2048, XN_OFF)
        k("s_mov_b32 s36, 0"); k("s_mov_b32 s37, 0"); k("s_mov_b32 s38, 1.0")
        l1, l2 = k.new("ffn"), k.new("j")
        k("s_cmp_ge_u32 s24, 3072"); k(f"s_cbranch_scc1 {l1}")
        k.srd(12, 66, 1024 * 6144); k.srd(16, 80, 2048 * QKVP, QKV_OFF)
        k("s_mov_b32 s20, 6144"); k(f"s_mov_b32 s21, {QKVP}"); k("s_mov_b32 s22, 0xff800000"); k("s_mov_b32 s25, s24")
        k("s_cmp_lt_u32 s24, 1024"); k("s_cselect_b32 s38, 0x3e8293ee, s38")
        k(f"s_branch {l2}")
        k.label(l1)
        k.srd(12, 72, 1024 * 7168); k.srd(16, 80, 2048 * CATP, CAT_OFF)
        k("s_mov_b32 s20, 7168"); k(f"s_mov_b32 s21, {CATP}"); k("s_mov_b32 s22, 0")
        k("s_sub_u32 s24, s24, 3072"); k("s_add_u32 s25, s24, 1024")
        k.label(l2)
    return f

PART_OFF = 0x2400000
def setup_ffn2(k):
    k("s_and_b32 s3, s2, 255")
    k("s_lshr_b32 s7, s3, 3")
    k("s_and_b32 s23, s7, 7"); k("s_lshr_b32 s24, s3, 1"); k("s_and_b32 s24, s24, 1"); k("s_lshl_b32 s24, s24, 3")
    k("s_add_u32 s23, s23, s24"); k("s_lshl_b32 s23, s23, 7")
    k("s_lshr_b32 s24, s7, 3"); k("s_and_b32 s7, s3, 1"); k("s_lshl_b32 s7, s7, 2"); k("s_add_u32 s24, s24, s7"); k("s_lshl_b32 s24, s24, 7")
    k("s_lshr_b32 s7, s3, 2"); k("s_and_b32 s7, s7, 1")
    k("s_lshr_b32 s3, s2, 9"); k("s_lshl_b32 s3, s3, 1"); k("s_add_u32 s7, s7, s3")
    k.srd(8, 80, 2048 * CATP, CAT_OFF); k.srd(12, 74, 3584 * 2048)
    k.srd(16, 80, 4 * 2048 * 4096, PART_OFF)
    k("s_mul_i32 s36, s7, 1792"); k("s_add_u32 s36, s36, 2048")
    k(f"s_mul_i32 s37, s7, {896*2048}")
    k("s_mov_b32 s20, 2048"); k("s_mov_b32 s21, 4096")
    k(f"s_mul_i32 s25, s7, {2048*1024}"); k("s_add_u32 s25, s25, s24")

def setup_final(BM, BN):
    def f(k):
        nn = 1024 // BN
        k(f"s_and_b32 s24, s2, {nn-1}"); k(f"s_mul_i32 s24, s24, {BN}")
        k(f"s_lshr_b32 s23, s2, {nn.bit_length()-1}"); k(f"s_lshl_b32 s23, s23, {BM.bit_length()-1}")
        k.srd(8, 80, 2048 * CATP, CAT_OFF)
        k.srd(12, 68, 1024 * 2048); k.srd(28, 80, 4 * 2048 * 4096, PART_OFF)
        k.srd(16, 76, 2048 * 2048); k.srd(32, 64, 2048 * 2048)
        k("s_mov_b32 s20, 2048"); k("s_mov_b32 s21, 2048"); k("s_mov_b32 s25, s24")
        k("s_mov_b32 s36, 0"); k("s_mov_b32 s37, 0"); k(f"s_mov_b32 s39, {2048*4096}"); k(f"s_mov_b32 s50, {2*2048*4096}"); k(f"s_mov_b32 s51, {3*2048*4096}")
    return f

def attn_body(k, wgid="s2"):
    Q, ONE, KF, VF, S, P, O, Lr, MB = 24, 20, 32, 48, 64, 128, 160, 176, 192
    k("v_lshrrev_b32 v1, 6, v0"); k("v_and_b32 v0, 63, v0"); k("s_nop 0")
    k("v_readfirstlane_b32 s4, v1")
    k(f"s_and_b32 s5, {wgid}, 31"); k(f"s_lshr_b32 s6, {wgid}, 5")
    k.srd(8, 80, 2048 * QKVP, QKV_OFF); k.srd(16, 80, 2048 * CATP, CAT_OFF)
    k("v_and_b32 v12, 31, v0"); k("v_lshrrev_b32 v13, 5, v0")
    k("s_lshl_b32 s7, s6, 7"); k("s_lshl_b32 s20, s4, 5"); k("s_add_u32 s7, s7, s20")
    k("v_add_u32 v14, s7, v12")
    k(f"s_mov_b32 s21, {QKVP}"); k("v_mul_lo_u32 v15, v14, s21")
    k("s_lshl_b32 s22, s5, 6"); k("v_add_u32 v15, s22, v15"); k("v_lshl_add_u32 v15, v13, 4, v15")
    k(f"buffer_load_dwordx4 v[{Q}:{Q+3}], v15, s[8:11], 0 offen")
    k(f"buffer_load_dwordx4 v[{Q+4}:{Q+7}], v15, s[8:11], 0 offen offset:32")
    k("v_lshrrev_b32 v4, 2, v0"); k("s_lshl_b32 s7, s4, 4"); k("v_add_u32 v4, s7, v4")
    k("v_mul_lo_u32 v4, v4, s21"); k("v_add_u32 v4, s22, v4")
    k("v_and_b32 v5, 3, v0"); k("v_lshrrev_b32 v6, 4, v0"); k("v_xor_b32 v6, v6, v5")
    k("v_lshl_add_u32 v2, v6, 4, v4"); k("v_add_u32 v2, 2048, v2")
    k("v_lshl_add_u32 v3, v5, 4, v4"); k("v_add_u32 v3, 4096, v3")
    k("v_lshrrev_b32 v7, 2, v0"); k("v_and_b32 v7, 3, v7")
    for kk in range(2):
        k(f"v_add_u32 v8, {2*kk}, v13"); k("v_xor_b32 v8, v8, v7"); k("v_lshlrev_b32 v8, 4, v8")
        k(f"v_lshl_add_u32 v{4+kk}, v12, 6, v8")
    k("v_lshl_add_u32 v8, v13, 2, v7"); k("v_lshlrev_b32 v8, 6, v8")
    k("v_lshrrev_b32 v9, 4, v0"); k("v_and_b32 v9, 1, v9"); k("v_lshl_add_u32 v8, v9, 5, v8")
    k("v_and_b32 v9, 3, v0"); k("v_lshl_add_u32 v8, v9, 3, v8"); k("v_add_u32 v6, 8192, v8")
    for i in range(4): k(f"v_mov_b32 v{ONE+i}, 0x3f803f80")
    for i in range(32): k(f"v_mov_b32 v{O+i}, 0")
    k("v_mov_b32 v10, 0")
    k("s_mov_b32 s40, 0"); k("s_mov_b32 s41, 0"); k("s_lshl_b32 s44, s4, 10"); k("s_mov_b32 s45, 0")
    k("s_mov_b32 s30, 0x3e8293ee")
    k("s_mov_b64 s[34:35], 0"); k("s_mov_b32 s31, 0x41000000")
    BLK = 64 * QKVP
    def dmaK(par):
        k(f"s_add_u32 m0, s44, {par*4096}"); k("s_nop 0")
        k("buffer_load_dwordx4 v2, s[8:11], s40 offen lds"); k(f"s_add_u32 s40, s40, {BLK}")
    def dmaV(par):
        k(f"s_add_u32 m0, s44, {8192+par*4096}"); k("s_nop 0")
        k("buffer_load_dwordx4 v3, s[8:11], s41 offen lds"); k(f"s_add_u32 s41, s41, {BLK}")
    def readK(par):
        for kt in range(2):
            for kk in range(2):
                b = KF + (kt * 2 + kk) * 4
                k(f"ds_read_b128 v[{b}:{b+3}], v{4+kk} offset:{par*4096+kt*2048}")
    def readV(par):
        for b in range(4):
            r = VF + b * 4
            k(f"ds_read_b64_tr_b16 v[{r}:{r+1}], v6 offset:{par*4096+b*1024}")
            k(f"ds_read_b64_tr_b16 v[{r+2}:{r+3}], v6 offset:{par*4096+b*1024+512}")
    def mfA(par, first=False):
        r = []
        for kt in range(2):
            b = KF + kt * 8; s = S + par * 32 + kt * 16
            c = "0" if first else f"v[{MB}:{MB+15}]"
            r.append(f"v_mfma_f32_32x32x16_bf16 v[{s}:{s+15}], v[{b}:{b+3}], v[{Q}:{Q+3}], {c}")
            r.append(f"v_mfma_f32_32x32x16_bf16 v[{s}:{s+15}], v[{b+4}:{b+7}], v[{Q+4}:{Q+7}], v[{s}:{s+15}]")
        return r
    def mfC(par):
        r = []
        for b in range(4):
            p = P + par * 16 + b * 4
            r.append(f"v_mfma_f32_32x32x16_bf16 v[{O}:{O+15}], v[{VF+b*4}:{VF+b*4+3}], v[{p}:{p+3}], v[{O}:{O+15}]")
            r.append(f"v_mfma_f32_32x32x16_bf16 v[{Lr}:{Lr+15}], v[{ONE}:{ONE+3}], v[{p}:{p+3}], v[{Lr}:{Lr+15}]")
        return r
    def maxB(par, first):
        s = S + par * 32
        k(f"v_max3_f32 v11, v{s}, v{s+1}, v{s+2}")
        k(f"v_max3_f32 v9, v{s+15}, v{s+16}, v{s+17}")
        for i in range(6):
            k(f"v_max3_f32 v11, v11, v{s+3+2*i}, v{s+4+2*i}")
            k(f"v_max3_f32 v9, v9, v{s+18+2*i}, v{s+19+2*i}")
        k(f"v_max3_f32 v9, v9, v{s+30}, v{s+31}")
        k("v_max_f32 v11, v11, v9"); k("v_mov_b32 v9, v11"); k("s_nop 1"); k("v_permlane32_swap_b32 v11, v9")
        k("v_max_f32 v11, v11, v9")
        sk = k.new("nochg")
        if not first:
            k("v_cmp_lt_f32 s[34:35], s31, v11")
            k("v_max_f32 v11, 0, v11")
            k("s_cmp_eq_u64 s[34:35], 0"); k(f"s_cbranch_scc1 {sk}")
        for i in range(32): k(f"v_sub_f32 v{s+i}, v{s+i}, v11")
        k("v_add_f32 v10, v10, v11"); k("v_exp_f32 v17, -v11")
        for i in range(16): k(f"v_sub_f32 v{MB+i}, 0, v10")
        k.label(sk)
    def valuB(par):
        s = S + par * 32; p = P + par * 16; r = []
        for g in range(5):
            if g < 4:
                for i in range(8): r.append(f"v_exp_f32 v{s+8*g+i}, v{s+8*g+i}")
            if g > 0:
                for i in range(4): r.append(f"v_cvt_pk_bf16_f32 v{p+4*(g-1)+i}, v{s+8*(g-1)+2*i}, v{s+8*(g-1)+2*i+1}")
        return r
    def rescale():
        sk = k.new("skip")
        k("s_cmp_eq_u64 s[34:35], 0"); k(f"s_cbranch_scc1 {sk}")
        for i in range(17): k(f"v_mul_f32 v{O+i}, v{O+i}, v17")
        k.label(sk)
    def body(par, doA, doB, doC, first=False):
        k("s_waitcnt vmcnt(0)"); k("s_barrier")
        if doA: readK(1 - par)
        if doC: readV(1 - par)
        if doA: dmaK(par)
        if doB: dmaV(par)
        if doC: rescale()
        mf = []
        if doA: mf += [("s_waitcnt lgkmcnt(%d)" % (8 if doC else 0), m) if i == 0 else (None, m) for i, m in enumerate(mfA(1 - par))]
        if doC: mf += [("s_waitcnt lgkmcnt(0)", m) if i == 0 else (None, m) for i, m in enumerate(mfC(1 - par))]
        if doB: maxB(par, first)
        va = valuB(par) if doB else []
        step = max(1, (len(va) - 6) // max(1, len(mf)))
        pos = 2
        for i, v in enumerate(va):
            if mf and i == pos:
                w, m = mf.pop(0)
                if w: k(w)
                k(m); pos += step
            k(v)
        for w, m in mf:
            if w: k(w)
            k(m)
    dmaK(0); dmaK(1)
    k("s_waitcnt vmcnt(0)"); k("s_barrier")
    readK(0); k("s_waitcnt lgkmcnt(0)")
    for m in mfA(0, True): k(m)
    k("s_nop 7"); k("s_nop 3")
    body(0, True, True, False, True)
    lp = k.new("loop"); k.label(lp)
    body(1, True, True, True)
    body(0, True, True, True)
    k("s_add_u32 s45, s45, 1"); k("s_cmp_lt_u32 s45, 15"); k(f"s_cbranch_scc1 {lp}")
    body(1, False, True, True)
    body(0, False, False, True)
    k("s_waitcnt vmcnt(0)")
    k(f"s_mov_b32 s21, {CATP}"); k("v_mul_lo_u32 v15, v14, s21"); k("v_add_u32 v15, s22, v15")
    k("v_lshl_add_u32 v15, v13, 4, v15")
    k("s_nop 7"); k("s_nop 7")
    k(f"v_rcp_f32 v9, v{Lr}"); k("s_nop 0")
    for i in range(16): k(f"v_mul_f32 v{O+i}, v{O+i}, v9")
    for j in range(8): k(f"v_cvt_pk_bf16_f32 v{O+j}, v{O+2*j}, v{O+2*j+1}")
    k("s_nop 1")
    for qq in range(2):
        b = O + 4 * qq
        k(f"v_permlane32_swap_b32 v{b}, v{b+2}"); k(f"v_permlane32_swap_b32 v{b+1}, v{b+3}")
    for qq in range(2):
        k(f"buffer_store_dwordx4 v[{O+4*qq}:{O+4*qq+3}], v15, s[16:19], 0 offen offset:{qq*32}")
    return 208

def mid_kernel():
    k = K("mid_kernel")
    load_args(k)
    k("s_cmp_ge_u32 s2, 1024"); k("s_cbranch_scc1 mid_kernel_end")
    k("s_waitcnt lgkmcnt(0)")
    k("s_bitcmp0_b32 s2, 8"); k("s_cbranch_scc1 mid_kernel_attn")
    import os
    if "A" in os.environ.get("XP", ""): k("s_endpgm")
    nv, lds = gemm_body(k, 128, 128, 2, 2, setup_ffn2, CATP, 14, 'f32')
    k("s_endpgm")
    k.label("mid_kernel_attn")
    k("s_lshr_b32 s3, s2, 9"); k("s_lshl_b32 s3, s3, 8"); k("s_and_b32 s7, s2, 255"); k("s_add_u32 s3, s3, s7")
    nv2 = attn_body(k, "s3")
    k.label("mid_kernel_end"); k("s_endpgm")
    return k.text(max(nv, nv2)), max(lds, 16384)

def main():
    out = sys.argv[1] if len(sys.argv) > 1 else f"cdna_kernels/{NAME}.s"
    hdr = [l for l in open(f"cdna_kernels/{NAME}.s.ref").read().split("\n") if l.startswith(";") and "@launch" not in l]
    g1, lds1 = simple_kernel("gemm1_kernel", 208, lambda k: gemm_body(k, 256, 256, 4, 2, setup_g1(256, 256), 2048, 16, 'bf16'))
    md, ldsm = mid_kernel()
    g2, lds2 = simple_kernel("final_kernel", 256, lambda k: gemm_body(k, 128, 64, 2, 2, setup_final(128, 64), CATP, 16, 'final', NS=4))
    hdr += ["; @launch kernel=ln_kernel grid=(512,1,1) block=(256,1,1) lds=0",
            f"; @launch kernel=gemm1_kernel grid=(208,1,1) block=(512,1,1) lds={lds1}",
            f"; @launch kernel=mid_kernel grid=(1024,1,1) block=(256,1,1) lds={ldsm}",
            f"; @launch kernel=final_kernel grid=(256,1,1) block=(256,1,1) lds={lds2}"]
    txt = "\n".join(hdr) + "\n.amdgcn_target \"amdgcn-amd-amdhsa--gfx950\"\n" + ln_kernel() + g1 + md + g2
    open(out, "w").write(txt)
main()
```

```python
import sys
NAME = "parallel_sum__mha_block__dense_activation_relu__prompt"
XN_OFF, QKV_OFF, CAT_OFF = 0, 0x400000, 0x1000000
WS_BYTES = 268435456
CATP = 4608 * 2
QKVP = 3072 * 2

class K:
    def __init__(s, name): s.name = name; s.L = []; s.uid = 0
    def __call__(s, t=""):
        import os
        X = os.environ.get("XP", "")
        if s.name == "mid_kernel":
            if "e" in X and t.startswith("v_exp_f32"): t = t.replace("v_exp_f32", "v_mov_b32")
            if "m" in X and t.startswith("v_mfma"): return
            if "b" in X and t.startswith("s_barrier"): return
            if "d" in X and t.startswith("buffer_load") and t.endswith("lds"): return
            if "v" in X and (t.startswith("v_fma") or t.startswith("v_exp") or t.startswith("v_cvt") or t.startswith("v_max3")): return
            if "l" in X and t.startswith("ds_read"): return
        s.L.append("    " + t)
    def label(s, l): s.L.append(l + ":")
    def new(s, p): s.uid += 1; return f"{s.name}_{p}{s.uid}"
    def srd(s, d, lo, nbytes, add=0):
        if add:
            s(f"s_add_u32 s{d}, s{lo}, 0x{add:x}"); s(f"s_addc_u32 s{d+1}, s{lo+1}, 0")
        else:
            s(f"s_mov_b32 s{d}, s{lo}"); s(f"s_mov_b32 s{d+1}, s{lo+1}")
        s(f"s_and_b32 s{d+1}, s{d+1}, 0xffff")
        s(f"s_mov_b32 s{d+2}, 0x{nbytes:x}"); s(f"s_mov_b32 s{d+3}, 0x00020000")
    def text(s, vgpr, agpr=0, sgpr=100):
        acc = (vgpr + 3) // 4 * 4
        nf = vgpr if agpr == 0 else acc + agpr
        h = [".text", f".globl {s.name}", ".p2align 8", f".type {s.name},@function", f"{s.name}:"]
        d = [".section .rodata,\"a\"", ".p2align 6", f".amdhsa_kernel {s.name}",
             f"  .amdhsa_next_free_vgpr {nf}", f"  .amdhsa_next_free_sgpr {sgpr}",
             f"  .amdhsa_accum_offset {acc}", "  .amdhsa_group_segment_fixed_size 0",
             "  .amdhsa_kernarg_size 72", "  .amdhsa_user_sgpr_count 2",
             "  .amdhsa_user_sgpr_kernarg_segment_ptr 1", "  .amdhsa_system_sgpr_workgroup_id_x 1",
             ".end_amdhsa_kernel"]
        return "\n".join(h + s.L + d) + "\n"

def load_args(k):
    k("s_load_dwordx16 s[64:79], s[0:1], 0")
    k("s_load_dwordx2 s[80:81], s[0:1], 64")

def wave_sum(k, v, t, sa, sb):
    for o in (0x041F, 0x081F, 0x101F, 0x201F, 0x401F):
        k(f"ds_swizzle_b32 v{t}, v{v} offset:0x{o:x}"); k("s_waitcnt lgkmcnt(0)")
        k(f"v_add_f32 v{v}, v{v}, v{t}")
    k("s_nop 0")
    k(f"v_readlane_b32 s{sa}, v{v}, 0"); k(f"v_readlane_b32 s{sb}, v{v}, 32"); k("s_nop 1")
    k(f"v_mov_b32 v{v}, s{sa}"); k(f"v_add_f32 v{v}, s{sb}, v{v}")

def rbf(k, v, t):
    k(f"v_cvt_pk_bf16_f32 v{t}, v{v}, v{v}"); k(f"v_lshlrev_b32 v{v}, 16, v{t}")

def ln_kernel():
    k = K("ln_kernel")
    load_args(k)
    k("s_cmp_ge_u32 s2, 512"); k(f"s_cbranch_scc1 ln_kernel_end")
    k("v_lshrrev_b32 v1, 6, v0")
    k("v_and_b32 v2, 63, v0")
    k("s_lshl_b32 s3, s2, 2")
    k("v_add_u32 v1, s3, v1")
    k("v_lshlrev_b32 v1, 11, v1")
    k("v_lshl_add_u32 v1, v2, 4, v1")
    k("s_waitcnt lgkmcnt(0)")
    k.srd(8, 64, 2048 * 2048)
    k.srd(12, 80, 2048 * 2048, XN_OFF)
    k("buffer_load_dwordx4 v[4:7], v1, s[8:11], 0 offen")
    k("buffer_load_dwordx4 v[8:11], v1, s[8:11], 0 offen offset:1024")
    k("s_waitcnt vmcnt(0)")
    for i in range(8):
        k(f"v_lshlrev_b32 v{16+2*i}, 16, v{4+i}"); k(f"v_and_b32 v{17+2*i}, 0xffff0000, v{4+i}")
    k("v_add_f32 v32, v16, v17")
    for i in range(2, 16): k(f"v_add_f32 v32, v32, v{16+i}")
    wave_sum(k, 32, 33, 20, 21)
    k("v_mul_f32 v32, 0x3a800000, v32")
    k("v_sub_f32 v34, v16, v32"); k("v_mul_f32 v35, v34, v34")
    for i in range(1, 16):
        k(f"v_sub_f32 v34, v{16+i}, v32"); k("v_fmac_f32 v35, v34, v34")
    wave_sum(k, 35, 33, 20, 21)
    k("v_mul_f32 v35, 0x3a800000, v35")
    rbf(k, 35, 33); rbf(k, 32, 33)
    k("v_add_f32 v35, 0x3727c5ac, v35"); rbf(k, 35, 33)
    k("v_sqrt_f32 v35, v35"); k("s_nop 0"); rbf(k, 35, 33)
    k("v_rcp_f32 v35, v35"); k("s_nop 0")
    for i in range(16):
        k(f"v_sub_f32 v{16+i}, v{16+i}, v32")
    for i in range(8):
        k(f"v_cvt_pk_bf16_f32 v33, v{16+2*i}, v{17+2*i}")
        k(f"v_lshlrev_b32 v{16+2*i}, 16, v33"); k(f"v_and_b32 v{17+2*i}, 0xffff0000, v33")
        k(f"v_mul_f32 v{16+2*i}, v{16+2*i}, v35"); k(f"v_mul_f32 v{17+2*i}, v{17+2*i}, v35")
        k(f"v_cvt_pk_bf16_f32 v{4+i}, v{16+2*i}, v{17+2*i}")
    k("buffer_store_dwordx4 v[4:7], v1, s[12:15], 0 offen")
    k("buffer_store_dwordx4 v[8:11], v1, s[12:15], 0 offen offset:1024")
    k.label("ln_kernel_end"); k("s_endpgm")
    return k.text(40)

def gemm_body(k, BM, BN, WM, WN, setup, pitchA, ksteps, mode, NS=2):
    NW = WM * WN; TM = BM // WM // 32; TN = BN // WN // 32
    ABY = BM * 128; RB = BN * 2; BBY = 64 * RB
    STG = ABY + BBY
    IA = BM // 8 // NW; IB = BN // 8 // NW
    CPR = BN // 8; RPI = 1024 // RB
    k("v_lshrrev_b32 v1, 6, v0"); k("v_and_b32 v0, 63, v0"); k("s_nop 0")
    k("v_readfirstlane_b32 s4, v1")
    setup(k)
    k(f"s_lshr_b32 s5, s4, {WN.bit_length()-1}")
    k(f"s_and_b32 s6, s4, {WN-1}")
    k("v_lshrrev_b32 v3, 3, v0"); k("s_lshl_b32 s7, s4, 3"); k("s_add_u32 s7, s7, s23")
    k("v_add_u32 v3, s7, v3"); k(f"s_mov_b32 s7, {pitchA}"); k("v_mul_lo_u32 v2, v3, s7")
    k("s_and_b32 s7, s4, 1"); k("s_lshl_b32 s7, s7, 2")
    k("v_lshrrev_b32 v3, 4, v0"); k("v_add_u32 v3, s7, v3"); k("v_and_b32 v3, 7, v3")
    k("v_and_b32 v4, 7, v0"); k("v_xor_b32 v3, v3, v4"); k("v_lshl_add_u32 v2, v3, 4, v2")
    k(f"v_lshrrev_b32 v4, {CPR.bit_length()-1}, v0"); k(f"s_mul_i32 s7, s4, {RPI}")
    k("v_add_u32 v4, s7, v4")
    k("v_mul_lo_u32 v3, v4, s20")
    if BN >= 128: k("v_and_b32 v4, 3, v4"); k("v_lshlrev_b32 v4, 2, v4")
    else: k("v_lshrrev_b32 v4, 1, v4"); k("v_and_b32 v4, 1, v4"); k("v_lshlrev_b32 v4, 2, v4")
    k(f"v_and_b32 v5, {CPR-1}, v0"); k("v_xor_b32 v4, v4, v5"); k("v_lshl_add_u32 v3, v4, 4, v3")
    k("s_lshl_b32 s7, s24, 1"); k("v_add_u32 v3, s7, v3")
    k("v_and_b32 v12, 31, v0"); k("v_lshrrev_b32 v13, 5, v0")
    k(f"s_mul_i32 s7, s5, {TM*32*128}")
    k("v_lshlrev_b32 v14, 7, v12"); k("v_add_u32 v14, s7, v14")
    k("v_lshrrev_b32 v15, 1, v0"); k("v_and_b32 v15, 7, v15")
    for kk in range(4):
        k(f"v_add_u32 v16, {2*kk}, v13"); k("v_xor_b32 v16, v16, v15"); k(f"v_lshl_add_u32 v{4+kk}, v16, 4, v14")
    k("v_lshrrev_b32 v14, 2, v0"); k("v_and_b32 v14, 3, v14")
    k("v_lshl_add_u32 v15, v13, 3, v14")
    k(f"s_mov_b32 s7, {RB}"); k("v_mul_lo_u32 v15, v15, s7")
    k("v_lshrrev_b32 v16, 4, v0"); k("v_and_b32 v16, 1, v16"); k("v_lshl_add_u32 v15, v16, 5, v15")
    k("v_and_b32 v16, 3, v0"); k("v_lshl_add_u32 v15, v16, 3, v15")
    k(f"v_add_u32 v15, {ABY}, v15")
    NB = 4 if BN >= 128 else 2
    if BN < 128: k("v_lshrrev_b32 v14, 1, v14")
    k(f"s_mul_i32 s7, s6, {TN}")
    NREG = min(TN, NB)
    for i in range(NREG):
        k(f"s_add_u32 s26, s7, {i}")
        k(f"s_and_b32 s27, s26, {NB-1}"); k(f"v_xor_b32 v16, s27, v14")
        k(f"s_andn2_b32 s26, s26, {NB-1}"); k("v_add_u32 v16, s26, v16")
        k(f"v_lshl_add_u32 v{8+i}, v16, 6, v15")
    assert TN <= NB or (TN % NB == 0)
    ACC = 128 if TM * TN > 4 else 80
    FR = 28; AB = 20
    nfr = (TM + TN) * 4
    for i in range(TM * TN * 16): k(f"v_mov_b32 v{ACC+i}, 0")
    k("s_mov_b32 s40, s36")
    k("s_mov_b32 s41, s37")
    k(f"s_lshl_b32 s42, s20, 6")
    k(f"s_mul_i32 s43, s20, {NW*RPI}")
    k(f"s_lshl_b32 s44, s4, 10")
    k("s_mov_b32 s45, 0")
    def dma_list():
        r = []
        for t in range(IA):
            r.append([f"s_add_u32 s46, s40, {t*NW*8*pitchA}", f"s_add_u32 m0, s44, {t*NW*1024}", "s_nop 0",
                      "buffer_load_dwordx4 v2, s[8:11], s46 offen lds"])
        for t in range(IB):
            r.append([f"s_add_u32 m0, s44, {ABY + t*NW*1024}",
                      "s_add_u32 s49, s49, s43" if t else "s_mov_b32 s49, s41",
                      "buffer_load_dwordx4 v3, s[12:15], s49 offen lds"])
        r[-1] += ["s_add_u32 s40, s40, 128", "s_add_u32 s41, s41, s42", f"s_add_u32 s44, s44, {STG}",
                  f"s_cmp_ge_u32 s44, {NS*STG}", f"s_cselect_b32 s46, {NS*STG}, 0", "s_sub_u32 s44, s44, s46"]
        return r
    def dma():
        for g in dma_list():
            for t in g: k(t)
    def reads(kk, buf):
        b = FR + buf * nfr
        for tn in range(TN):
            o = kk * 16 * RB + (tn // NB) * NB * 64
            k(f"ds_read_b64_tr_b16 v[{b+tn*4}:{b+tn*4+1}], v{8+tn%NB} offset:{o}")
            k(f"ds_read_b64_tr_b16 v[{b+tn*4+2}:{b+tn*4+3}], v{8+tn%NB} offset:{o+4*RB}")
        for tm in range(TM):
            k(f"ds_read_b128 v[{b+TN*4+tm*4}:{b+TN*4+tm*4+3}], v{4+kk} offset:{tm*4096}")
    def mfmas(buf, extra):
        b = FR + buf * nfr
        for tm in range(TM):
            for tn in range(TN):
                a = ACC + (tm * TN + tn) * 16
                k(f"v_mfma_f32_32x32x16_bf16 v[{a}:{a+15}], v[{b+tn*4}:{b+tn*4+3}], v[{b+TN*4+tm*4}:{b+TN*4+tm*4+3}], v[{a}:{a+15}]")
                if extra:
                    for t in extra.pop(0): k(t)
    def epi_addr():
        k(f"s_mul_i32 s7, s5, {TM*32}"); k("s_add_u32 s7, s7, s23")
        k("v_add_u32 v14, s7, v12")
        k("v_mul_lo_u32 v15, v14, s21")
        k(f"s_mul_i32 s7, s6, {TN*32}"); k("s_add_u32 s7, s7, s25")
        esz = 2 if mode == 'f32' else 1
        k(f"s_lshl_b32 s7, s7, {esz}")
        k("v_add_u32 v15, s7, v15"); k("v_lshl_add_u32 v16, v13, 4, v15")
        k("v_lshl_add_u32 v17, v13, 3, v15")
        k("v_lshlrev_b32 v18, 1, v17")
        k("s_lshl_b32 s47, s21, 5")
    NPART = 2; PB = ACC + TM * TN * 16; PSZ = 8 + 16 * NPART
    if mode == 'final':
        epi_addr()
        for tm in range(TM):
            if tm:
                k("v_add_u32 v17, s47, v17"); k("v_lshlrev_b32 v18, 1, v17")
            for tn in range(TN):
                X = PB + (tm * TN + tn) * PSZ
                for q in range(4):
                    k(f"buffer_load_dwordx2 v[{X+2*q}:{X+2*q+1}], v17, s[32:35], 0 offen offset:{tn*64+q*16}")
                    for pi in range(NPART):
                        so = ["0", "s39", "s50", "s51"][pi]
                        R = X + 8 + 16 * pi + 4 * q
                        k(f"buffer_load_dwordx4 v[{R}:{R+3}], v18, s[28:31], {so} offen offset:{tn*128+q*32}")
    ND = IA + IB
    for i in range(4 + NREG): k(f"v_mov_b32 v{AB+i}, v{4+i}")
    k("s_mov_b32 s48, 0")
    for i in range(NS - 1): dma()
    lp = k.new("loop"); k.label(lp)
    k(f"s_waitcnt vmcnt({(NS-2)*ND})"); k("s_barrier")
    k("s_add_u32 s45, s45, 1")
    reads(0, 0)
    nrd = 2 * TN + TM
    dl = dma_list()
    per = max((ND + 3) // 4, min(ND, TM * TN))
    for kk in range(4):
        if kk < 3:
            reads(kk + 1, (kk + 1) % 2); k(f"s_waitcnt lgkmcnt({nrd})")
        else: k("s_waitcnt lgkmcnt(0)")
        ex = dl[:per]; dl = dl[per:]
        mfmas(kk % 2, ex)
        assert not ex
    k(f"s_add_u32 s48, s48, {STG}"); k(f"s_cmp_ge_u32 s48, {NS*STG}"); k("s_cselect_b32 s48, 0, s48")
    for i in range(4 + NREG): k(f"v_add_u32 v{4+i}, s48, v{AB+i}")
    k(f"s_cmp_lt_u32 s45, {ksteps}"); k(f"s_cbranch_scc1 {lp}")
    k("s_waitcnt vmcnt(0)")
    epi_addr()
    k("s_nop 7"); k("s_nop 7")
    for tm in range(TM):
        if tm:
            k("v_add_u32 v16, s47, v16"); k("v_add_u32 v17, s47, v17"); k("v_lshlrev_b32 v18, 1, v17")
        if mode == 'f32':
            for tn in range(TN):
                a = ACC + (tm * TN + tn) * 16
                for q in range(4):
                    k(f"buffer_store_dwordx4 v[{a+4*q}:{a+4*q+3}], v16, s[16:19], 0 offen offset:{tn*128+q*32}")
            continue
        for tn in range(TN):
            a = ACC + (tm * TN + tn) * 16
            if mode == 'final':
                X = PB + (tm * TN + tn) * PSZ; P0 = X + 8; P1 = X + 24
                for j in range(16):
                    k(f"v_add_f32 v{P0+j}, v{P0+j}, v{P1+j}")
                for j in range(8):
                    k(f"v_lshlrev_b32 v{P1+2*j}, 16, v{X+j}"); k(f"v_and_b32 v{P1+2*j+1}, 0xffff0000, v{X+j}")
                for j in range(16):
                    k(f"v_add_f32 v{a+j}, v{a+j}, v{P1+j}"); k(f"v_add_f32 v{a+j}, v{a+j}, v{P0+j}")
            else:
                for j in range(16):
                    k(f"v_max_f32 v{a+j}, s22, v{a+j}"); k(f"v_mul_f32 v{a+j}, s38, v{a+j}")
            for j in range(8): k(f"v_cvt_pk_bf16_f32 v{a+j}, v{a+2*j}, v{a+2*j+1}")
            k("s_nop 1")
            for qq in range(2):
                b = a + 4 * qq
                k(f"v_permlane32_swap_b32 v{b}, v{b+2}"); k(f"v_permlane32_swap_b32 v{b+1}, v{b+3}")
            for qq in range(2):
                b = a + 4 * qq
                k(f"buffer_store_dwordx4 v[{b}:{b+3}], v16, s[16:19], 0 offen offset:{tn*64+qq*32}")
    return (PB + TM * TN * PSZ if mode == 'final' else ACC + TM * TN * 16), STG * NS

def simple_kernel(name, nwg, fn):
    k = K(name)
    load_args(k)
    k(f"s_cmp_ge_u32 s2, {nwg}"); k(f"s_cbranch_scc1 {name}_end")
    k("s_waitcnt lgkmcnt(0)")
    nv, lds = fn(k)
    k.label(f"{name}_end"); k("s_endpgm")
    return k.text(nv), lds

def setup_g1(BM, BN):
    nq = 3072 // BN; nt = 6656 // BN
    def f(k):
        k("s_and_b32 s23, s2, 7"); k("s_mul_i32 s23, s23, 26"); k("s_lshr_b32 s24, s2, 3"); k("s_add_u32 s24, s24, s23")
        k("s_and_b32 s23, s24, 7"); k("s_lshl_b32 s23, s23, 8")
        k("s_lshr_b32 s24, s24, 3"); k("s_lshl_b32 s24, s24, 8")
        k.srd(8, 80, 2048 * 2048, XN_OFF)
        k("s_mov_b32 s36, 0"); k("s_mov_b32 s37, 0"); k("s_mov_b32 s38, 1.0")
        l1, l2 = k.new("ffn"), k.new("j")
        k("s_cmp_ge_u32 s24, 3072"); k(f"s_cbranch_scc1 {l1}")
        k.srd(12, 66, 1024 * 6144); k.srd(16, 80, 2048 * QKVP, QKV_OFF)
        k("s_mov_b32 s20, 6144"); k(f"s_mov_b32 s21, {QKVP}"); k("s_mov_b32 s22, 0xff800000"); k("s_mov_b32 s25, s24")
        k("s_cmp_lt_u32 s24, 1024"); k("s_cselect_b32 s38, 0x3e8293ee, s38")
        k(f"s_branch {l2}")
        k.label(l1)
        k.srd(12, 72, 1024 * 7168); k.srd(16, 80, 2048 * CATP, CAT_OFF)
        k("s_mov_b32 s20, 7168"); k(f"s_mov_b32 s21, {CATP}"); k("s_mov_b32 s22, 0")
        k("s_sub_u32 s24, s24, 3072"); k("s_add_u32 s25, s24, 1024")
        k.label(l2)
    return f

PART_OFF = 0x2400000
def setup_ffn2(k):
    k("s_lshr_b32 s7, s2, 3")
    k("s_and_b32 s23, s7, 7"); k("s_lshr_b32 s24, s2, 1"); k("s_and_b32 s24, s24, 1"); k("s_lshl_b32 s24, s24, 3")
    k("s_add_u32 s23, s23, s24"); k("s_lshl_b32 s23, s23, 7")
    k("s_lshr_b32 s24, s7, 3"); k("s_and_b32 s7, s2, 1"); k("s_lshl_b32 s7, s7, 2"); k("s_add_u32 s24, s24, s7"); k("s_lshl_b32 s24, s24, 7")
    k("s_lshr_b32 s7, s2, 2"); k("s_and_b32 s7, s7, 1")
    k.srd(8, 80, 2048 * CATP, CAT_OFF); k.srd(12, 74, 3584 * 2048)
    k.srd(16, 80, 2 * 2048 * 4096, PART_OFF)
    k("s_mul_i32 s36, s7, 3584"); k("s_add_u32 s36, s36, 2048")
    k(f"s_mul_i32 s37, s7, {1792*2048}")
    k("s_mov_b32 s20, 2048"); k("s_mov_b32 s21, 4096")
    k(f"s_mul_i32 s25, s7, {2048*1024}"); k("s_add_u32 s25, s25, s24")

def setup_final(BM, BN):
    def f(k):
        nn = 1024 // BN
        k(f"s_and_b32 s24, s2, {nn-1}"); k(f"s_mul_i32 s24, s24, {BN}")
        k(f"s_lshr_b32 s23, s2, {nn.bit_length()-1}"); k(f"s_lshl_b32 s23, s23, {BM.bit_length()-1}")
        k.srd(8, 80, 2048 * CATP, CAT_OFF)
        k.srd(12, 68, 1024 * 2048); k.srd(28, 80, 2 * 2048 * 4096, PART_OFF)
        k.srd(16, 76, 2048 * 2048); k.srd(32, 64, 2048 * 2048)
        k("s_mov_b32 s20, 2048"); k("s_mov_b32 s21, 2048"); k("s_mov_b32 s25, s24")
        k("s_mov_b32 s36, 0"); k("s_mov_b32 s37, 0"); k(f"s_mov_b32 s39, {2048*4096}"); k(f"s_mov_b32 s50, {2*2048*4096}"); k(f"s_mov_b32 s51, {3*2048*4096}")
    return f

def attn_body(k, wgid="s2"):
    Q, ONE, KF, VF, S, P, O, Lr, MB = 24, 20, 32, 48, 64, 128, 160, 176, 192
    k("v_lshrrev_b32 v1, 6, v0"); k("v_and_b32 v0, 63, v0"); k("s_nop 0")
    k("v_readfirstlane_b32 s4, v1")
    k(f"s_and_b32 s5, {wgid}, 31"); k(f"s_lshr_b32 s6, {wgid}, 5")
    k.srd(8, 80, 2048 * QKVP, QKV_OFF); k.srd(16, 80, 2048 * CATP, CAT_OFF)
    k("v_and_b32 v12, 31, v0"); k("v_lshrrev_b32 v13, 5, v0")
    k("s_lshl_b32 s7, s6, 7"); k("s_lshl_b32 s20, s4, 5"); k("s_add_u32 s7, s7, s20")
    k("v_add_u32 v14, s7, v12")
    k(f"s_mov_b32 s21, {QKVP}"); k("v_mul_lo_u32 v15, v14, s21")
    k("s_lshl_b32 s22, s5, 6"); k("v_add_u32 v15, s22, v15"); k("v_lshl_add_u32 v15, v13, 4, v15")
    k(f"buffer_load_dwordx4 v[{Q}:{Q+3}], v15, s[8:11], 0 offen")
    k(f"buffer_load_dwordx4 v[{Q+4}:{Q+7}], v15, s[8:11], 0 offen offset:32")
    k("v_lshrrev_b32 v4, 2, v0"); k("s_lshl_b32 s7, s4, 4"); k("v_add_u32 v4, s7, v4")
    k("v_mul_lo_u32 v4, v4, s21"); k("v_add_u32 v4, s22, v4")
    k("v_and_b32 v5, 3, v0"); k("v_lshrrev_b32 v6, 4, v0"); k("v_xor_b32 v6, v6, v5")
    k("v_lshl_add_u32 v2, v6, 4, v4"); k("v_add_u32 v2, 2048, v2")
    k("v_lshl_add_u32 v3, v5, 4, v4"); k("v_add_u32 v3, 4096, v3")
    k("v_lshrrev_b32 v7, 2, v0"); k("v_and_b32 v7, 3, v7")
    for kk in range(2):
        k(f"v_add_u32 v8, {2*kk}, v13"); k("v_xor_b32 v8, v8, v7"); k("v_lshlrev_b32 v8, 4, v8")
        k(f"v_lshl_add_u32 v{4+kk}, v12, 6, v8")
    k("v_lshl_add_u32 v8, v13, 2, v7"); k("v_lshlrev_b32 v8, 6, v8")
    k("v_lshrrev_b32 v9, 4, v0"); k("v_and_b32 v9, 1, v9"); k("v_lshl_add_u32 v8, v9, 5, v8")
    k("v_and_b32 v9, 3, v0"); k("v_lshl_add_u32 v8, v9, 3, v8"); k("v_add_u32 v6, 8192, v8")
    for i in range(4): k(f"v_mov_b32 v{ONE+i}, 0x3f803f80")
    for i in range(32): k(f"v_mov_b32 v{O+i}, 0")
    k("v_mov_b32 v10, 0")
    k("s_mov_b32 s40, 0"); k("s_mov_b32 s41, 0"); k("s_lshl_b32 s44, s4, 10"); k("s_mov_b32 s45, 0")
    k("s_mov_b32 s30, 0x3e8293ee")
    k("s_mov_b64 s[34:35], 0"); k("s_mov_b32 s31, 0x41000000")
    BLK = 64 * QKVP
    def dmaK(par):
        k(f"s_add_u32 m0, s44, {par*4096}"); k("s_nop 0")
        k("buffer_load_dwordx4 v2, s[8:11], s40 offen lds"); k(f"s_add_u32 s40, s40, {BLK}")
    def dmaV(par):
        k(f"s_add_u32 m0, s44, {8192+par*4096}"); k("s_nop 0")
        k("buffer_load_dwordx4 v3, s[8:11], s41 offen lds"); k(f"s_add_u32 s41, s41, {BLK}")
    def readK(par):
        for kt in range(2):
            for kk in range(2):
                b = KF + (kt * 2 + kk) * 4
                k(f"ds_read_b128 v[{b}:{b+3}], v{4+kk} offset:{par*4096+kt*2048}")
    def readV(par):
        for b in range(4):
            r = VF + b * 4
            k(f"ds_read_b64_tr_b16 v[{r}:{r+1}], v6 offset:{par*4096+b*1024}")
            k(f"ds_read_b64_tr_b16 v[{r+2}:{r+3}], v6 offset:{par*4096+b*1024+512}")
    def mfA(par, first=False):
        r = []
        for kt in range(2):
            b = KF + kt * 8; s = S + par * 32 + kt * 16
            c = "0" if first else f"v[{MB}:{MB+15}]"
            r.append(f"v_mfma_f32_32x32x16_bf16 v[{s}:{s+15}], v[{b}:{b+3}], v[{Q}:{Q+3}], {c}")
            r.append(f"v_mfma_f32_32x32x16_bf16 v[{s}:{s+15}], v[{b+4}:{b+7}], v[{Q+4}:{Q+7}], v[{s}:{s+15}]")
        return r
    def mfC(par):
        r = []
        for b in range(4):
            p = P + par * 16 + b * 4
            r.append(f"v_mfma_f32_32x32x16_bf16 v[{O}:{O+15}], v[{VF+b*4}:{VF+b*4+3}], v[{p}:{p+3}], v[{O}:{O+15}]")
            r.append(f"v_mfma_f32_32x32x16_bf16 v[{Lr}:{Lr+15}], v[{ONE}:{ONE+3}], v[{p}:{p+3}], v[{Lr}:{Lr+15}]")
        return r
    def maxB(par, first):
        s = S + par * 32
        k(f"v_max3_f32 v11, v{s}, v{s+1}, v{s+2}")
        k(f"v_max3_f32 v9, v{s+15}, v{s+16}, v{s+17}")
        for i in range(6):
            k(f"v_max3_f32 v11, v11, v{s+3+2*i}, v{s+4+2*i}")
            k(f"v_max3_f32 v9, v9, v{s+18+2*i}, v{s+19+2*i}")
        k(f"v_max3_f32 v9, v9, v{s+30}, v{s+31}")
        k("v_max_f32 v11, v11, v9"); k("v_mov_b32 v9, v11"); k("s_nop 1"); k("v_permlane32_swap_b32 v11, v9")
        k("v_max_f32 v11, v11, v9")
        sk = k.new("nochg")
        if not first:
            k("v_cmp_lt_f32 s[34:35], s31, v11")
            k("v_max_f32 v11, 0, v11")
            k("s_cmp_eq_u64 s[34:35], 0"); k(f"s_cbranch_scc1 {sk}")
        for i in range(32): k(f"v_sub_f32 v{s+i}, v{s+i}, v11")
        k("v_add_f32 v10, v10, v11"); k("v_exp_f32 v17, -v11")
        for i in range(16): k(f"v_sub_f32 v{MB+i}, 0, v10")
        k.label(sk)
    def valuB(par):
        s = S + par * 32; p = P + par * 16; r = []
        for g in range(5):
            if g < 4:
                for i in range(8): r.append(f"v_exp_f32 v{s+8*g+i}, v{s+8*g+i}")
            if g > 0:
                for i in range(4): r.append(f"v_cvt_pk_bf16_f32 v{p+4*(g-1)+i}, v{s+8*(g-1)+2*i}, v{s+8*(g-1)+2*i+1}")
        return r
    def rescale():
        sk = k.new("skip")
        k("s_cmp_eq_u64 s[34:35], 0"); k(f"s_cbranch_scc1 {sk}")
        for i in range(17): k(f"v_mul_f32 v{O+i}, v{O+i}, v17")
        k.label(sk)
    def body(par, doA, doB, doC, first=False):
        k("s_waitcnt vmcnt(0)"); k("s_barrier")
        if doA: readK(1 - par)
        if doC: readV(1 - par)
        if doA: dmaK(par)
        if doB: dmaV(par)
        if doC: rescale()
        mf = []
        if doA: mf += [("s_waitcnt lgkmcnt(%d)" % (8 if doC else 0), m) if i == 0 else (None, m) for i, m in enumerate(mfA(1 - par))]
        if doC: mf += [("s_waitcnt lgkmcnt(0)", m) if i == 0 else (None, m) for i, m in enumerate(mfC(1 - par))]
        if doB: maxB(par, first)
        va = valuB(par) if doB else []
        step = max(1, (len(va) - 6) // max(1, len(mf)))
        pos = 2
        for i, v in enumerate(va):
            if mf and i == pos:
                w, m = mf.pop(0)
                if w: k(w)
                k(m); pos += step
            k(v)
        for w, m in mf:
            if w: k(w)
            k(m)
    dmaK(0); dmaK(1)
    k("s_waitcnt vmcnt(0)"); k("s_barrier")
    readK(0); k("s_waitcnt lgkmcnt(0)")
    for m in mfA(0, True): k(m)
    k("s_nop 7"); k("s_nop 3")
    body(0, True, True, False, True)
    lp = k.new("loop"); k.label(lp)
    body(1, True, True, True)
    body(0, True, True, True)
    k("s_add_u32 s45, s45, 1"); k("s_cmp_lt_u32 s45, 15"); k(f"s_cbranch_scc1 {lp}")
    body(1, False, True, True)
    body(0, False, False, True)
    k("s_waitcnt vmcnt(0)")
    k(f"s_mov_b32 s21, {CATP}"); k("v_mul_lo_u32 v15, v14, s21"); k("v_add_u32 v15, s22, v15")
    k("v_lshl_add_u32 v15, v13, 4, v15")
    k("s_nop 7"); k("s_nop 7")
    k(f"v_rcp_f32 v9, v{Lr}"); k("s_nop 0")
    for i in range(16): k(f"v_mul_f32 v{O+i}, v{O+i}, v9")
    for j in range(8): k(f"v_cvt_pk_bf16_f32 v{O+j}, v{O+2*j}, v{O+2*j+1}")
    k("s_nop 1")
    for qq in range(2):
        b = O + 4 * qq
        k(f"v_permlane32_swap_b32 v{b}, v{b+2}"); k(f"v_permlane32_swap_b32 v{b+1}, v{b+3}")
    for qq in range(2):
        k(f"buffer_store_dwordx4 v[{O+4*qq}:{O+4*qq+3}], v15, s[16:19], 0 offen offset:{qq*32}")
    return 208

def mid_kernel():
    k = K("mid_kernel")
    load_args(k)
    k("s_cmp_ge_u32 s2, 768"); k("s_cbranch_scc1 mid_kernel_end")
    k("s_waitcnt lgkmcnt(0)")
    k("s_cmp_ge_u32 s2, 256"); k("s_cbranch_scc1 mid_kernel_attn")
    import os
    if "A" in os.environ.get("XP", ""): k("s_endpgm")
    if "P" in os.environ.get("XP", ""): k("s_setprio 3")
    nv, lds = gemm_body(k, 128, 128, 2, 2, setup_ffn2, CATP, 28, 'f32')
    k("s_endpgm")
    k.label("mid_kernel_attn")
    k("s_sub_u32 s3, s2, 256")
    k("s_setprio 3")
    nv2 = attn_body(k, "s3")
    k.label("mid_kernel_end"); k("s_endpgm")
    return k.text(max(nv, nv2)), max(lds, 16384)

def main():
    out = sys.argv[1] if len(sys.argv) > 1 else f"cdna_kernels/{NAME}.s"
    hdr = [l for l in open(f"cdna_kernels/{NAME}.s.ref").read().split("\n") if l.startswith(";") and "@launch" not in l]
    g1, lds1 = simple_kernel("gemm1_kernel", 208, lambda k: gemm_body(k, 256, 256, 4, 2, setup_g1(256, 256), 2048, 16, 'bf16'))
    md, ldsm = mid_kernel()
    g2, lds2 = simple_kernel("final_kernel", 256, lambda k: gemm_body(k, 128, 64, 2, 2, setup_final(128, 64), CATP, 16, 'final', NS=4))
    hdr += ["; @launch kernel=ln_kernel grid=(512,1,1) block=(256,1,1) lds=0",
            f"; @launch kernel=gemm1_kernel grid=(208,1,1) block=(512,1,1) lds={lds1}",
            f"; @launch kernel=mid_kernel grid=(768,1,1) block=(256,1,1) lds={ldsm}",
            f"; @launch kernel=final_kernel grid=(256,1,1) block=(256,1,1) lds={lds2}"]
    txt = "\n".join(hdr) + "\n.amdgcn_target \"amdgcn-amd-amdhsa--gfx950\"\n" + ln_kernel() + g1 + md + g2
    open(out, "w").write(txt)
main()
```

```python
import sys
NAME = "parallel_sum__mha_block__dense_activation_relu__prompt"
XN_OFF, QKV_OFF, CAT_OFF = 0, 0x400000, 0x1000000
WS_BYTES = 268435456
CATP = 4608 * 2
QKVP = 3072 * 2

class K:
    def __init__(s, name): s.name = name; s.L = []; s.uid = 0
    def __call__(s, t=""):
        import os
        X = os.environ.get("XP", "")
        if s.name == "mid_kernel":
            if "e" in X and t.startswith("v_exp_f32"): t = t.replace("v_exp_f32", "v_mov_b32")
            if "m" in X and t.startswith("v_mfma"): return
            if "b" in X and t.startswith("s_barrier"): return
            if "d" in X and t.startswith("buffer_load") and t.endswith("lds"): return
            if "v" in X and (t.startswith("v_fma") or t.startswith("v_exp") or t.startswith("v_cvt") or t.startswith("v_max3")): return
            if "l" in X and t.startswith("ds_read"): return
        s.L.append("    " + t)
    def label(s, l): s.L.append(l + ":")
    def new(s, p): s.uid += 1; return f"{s.name}_{p}{s.uid}"
    def srd(s, d, lo, nbytes, add=0):
        if add:
            s(f"s_add_u32 s{d}, s{lo}, 0x{add:x}"); s(f"s_addc_u32 s{d+1}, s{lo+1}, 0")
        else:
            s(f"s_mov_b32 s{d}, s{lo}"); s(f"s_mov_b32 s{d+1}, s{lo+1}")
        s(f"s_and_b32 s{d+1}, s{d+1}, 0xffff")
        s(f"s_mov_b32 s{d+2}, 0x{nbytes:x}"); s(f"s_mov_b32 s{d+3}, 0x00020000")
    def text(s, vgpr, agpr=0, sgpr=100):
        acc = (vgpr + 3) // 4 * 4
        nf = vgpr if agpr == 0 else acc + agpr
        h = [".text", f".globl {s.name}", ".p2align 8", f".type {s.name},@function", f"{s.name}:"]
        d = [".section .rodata,\"a\"", ".p2align 6", f".amdhsa_kernel {s.name}",
             f"  .amdhsa_next_free_vgpr {nf}", f"  .amdhsa_next_free_sgpr {sgpr}",
             f"  .amdhsa_accum_offset {acc}", "  .amdhsa_group_segment_fixed_size 0",
             "  .amdhsa_kernarg_size 72", "  .amdhsa_user_sgpr_count 2",
             "  .amdhsa_user_sgpr_kernarg_segment_ptr 1", "  .amdhsa_system_sgpr_workgroup_id_x 1",
             ".end_amdhsa_kernel"]
        return "\n".join(h + s.L + d) + "\n"

def load_args(k):
    k("s_load_dwordx16 s[64:79], s[0:1], 0")
    k("s_load_dwordx2 s[80:81], s[0:1], 64")

def wave_sum(k, v, t, sa, sb):
    for o in (0x041F, 0x081F, 0x101F, 0x201F, 0x401F):
        k(f"ds_swizzle_b32 v{t}, v{v} offset:0x{o:x}"); k("s_waitcnt lgkmcnt(0)")
        k(f"v_add_f32 v{v}, v{v}, v{t}")
    k("s_nop 0")
    k(f"v_readlane_b32 s{sa}, v{v}, 0"); k(f"v_readlane_b32 s{sb}, v{v}, 32"); k("s_nop 1")
    k(f"v_mov_b32 v{v}, s{sa}"); k(f"v_add_f32 v{v}, s{sb}, v{v}")

def rbf(k, v, t):
    k(f"v_cvt_pk_bf16_f32 v{t}, v{v}, v{v}"); k(f"v_lshlrev_b32 v{v}, 16, v{t}")

def ln_kernel():
    k = K("ln_kernel")
    load_args(k)
    k("s_cmp_ge_u32 s2, 512"); k(f"s_cbranch_scc1 ln_kernel_end")
    k("v_lshrrev_b32 v1, 6, v0")
    k("v_and_b32 v2, 63, v0")
    k("s_lshl_b32 s3, s2, 2")
    k("v_add_u32 v1, s3, v1")
    k("v_lshlrev_b32 v1, 11, v1")
    k("v_lshl_add_u32 v1, v2, 4, v1")
    k("s_waitcnt lgkmcnt(0)")
    k.srd(8, 64, 2048 * 2048)
    k.srd(12, 80, 2048 * 2048, XN_OFF)
    k("buffer_load_dwordx4 v[4:7], v1, s[8:11], 0 offen")
    k("buffer_load_dwordx4 v[8:11], v1, s[8:11], 0 offen offset:1024")
    k("s_waitcnt vmcnt(0)")
    for i in range(8):
        k(f"v_lshlrev_b32 v{16+2*i}, 16, v{4+i}"); k(f"v_and_b32 v{17+2*i}, 0xffff0000, v{4+i}")
    k("v_add_f32 v32, v16, v17")
    for i in range(2, 16): k(f"v_add_f32 v32, v32, v{16+i}")
    wave_sum(k, 32, 33, 20, 21)
    k("v_mul_f32 v32, 0x3a800000, v32")
    k("v_sub_f32 v34, v16, v32"); k("v_mul_f32 v35, v34, v34")
    for i in range(1, 16):
        k(f"v_sub_f32 v34, v{16+i}, v32"); k("v_fmac_f32 v35, v34, v34")
    wave_sum(k, 35, 33, 20, 21)
    k("v_mul_f32 v35, 0x3a800000, v35")
    rbf(k, 35, 33); rbf(k, 32, 33)
    k("v_add_f32 v35, 0x3727c5ac, v35"); rbf(k, 35, 33)
    k("v_sqrt_f32 v35, v35"); k("s_nop 0"); rbf(k, 35, 33)
    k("v_rcp_f32 v35, v35"); k("s_nop 0")
    for i in range(16):
        k(f"v_sub_f32 v{16+i}, v{16+i}, v32")
    for i in range(8):
        k(f"v_cvt_pk_bf16_f32 v33, v{16+2*i}, v{17+2*i}")
        k(f"v_lshlrev_b32 v{16+2*i}, 16, v33"); k(f"v_and_b32 v{17+2*i}, 0xffff0000, v33")
        k(f"v_mul_f32 v{16+2*i}, v{16+2*i}, v35"); k(f"v_mul_f32 v{17+2*i}, v{17+2*i}, v35")
        k(f"v_cvt_pk_bf16_f32 v{4+i}, v{16+2*i}, v{17+2*i}")
    k("buffer_store_dwordx4 v[4:7], v1, s[12:15], 0 offen")
    k("buffer_store_dwordx4 v[8:11], v1, s[12:15], 0 offen offset:1024")
    k.label("ln_kernel_end"); k("s_endpgm")
    return k.text(40)

def gemm_body(k, BM, BN, WM, WN, setup, pitchA, ksteps, mode, NS=2):
    NW = WM * WN; TM = BM // WM // 32; TN = BN // WN // 32
    ABY = BM * 128; RB = BN * 2; BBY = 64 * RB
    STG = ABY + BBY
    IA = BM // 8 // NW; IB = BN // 8 // NW
    CPR = BN // 8; RPI = 1024 // RB
    k("v_lshrrev_b32 v1, 6, v0"); k("v_and_b32 v0, 63, v0"); k("s_nop 0")
    k("v_readfirstlane_b32 s4, v1")
    setup(k)
    k(f"s_lshr_b32 s5, s4, {WN.bit_length()-1}")
    k(f"s_and_b32 s6, s4, {WN-1}")
    k("v_lshrrev_b32 v3, 3, v0"); k("s_lshl_b32 s7, s4, 3"); k("s_add_u32 s7, s7, s23")
    k("v_add_u32 v3, s7, v3"); k(f"s_mov_b32 s7, {pitchA}"); k("v_mul_lo_u32 v2, v3, s7")
    k("s_and_b32 s7, s4, 1"); k("s_lshl_b32 s7, s7, 2")
    k("v_lshrrev_b32 v3, 4, v0"); k("v_add_u32 v3, s7, v3"); k("v_and_b32 v3, 7, v3")
    k("v_and_b32 v4, 7, v0"); k("v_xor_b32 v3, v3, v4"); k("v_lshl_add_u32 v2, v3, 4, v2")
    k(f"v_lshrrev_b32 v4, {CPR.bit_length()-1}, v0"); k(f"s_mul_i32 s7, s4, {RPI}")
    k("v_add_u32 v4, s7, v4")
    k("v_mul_lo_u32 v3, v4, s20")
    if BN >= 128: k("v_and_b32 v4, 3, v4"); k("v_lshlrev_b32 v4, 2, v4")
    else: k("v_lshrrev_b32 v4, 1, v4"); k("v_and_b32 v4, 1, v4"); k("v_lshlrev_b32 v4, 2, v4")
    k(f"v_and_b32 v5, {CPR-1}, v0"); k("v_xor_b32 v4, v4, v5"); k("v_lshl_add_u32 v3, v4, 4, v3")
    k("s_lshl_b32 s7, s24, 1"); k("v_add_u32 v3, s7, v3")
    k("v_and_b32 v12, 31, v0"); k("v_lshrrev_b32 v13, 5, v0")
    k(f"s_mul_i32 s7, s5, {TM*32*128}")
    k("v_lshlrev_b32 v14, 7, v12"); k("v_add_u32 v14, s7, v14")
    k("v_lshrrev_b32 v15, 1, v0"); k("v_and_b32 v15, 7, v15")
    for kk in range(4):
        k(f"v_add_u32 v16, {2*kk}, v13"); k("v_xor_b32 v16, v16, v15"); k(f"v_lshl_add_u32 v{4+kk}, v16, 4, v14")
    k("v_lshrrev_b32 v14, 2, v0"); k("v_and_b32 v14, 3, v14")
    k("v_lshl_add_u32 v15, v13, 3, v14")
    k(f"s_mov_b32 s7, {RB}"); k("v_mul_lo_u32 v15, v15, s7")
    k("v_lshrrev_b32 v16, 4, v0"); k("v_and_b32 v16, 1, v16"); k("v_lshl_add_u32 v15, v16, 5, v15")
    k("v_and_b32 v16, 3, v0"); k("v_lshl_add_u32 v15, v16, 3, v15")
    k(f"v_add_u32 v15, {ABY}, v15")
    NB = 4 if BN >= 128 else 2
    if BN < 128: k("v_lshrrev_b32 v14, 1, v14")
    k(f"s_mul_i32 s7, s6, {TN}")
    NREG = min(TN, NB)
    for i in range(NREG):
        k(f"s_add_u32 s26, s7, {i}")
        k(f"s_and_b32 s27, s26, {NB-1}"); k(f"v_xor_b32 v16, s27, v14")
        k(f"s_andn2_b32 s26, s26, {NB-1}"); k("v_add_u32 v16, s26, v16")
        k(f"v_lshl_add_u32 v{8+i}, v16, 6, v15")
    assert TN <= NB or (TN % NB == 0)
    ACC = 128 if TM * TN > 4 else 80
    FR = 28; AB = 20
    nfr = (TM + TN) * 4
    for i in range(TM * TN * 16): k(f"v_mov_b32 v{ACC+i}, 0")
    k("s_mov_b32 s40, s36")
    k("s_mov_b32 s41, s37")
    k(f"s_lshl_b32 s42, s20, 6")
    k(f"s_mul_i32 s43, s20, {NW*RPI}")
    k(f"s_lshl_b32 s44, s4, 10")
    k("s_mov_b32 s45, 0")
    def dma_list():
        r = []
        for t in range(IA):
            r.append([f"s_add_u32 s46, s40, {t*NW*8*pitchA}", f"s_add_u32 m0, s44, {t*NW*1024}", "s_nop 0",
                      "buffer_load_dwordx4 v2, s[8:11], s46 offen lds"])
        for t in range(IB):
            r.append([f"s_add_u32 m0, s44, {ABY + t*NW*1024}",
                      "s_add_u32 s49, s49, s43" if t else "s_mov_b32 s49, s41",
                      "buffer_load_dwordx4 v3, s[12:15], s49 offen lds"])
        r[-1] += ["s_add_u32 s40, s40, 128", "s_add_u32 s41, s41, s42", f"s_add_u32 s44, s44, {STG}",
                  f"s_cmp_ge_u32 s44, {NS*STG}", f"s_cselect_b32 s46, {NS*STG}, 0", "s_sub_u32 s44, s44, s46"]
        return r
    def dma():
        for g in dma_list():
            for t in g: k(t)
    def reads(kk, buf):
        b = FR + buf * nfr
        for tn in range(TN):
            o = kk * 16 * RB + (tn // NB) * NB * 64
            k(f"ds_read_b64_tr_b16 v[{b+tn*4}:{b+tn*4+1}], v{8+tn%NB} offset:{o}")
            k(f"ds_read_b64_tr_b16 v[{b+tn*4+2}:{b+tn*4+3}], v{8+tn%NB} offset:{o+4*RB}")
        for tm in range(TM):
            k(f"ds_read_b128 v[{b+TN*4+tm*4}:{b+TN*4+tm*4+3}], v{4+kk} offset:{tm*4096}")
    def mfmas(buf, extra):
        b = FR + buf * nfr
        for tm in range(TM):
            for tn in range(TN):
                a = ACC + (tm * TN + tn) * 16
                k(f"v_mfma_f32_32x32x16_bf16 v[{a}:{a+15}], v[{b+tn*4}:{b+tn*4+3}], v[{b+TN*4+tm*4}:{b+TN*4+tm*4+3}], v[{a}:{a+15}]")
                if extra:
                    for t in extra.pop(0): k(t)
    def epi_addr():
        k(f"s_mul_i32 s7, s5, {TM*32}"); k("s_add_u32 s7, s7, s23")
        k("v_add_u32 v14, s7, v12")
        k("v_mul_lo_u32 v15, v14, s21")
        k(f"s_mul_i32 s7, s6, {TN*32}"); k("s_add_u32 s7, s7, s25")
        esz = 2 if mode == 'f32' else 1
        k(f"s_lshl_b32 s7, s7, {esz}")
        k("v_add_u32 v15, s7, v15"); k("v_lshl_add_u32 v16, v13, 4, v15")
        k("v_lshl_add_u32 v17, v13, 3, v15")
        k("v_lshlrev_b32 v18, 1, v17")
        k("s_lshl_b32 s47, s21, 5")
    NPART = 2; PB = ACC + TM * TN * 16; PSZ = 8 + 16 * NPART
    if mode == 'final':
        epi_addr()
        for tm in range(TM):
            if tm:
                k("v_add_u32 v17, s47, v17"); k("v_lshlrev_b32 v18, 1, v17")
            for tn in range(TN):
                X = PB + (tm * TN + tn) * PSZ
                for q in range(4):
                    k(f"buffer_load_dwordx2 v[{X+2*q}:{X+2*q+1}], v17, s[32:35], 0 offen offset:{tn*64+q*16}")
                    for pi in range(NPART):
                        so = ["0", "s39", "s50", "s51"][pi]
                        R = X + 8 + 16 * pi + 4 * q
                        k(f"buffer_load_dwordx4 v[{R}:{R+3}], v18, s[28:31], {so} offen offset:{tn*128+q*32}")
    ND = IA + IB
    for i in range(4 + NREG): k(f"v_mov_b32 v{AB+i}, v{4+i}")
    k("s_mov_b32 s48, 0")
    for i in range(NS - 1): dma()
    lp = k.new("loop"); k.label(lp)
    k(f"s_waitcnt vmcnt({(NS-2)*ND})"); k("s_barrier")
    k("s_add_u32 s45, s45, 1")
    reads(0, 0)
    nrd = 2 * TN + TM
    dl = dma_list()
    per = max((ND + 3) // 4, min(ND, TM * TN))
    for kk in range(4):
        if kk < 3:
            reads(kk + 1, (kk + 1) % 2); k(f"s_waitcnt lgkmcnt({nrd})")
        else: k("s_waitcnt lgkmcnt(0)")
        ex = dl[:per]; dl = dl[per:]
        mfmas(kk % 2, ex)
        assert not ex
    k(f"s_add_u32 s48, s48, {STG}"); k(f"s_cmp_ge_u32 s48, {NS*STG}"); k("s_cselect_b32 s48, 0, s48")
    for i in range(4 + NREG): k(f"v_add_u32 v{4+i}, s48, v{AB+i}")
    k(f"s_cmp_lt_u32 s45, {ksteps}"); k(f"s_cbranch_scc1 {lp}")
    k("s_waitcnt vmcnt(0)")
    epi_addr()
    k("s_nop 7"); k("s_nop 7")
    for tm in range(TM):
        if tm:
            k("v_add_u32 v16, s47, v16"); k("v_add_u32 v17, s47, v17"); k("v_lshlrev_b32 v18, 1, v17")
        if mode == 'f32':
            for tn in range(TN):
                a = ACC + (tm * TN + tn) * 16
                for q in range(4):
                    k(f"buffer_store_dwordx4 v[{a+4*q}:{a+4*q+3}], v16, s[16:19], 0 offen offset:{tn*128+q*32}")
            continue
        for tn in range(TN):
            a = ACC + (tm * TN + tn) * 16
            if mode == 'final':
                X = PB + (tm * TN + tn) * PSZ; P0 = X + 8; P1 = X + 24
                for j in range(16):
                    k(f"v_add_f32 v{P0+j}, v{P0+j}, v{P1+j}")
                for j in range(8):
                    k(f"v_lshlrev_b32 v{P1+2*j}, 16, v{X+j}"); k(f"v_and_b32 v{P1+2*j+1}, 0xffff0000, v{X+j}")
                for j in range(16):
                    k(f"v_add_f32 v{a+j}, v{a+j}, v{P1+j}"); k(f"v_add_f32 v{a+j}, v{a+j}, v{P0+j}")
            else:
                for j in range(16):
                    k(f"v_max_f32 v{a+j}, s22, v{a+j}"); k(f"v_mul_f32 v{a+j}, s38, v{a+j}")
            for j in range(8): k(f"v_cvt_pk_bf16_f32 v{a+j}, v{a+2*j}, v{a+2*j+1}")
            k("s_nop 1")
            for qq in range(2):
                b = a + 4 * qq
                k(f"v_permlane32_swap_b32 v{b}, v{b+2}"); k(f"v_permlane32_swap_b32 v{b+1}, v{b+3}")
            for qq in range(2):
                b = a + 4 * qq
                k(f"buffer_store_dwordx4 v[{b}:{b+3}], v16, s[16:19], 0 offen offset:{tn*64+qq*32}")
    return (PB + TM * TN * PSZ if mode == 'final' else ACC + TM * TN * 16), STG * NS

def simple_kernel(name, nwg, fn):
    k = K(name)
    load_args(k)
    k(f"s_cmp_ge_u32 s2, {nwg}"); k(f"s_cbranch_scc1 {name}_end")
    k("s_waitcnt lgkmcnt(0)")
    nv, lds = fn(k)
    k.label(f"{name}_end"); k("s_endpgm")
    return k.text(nv), lds

def setup_g1(BM, BN):
    nq = 3072 // BN; nt = 6656 // BN
    def f(k):
        k("s_and_b32 s23, s2, 7"); k("s_mul_i32 s23, s23, 26"); k("s_lshr_b32 s24, s2, 3"); k("s_add_u32 s24, s24, s23")
        k("s_and_b32 s23, s24, 7"); k("s_lshl_b32 s23, s23, 8")
        k("s_lshr_b32 s24, s24, 3"); k("s_lshl_b32 s24, s24, 8")
        k.srd(8, 80, 2048 * 2048, XN_OFF)
        k("s_mov_b32 s36, 0"); k("s_mov_b32 s37, 0"); k("s_mov_b32 s38, 1.0")
        l1, l2 = k.new("ffn"), k.new("j")
        k("s_cmp_ge_u32 s24, 3072"); k(f"s_cbranch_scc1 {l1}")
        k.srd(12, 66, 1024 * 6144); k.srd(16, 80, 2048 * QKVP, QKV_OFF)
        k("s_mov_b32 s20, 6144"); k(f"s_mov_b32 s21, {QKVP}"); k("s_mov_b32 s22, 0xff800000"); k("s_mov_b32 s25, s24")
        k("s_cmp_lt_u32 s24, 1024"); k("s_cselect_b32 s38, 0x3e8293ee, s38")
        k(f"s_branch {l2}")
        k.label(l1)
        k.srd(12, 72, 1024 * 7168); k.srd(16, 80, 2048 * CATP, CAT_OFF)
        k("s_mov_b32 s20, 7168"); k(f"s_mov_b32 s21, {CATP}"); k("s_mov_b32 s22, 0")
        k("s_sub_u32 s24, s24, 3072"); k("s_add_u32 s25, s24, 1024")
        k.label(l2)
    return f

PART_OFF = 0x2400000
def setup_ffn2(k):
    k("s_lshr_b32 s7, s2, 3")
    k("s_and_b32 s23, s7, 7"); k("s_lshr_b32 s24, s2, 1"); k("s_and_b32 s24, s24, 1"); k("s_lshl_b32 s24, s24, 3")
    k("s_add_u32 s23, s23, s24"); k("s_lshl_b32 s23, s23, 7")
    k("s_lshr_b32 s24, s7, 3"); k("s_and_b32 s7, s2, 1"); k("s_lshl_b32 s7, s7, 2"); k("s_add_u32 s24, s24, s7"); k("s_lshl_b32 s24, s24, 7")
    k("s_lshr_b32 s7, s2, 2"); k("s_and_b32 s7, s7, 1")
    k.srd(8, 80, 2048 * CATP, CAT_OFF); k.srd(12, 74, 3584 * 2048)
    k.srd(16, 80, 2 * 2048 * 4096, PART_OFF)
    k("s_mul_i32 s36, s7, 3584"); k("s_add_u32 s36, s36, 2048")
    k(f"s_mul_i32 s37, s7, {1792*2048}")
    k("s_mov_b32 s20, 2048"); k("s_mov_b32 s21, 4096")
    k(f"s_mul_i32 s25, s7, {2048*1024}"); k("s_add_u32 s25, s25, s24")

def setup_final(BM, BN):
    def f(k):
        nn = 1024 // BN
        k(f"s_and_b32 s24, s2, {nn-1}"); k(f"s_mul_i32 s24, s24, {BN}")
        k(f"s_lshr_b32 s23, s2, {nn.bit_length()-1}"); k(f"s_lshl_b32 s23, s23, {BM.bit_length()-1}")
        k.srd(8, 80, 2048 * CATP, CAT_OFF)
        k.srd(12, 68, 1024 * 2048); k.srd(28, 80, 2 * 2048 * 4096, PART_OFF)
        k.srd(16, 76, 2048 * 2048); k.srd(32, 64, 2048 * 2048)
        k("s_mov_b32 s20, 2048"); k("s_mov_b32 s21, 2048"); k("s_mov_b32 s25, s24")
        k("s_mov_b32 s36, 0"); k("s_mov_b32 s37, 0"); k(f"s_mov_b32 s39, {2048*4096}"); k(f"s_mov_b32 s50, {2*2048*4096}"); k(f"s_mov_b32 s51, {3*2048*4096}")
    return f

def attn_body(k, wgid="s2"):
    Q, ONE, KF, VF, S, P, O, Lr, MB = 24, 20, 32, 48, 64, 128, 160, 176, 192
    k("v_lshrrev_b32 v1, 6, v0"); k("v_and_b32 v0, 63, v0"); k("s_nop 0")
    k("v_readfirstlane_b32 s4, v1")
    k(f"s_and_b32 s5, {wgid}, 31"); k(f"s_lshr_b32 s6, {wgid}, 5")
    k.srd(8, 80, 2048 * QKVP, QKV_OFF); k.srd(16, 80, 2048 * CATP, CAT_OFF)
    k("v_and_b32 v12, 31, v0"); k("v_lshrrev_b32 v13, 5, v0")
    k("s_lshl_b32 s7, s6, 7"); k("s_lshl_b32 s20, s4, 5"); k("s_add_u32 s7, s7, s20")
    k("v_add_u32 v14, s7, v12")
    k(f"s_mov_b32 s21, {QKVP}"); k("v_mul_lo_u32 v15, v14, s21")
    k("s_lshl_b32 s22, s5, 6"); k("v_add_u32 v15, s22, v15"); k("v_lshl_add_u32 v15, v13, 4, v15")
    k(f"buffer_load_dwordx4 v[{Q}:{Q+3}], v15, s[8:11], 0 offen")
    k(f"buffer_load_dwordx4 v[{Q+4}:{Q+7}], v15, s[8:11], 0 offen offset:32")
    k("v_lshrrev_b32 v4, 2, v0"); k("s_lshl_b32 s7, s4, 4"); k("v_add_u32 v4, s7, v4")
    k("v_mul_lo_u32 v4, v4, s21"); k("v_add_u32 v4, s22, v4")
    k("v_and_b32 v5, 3, v0"); k("v_lshrrev_b32 v6, 4, v0"); k("v_xor_b32 v6, v6, v5")
    k("v_lshl_add_u32 v2, v6, 4, v4"); k("v_add_u32 v2, 2048, v2")
    k("v_lshl_add_u32 v3, v5, 4, v4"); k("v_add_u32 v3, 4096, v3")
    k("v_lshrrev_b32 v7, 2, v0"); k("v_and_b32 v7, 3, v7")
    for kk in range(2):
        k(f"v_add_u32 v8, {2*kk}, v13"); k("v_xor_b32 v8, v8, v7"); k("v_lshlrev_b32 v8, 4, v8")
        k(f"v_lshl_add_u32 v{4+kk}, v12, 6, v8")
    k("v_lshl_add_u32 v8, v13, 2, v7"); k("v_lshlrev_b32 v8, 6, v8")
    k("v_lshrrev_b32 v9, 4, v0"); k("v_and_b32 v9, 1, v9"); k("v_lshl_add_u32 v8, v9, 5, v8")
    k("v_and_b32 v9, 3, v0"); k("v_lshl_add_u32 v8, v9, 3, v8"); k("v_add_u32 v6, 16384, v8")
    for i in range(4): k(f"v_mov_b32 v{ONE+i}, 0x3f803f80")
    for i in range(32): k(f"v_mov_b32 v{O+i}, 0")
    k("v_mov_b32 v10, 0")
    k("s_mov_b32 s40, 0"); k("s_mov_b32 s41, 0"); k("s_lshl_b32 s44, s4, 10"); k("s_mov_b32 s45, 0")
    k("s_mov_b32 s30, 0x3e8293ee")
    k("s_mov_b64 s[34:35], 0"); k("s_mov_b32 s31, 0x41000000")
    BLK = 64 * QKVP
    def dmaK(par):
        k(f"s_add_u32 m0, s44, {par*4096}"); k("s_nop 0")
        k("buffer_load_dwordx4 v2, s[8:11], s40 offen lds"); k(f"s_add_u32 s40, s40, {BLK}")
    def dmaV(par):
        k(f"s_add_u32 m0, s44, {16384+par*4096}"); k("s_nop 0")
        k("buffer_load_dwordx4 v3, s[8:11], s41 offen lds"); k(f"s_add_u32 s41, s41, {BLK}")
    def readK(par):
        for kt in range(2):
            for kk in range(2):
                b = KF + (kt * 2 + kk) * 4
                k(f"ds_read_b128 v[{b}:{b+3}], v{4+kk} offset:{par*4096+kt*2048}")
    def readV(par):
        for b in range(4):
            r = VF + b * 4
            k(f"ds_read_b64_tr_b16 v[{r}:{r+1}], v6 offset:{par*4096+b*1024}")
            k(f"ds_read_b64_tr_b16 v[{r+2}:{r+3}], v6 offset:{par*4096+b*1024+512}")
    def mfA(par, first=False):
        r = []
        for kt in range(2):
            b = KF + kt * 8; s = S + par * 32 + kt * 16
            c = "0" if first else f"v[{MB}:{MB+15}]"
            r.append(f"v_mfma_f32_32x32x16_bf16 v[{s}:{s+15}], v[{b}:{b+3}], v[{Q}:{Q+3}], {c}")
            r.append(f"v_mfma_f32_32x32x16_bf16 v[{s}:{s+15}], v[{b+4}:{b+7}], v[{Q+4}:{Q+7}], v[{s}:{s+15}]")
        return r
    def mfC(par):
        r = []
        for b in range(4):
            p = P + par * 16 + b * 4
            r.append(f"v_mfma_f32_32x32x16_bf16 v[{O}:{O+15}], v[{VF+b*4}:{VF+b*4+3}], v[{p}:{p+3}], v[{O}:{O+15}]")
            r.append(f"v_mfma_f32_32x32x16_bf16 v[{Lr}:{Lr+15}], v[{ONE}:{ONE+3}], v[{p}:{p+3}], v[{Lr}:{Lr+15}]")
        return r
    def maxB(par, first):
        s = S + par * 32
        k(f"v_max3_f32 v11, v{s}, v{s+1}, v{s+2}")
        k(f"v_max3_f32 v9, v{s+15}, v{s+16}, v{s+17}")
        for i in range(6):
            k(f"v_max3_f32 v11, v11, v{s+3+2*i}, v{s+4+2*i}")
            k(f"v_max3_f32 v9, v9, v{s+18+2*i}, v{s+19+2*i}")
        k(f"v_max3_f32 v9, v9, v{s+30}, v{s+31}")
        k("v_max_f32 v11, v11, v9"); k("v_mov_b32 v9, v11"); k("s_nop 1"); k("v_permlane32_swap_b32 v11, v9")
        k("v_max_f32 v11, v11, v9")
        sk = k.new("nochg")
        if not first:
            k("v_cmp_lt_f32 s[34:35], s31, v11")
            k("v_max_f32 v11, 0, v11")
            k("s_cmp_eq_u64 s[34:35], 0"); k(f"s_cbranch_scc1 {sk}")
        for i in range(32): k(f"v_sub_f32 v{s+i}, v{s+i}, v11")
        k("v_add_f32 v10, v10, v11"); k("v_exp_f32 v17, -v11")
        for i in range(16): k(f"v_sub_f32 v{MB+i}, 0, v10")
        k.label(sk)
    def valuB(par):
        s = S + par * 32; p = P + par * 16; r = []
        for g in range(5):
            if g < 4:
                for i in range(8): r.append(f"v_exp_f32 v{s+8*g+i}, v{s+8*g+i}")
            if g > 0:
                for i in range(4): r.append(f"v_cvt_pk_bf16_f32 v{p+4*(g-1)+i}, v{s+8*(g-1)+2*i}, v{s+8*(g-1)+2*i+1}")
        return r
    def rescale():
        sk = k.new("skip")
        k("s_cmp_eq_u64 s[34:35], 0"); k(f"s_cbranch_scc1 {sk}")
        for i in range(17): k(f"v_mul_f32 v{O+i}, v{O+i}, v17")
        k.label(sk)
    def body(i4, doA, doB, doC, first=False, fast=False):
        par = i4 % 2
        k("s_waitcnt vmcnt(4)"); k("s_barrier")
        if doA: readK((i4 + 1) % 4)
        if doC: readV((i4 - 1) % 4)
        if doB: dmaK(i4 % 4); dmaV((i4 + 2) % 4)
        if doC and not fast: rescale()
        mf = []
        if doA: mf += [("s_waitcnt lgkmcnt(%d)" % (8 if doC else 0), m) if i == 0 else (None, m) for i, m in enumerate(mfA(1 - par))]
        if doC: mf += [("s_waitcnt lgkmcnt(0)", m) if i == 0 else (None, m) for i, m in enumerate(mfC(1 - par))]
        if doB and (first or not fast): maxB(par, first)
        va = valuB(par) if doB else []
        step = max(1, (len(va) - 6) // max(1, len(mf)))
        pos = 2
        for i, v in enumerate(va):
            if mf and i == pos:
                w, m = mf.pop(0)
                if w: k(w)
                k(m); pos += step
            k(v)
        for w, m in mf:
            if w: k(w)
            k(m)
    def run(fast):
        dmaK(0); dmaK(1); dmaK(2); dmaV(0); dmaK(3); dmaV(1)
        k("s_waitcnt vmcnt(4)"); k("s_barrier")
        readK(0); k("s_waitcnt lgkmcnt(0)")
        for m in mfA(0, True): k(m)
        k("s_nop 7"); k("s_nop 3")
        body(0, True, True, False, True, fast)
        lp = k.new("loop"); k.label(lp)
        for i4 in (1, 2, 3, 0): body(i4, True, True, True, False, fast)
        k("s_add_u32 s45, s45, 1"); k("s_cmp_lt_u32 s45, 7"); k(f"s_cbranch_scc1 {lp}")
        body(1, True, True, True, False, fast); body(2, True, True, True, False, fast)
        body(3, False, True, True, False, fast)
        body(0, False, False, True, False, fast)
    run(True)
    done = k.new("done")
    k("s_nop 7"); k("s_nop 7")
    k("s_mov_b32 s7, 0x5f800000")
    k(f"v_cmp_nlt_f32 s[34:35], v{Lr}, s7")
    k("s_cmp_lg_u64 s[34:35], 0"); k("s_cselect_b32 s7, 1, 0")
    k("v_mov_b32 v9, s7"); k("s_lshl_b32 s7, s4, 2"); k("s_add_u32 s7, s7, 40960"); k("v_mov_b32 v11, s7")
    k("ds_write_b32 v11, v9")
    k("s_waitcnt vmcnt(0) lgkmcnt(0)"); k("s_barrier")
    k("v_mov_b32 v11, 40960"); k("ds_read_b128 v[32:35], v11"); k("s_waitcnt lgkmcnt(0)")
    k("v_or3_b32 v9, v32, v33, v34"); k("v_or_b32 v9, v9, v35"); k("s_nop 0")
    k("v_readfirstlane_b32 s7, v9"); k("s_cmp_eq_u32 s7, 0"); k(f"s_cbranch_scc1 {done}")
    for i in range(32): k(f"v_mov_b32 v{O+i}, 0")
    k("v_mov_b32 v10, 0")
    k("s_mov_b32 s40, 0"); k("s_mov_b32 s41, 0"); k("s_mov_b32 s45, 0"); k("s_mov_b64 s[34:35], 0")
    run(False)
    k.label(done)
    k("s_waitcnt vmcnt(0)")
    k(f"s_mov_b32 s21, {CATP}"); k("v_mul_lo_u32 v15, v14, s21"); k("v_add_u32 v15, s22, v15")
    k("v_lshl_add_u32 v15, v13, 4, v15")
    k("s_nop 7"); k("s_nop 7")
    k(f"v_rcp_f32 v9, v{Lr}"); k("s_nop 0")
    for i in range(16): k(f"v_mul_f32 v{O+i}, v{O+i}, v9")
    for j in range(8): k(f"v_cvt_pk_bf16_f32 v{O+j}, v{O+2*j}, v{O+2*j+1}")
    k("s_nop 1")
    for qq in range(2):
        b = O + 4 * qq
        k(f"v_permlane32_swap_b32 v{b}, v{b+2}"); k(f"v_permlane32_swap_b32 v{b+1}, v{b+3}")
    for qq in range(2):
        k(f"buffer_store_dwordx4 v[{O+4*qq}:{O+4*qq+3}], v15, s[16:19], 0 offen offset:{qq*32}")
    return 208

def mid_kernel():
    k = K("mid_kernel")
    load_args(k)
    k("s_cmp_ge_u32 s2, 768"); k("s_cbranch_scc1 mid_kernel_end")
    k("s_waitcnt lgkmcnt(0)")
    k("s_cmp_ge_u32 s2, 256"); k("s_cbranch_scc1 mid_kernel_attn")
    import os
    if "A" in os.environ.get("XP", ""): k("s_endpgm")
    if "P" in os.environ.get("XP", ""): k("s_setprio 3")
    nv, lds = gemm_body(k, 128, 128, 2, 2, setup_ffn2, CATP, 28, 'f32')
    k("s_endpgm")
    k.label("mid_kernel_attn")
    k("s_sub_u32 s3, s2, 256")
    k("s_setprio 3")
    nv2 = attn_body(k, "s3")
    k.label("mid_kernel_end"); k("s_endpgm")
    return k.text(max(nv, nv2)), max(lds, 16384)

def main():
    out = sys.argv[1] if len(sys.argv) > 1 else f"cdna_kernels/{NAME}.s"
    hdr = [l for l in open(f"cdna_kernels/{NAME}.s.ref").read().split("\n") if l.startswith(";") and "@launch" not in l]
    g1, lds1 = simple_kernel("gemm1_kernel", 208, lambda k: gemm_body(k, 256, 256, 4, 2, setup_g1(256, 256), 2048, 16, 'bf16'))
    md, ldsm = mid_kernel()
    g2, lds2 = simple_kernel("final_kernel", 256, lambda k: gemm_body(k, 128, 64, 2, 2, setup_final(128, 64), CATP, 16, 'final', NS=4))
    hdr += ["; @launch kernel=ln_kernel grid=(512,1,1) block=(256,1,1) lds=0",
            f"; @launch kernel=gemm1_kernel grid=(208,1,1) block=(512,1,1) lds={lds1}",
            f"; @launch kernel=mid_kernel grid=(768,1,1) block=(256,1,1) lds={ldsm}",
            f"; @launch kernel=final_kernel grid=(256,1,1) block=(256,1,1) lds={lds2}"]
    txt = "\n".join(hdr) + "\n.amdgcn_target \"amdgcn-amd-amdhsa--gfx950\"\n" + ln_kernel() + g1 + md + g2
    open(out, "w").write(txt)
main()
```

```python
import sys
NAME = "parallel_sum__mha_block__dense_activation_relu__prompt"
XN_OFF, QKV_OFF, CAT_OFF = 0, 0x400000, 0x1000000
WS_BYTES = 268435456
CATP = 4608 * 2
QKVP = 3072 * 2

class K:
    def __init__(s, name): s.name = name; s.L = []; s.uid = 0
    def __call__(s, t=""):
        import os
        X = os.environ.get("XP", "")
        if s.name == "mid_kernel":
            if "e" in X and t.startswith("v_exp_f32"): t = t.replace("v_exp_f32", "v_mov_b32")
            if "m" in X and t.startswith("v_mfma"): return
            if "b" in X and t.startswith("s_barrier"): return
            if "d" in X and t.startswith("buffer_load") and t.endswith("lds"): return
            if "v" in X and (t.startswith("v_fma") or t.startswith("v_exp") or t.startswith("v_cvt") or t.startswith("v_max3")): return
            if "l" in X and t.startswith("ds_read"): return
        s.L.append("    " + t)
    def label(s, l): s.L.append(l + ":")
    def new(s, p): s.uid += 1; return f"{s.name}_{p}{s.uid}"
    def srd(s, d, lo, nbytes, add=0):
        if add:
            s(f"s_add_u32 s{d}, s{lo}, 0x{add:x}"); s(f"s_addc_u32 s{d+1}, s{lo+1}, 0")
        else:
            s(f"s_mov_b32 s{d}, s{lo}"); s(f"s_mov_b32 s{d+1}, s{lo+1}")
        s(f"s_and_b32 s{d+1}, s{d+1}, 0xffff")
        s(f"s_mov_b32 s{d+2}, 0x{nbytes:x}"); s(f"s_mov_b32 s{d+3}, 0x00020000")
    def text(s, vgpr, agpr=0, sgpr=100):
        acc = (vgpr + 3) // 4 * 4
        nf = vgpr if agpr == 0 else acc + agpr
        h = [".text", f".globl {s.name}", ".p2align 8", f".type {s.name},@function", f"{s.name}:"]
        d = [".section .rodata,\"a\"", ".p2align 6", f".amdhsa_kernel {s.name}",
             f"  .amdhsa_next_free_vgpr {nf}", f"  .amdhsa_next_free_sgpr {sgpr}",
             f"  .amdhsa_accum_offset {acc}", "  .amdhsa_group_segment_fixed_size 0",
             "  .amdhsa_kernarg_size 72", "  .amdhsa_user_sgpr_count 2",
             "  .amdhsa_user_sgpr_kernarg_segment_ptr 1", "  .amdhsa_system_sgpr_workgroup_id_x 1",
             ".end_amdhsa_kernel"]
        return "\n".join(h + s.L + d) + "\n"

def load_args(k):
    k("s_load_dwordx16 s[64:79], s[0:1], 0")
    k("s_load_dwordx2 s[80:81], s[0:1], 64")

def wave_sum(k, v, t, sa, sb):
    for o in (0x041F, 0x081F, 0x101F, 0x201F, 0x401F):
        k(f"ds_swizzle_b32 v{t}, v{v} offset:0x{o:x}"); k("s_waitcnt lgkmcnt(0)")
        k(f"v_add_f32 v{v}, v{v}, v{t}")
    k("s_nop 0")
    k(f"v_readlane_b32 s{sa}, v{v}, 0"); k(f"v_readlane_b32 s{sb}, v{v}, 32"); k("s_nop 1")
    k(f"v_mov_b32 v{v}, s{sa}"); k(f"v_add_f32 v{v}, s{sb}, v{v}")

def rbf(k, v, t):
    k(f"v_cvt_pk_bf16_f32 v{t}, v{v}, v{v}"); k(f"v_lshlrev_b32 v{v}, 16, v{t}")

def ln_kernel():
    k = K("ln_kernel")
    load_args(k)
    k("s_cmp_ge_u32 s2, 512"); k(f"s_cbranch_scc1 ln_kernel_end")
    k("v_lshrrev_b32 v1, 6, v0")
    k("v_and_b32 v2, 63, v0")
    k("s_lshl_b32 s3, s2, 2")
    k("v_add_u32 v1, s3, v1")
    k("v_lshlrev_b32 v1, 11, v1")
    k("v_lshl_add_u32 v1, v2, 4, v1")
    k("s_waitcnt lgkmcnt(0)")
    k.srd(8, 64, 2048 * 2048)
    k.srd(12, 80, 2048 * 2048, XN_OFF)
    k("buffer_load_dwordx4 v[4:7], v1, s[8:11], 0 offen")
    k("buffer_load_dwordx4 v[8:11], v1, s[8:11], 0 offen offset:1024")
    k("s_lshl_b32 s4, s2, 8"); k("v_add_u32 v88, s4, v0"); k("v_lshlrev_b32 v88, 4, v88")
    for j in range(1, 4): k(f"v_add_u32 v{88+j}, 0x{j*0x200000:x}, v88")
    k.srd(16, 66, 1024 * 6144); k.srd(20, 72, 1024 * 7168); k.srd(24, 74, 3584 * 2048); k.srd(28, 68, 1024 * 2048)
    n = 0
    for sr, cnt in ((16, 3), (20, 4), (24, 4), (28, 1)):
        for j in range(cnt):
            k(f"buffer_load_dwordx4 v[{40+4*n}:{43+4*n}], v{88+j}, s[{sr}:{sr+3}], 0 offen"); n += 1
    k("s_waitcnt vmcnt(12)")
    for i in range(8):
        k(f"v_lshlrev_b32 v{16+2*i}, 16, v{4+i}"); k(f"v_and_b32 v{17+2*i}, 0xffff0000, v{4+i}")
    k("v_add_f32 v32, v16, v17")
    for i in range(2, 16): k(f"v_add_f32 v32, v32, v{16+i}")
    wave_sum(k, 32, 33, 20, 21)
    k("v_mul_f32 v32, 0x3a800000, v32")
    k("v_sub_f32 v34, v16, v32"); k("v_mul_f32 v35, v34, v34")
    for i in range(1, 16):
        k(f"v_sub_f32 v34, v{16+i}, v32"); k("v_fmac_f32 v35, v34, v34")
    wave_sum(k, 35, 33, 20, 21)
    k("v_mul_f32 v35, 0x3a800000, v35")
    rbf(k, 35, 33); rbf(k, 32, 33)
    k("v_add_f32 v35, 0x3727c5ac, v35"); rbf(k, 35, 33)
    k("v_sqrt_f32 v35, v35"); k("s_nop 0"); rbf(k, 35, 33)
    k("v_rcp_f32 v35, v35"); k("s_nop 0")
    for i in range(16):
        k(f"v_sub_f32 v{16+i}, v{16+i}, v32")
    for i in range(8):
        k(f"v_cvt_pk_bf16_f32 v33, v{16+2*i}, v{17+2*i}")
        k(f"v_lshlrev_b32 v{16+2*i}, 16, v33"); k(f"v_and_b32 v{17+2*i}, 0xffff0000, v33")
        k(f"v_mul_f32 v{16+2*i}, v{16+2*i}, v35"); k(f"v_mul_f32 v{17+2*i}, v{17+2*i}, v35")
        k(f"v_cvt_pk_bf16_f32 v{4+i}, v{16+2*i}, v{17+2*i}")
    k("buffer_store_dwordx4 v[4:7], v1, s[12:15], 0 offen")
    k("buffer_store_dwordx4 v[8:11], v1, s[12:15], 0 offen offset:1024")
    k("s_waitcnt vmcnt(0)")
    k.label("ln_kernel_end"); k("s_endpgm")
    return k.text(92)

def gemm_body(k, BM, BN, WM, WN, setup, pitchA, ksteps, mode, NS=2):
    NW = WM * WN; TM = BM // WM // 32; TN = BN // WN // 32
    ABY = BM * 128; RB = BN * 2; BBY = 64 * RB
    STG = ABY + BBY
    IA = BM // 8 // NW; IB = BN // 8 // NW
    CPR = BN // 8; RPI = 1024 // RB
    k("v_lshrrev_b32 v1, 6, v0"); k("v_and_b32 v0, 63, v0"); k("s_nop 0")
    k("v_readfirstlane_b32 s4, v1")
    setup(k)
    k(f"s_lshr_b32 s5, s4, {WN.bit_length()-1}")
    k(f"s_and_b32 s6, s4, {WN-1}")
    k("v_lshrrev_b32 v3, 3, v0"); k("s_lshl_b32 s7, s4, 3"); k("s_add_u32 s7, s7, s23")
    k("v_add_u32 v3, s7, v3"); k(f"s_mov_b32 s7, {pitchA}"); k("v_mul_lo_u32 v2, v3, s7")
    k("s_and_b32 s7, s4, 1"); k("s_lshl_b32 s7, s7, 2")
    k("v_lshrrev_b32 v3, 4, v0"); k("v_add_u32 v3, s7, v3"); k("v_and_b32 v3, 7, v3")
    k("v_and_b32 v4, 7, v0"); k("v_xor_b32 v3, v3, v4"); k("v_lshl_add_u32 v2, v3, 4, v2")
    k(f"v_lshrrev_b32 v4, {CPR.bit_length()-1}, v0"); k(f"s_mul_i32 s7, s4, {RPI}")
    k("v_add_u32 v4, s7, v4")
    k("v_mul_lo_u32 v3, v4, s20")
    if BN >= 128: k("v_and_b32 v4, 3, v4"); k("v_lshlrev_b32 v4, 2, v4")
    else: k("v_lshrrev_b32 v4, 1, v4"); k("v_and_b32 v4, 1, v4"); k("v_lshlrev_b32 v4, 2, v4")
    k(f"v_and_b32 v5, {CPR-1}, v0"); k("v_xor_b32 v4, v4, v5"); k("v_lshl_add_u32 v3, v4, 4, v3")
    k("s_lshl_b32 s7, s24, 1"); k("v_add_u32 v3, s7, v3")
    k("v_and_b32 v12, 31, v0"); k("v_lshrrev_b32 v13, 5, v0")
    k(f"s_mul_i32 s7, s5, {TM*32*128}")
    k("v_lshlrev_b32 v14, 7, v12"); k("v_add_u32 v14, s7, v14")
    k("v_lshrrev_b32 v15, 1, v0"); k("v_and_b32 v15, 7, v15")
    for kk in range(4):
        k(f"v_add_u32 v16, {2*kk}, v13"); k("v_xor_b32 v16, v16, v15"); k(f"v_lshl_add_u32 v{4+kk}, v16, 4, v14")
    k("v_lshrrev_b32 v14, 2, v0"); k("v_and_b32 v14, 3, v14")
    k("v_lshl_add_u32 v15, v13, 3, v14")
    k(f"s_mov_b32 s7, {RB}"); k("v_mul_lo_u32 v15, v15, s7")
    k("v_lshrrev_b32 v16, 4, v0"); k("v_and_b32 v16, 1, v16"); k("v_lshl_add_u32 v15, v16, 5, v15")
    k("v_and_b32 v16, 3, v0"); k("v_lshl_add_u32 v15, v16, 3, v15")
    k(f"v_add_u32 v15, {ABY}, v15")
    NB = 4 if BN >= 128 else 2
    if BN < 128: k("v_lshrrev_b32 v14, 1, v14")
    k(f"s_mul_i32 s7, s6, {TN}")
    NREG = min(TN, NB)
    for i in range(NREG):
        k(f"s_add_u32 s26, s7, {i}")
        k(f"s_and_b32 s27, s26, {NB-1}"); k(f"v_xor_b32 v16, s27, v14")
        k(f"s_andn2_b32 s26, s26, {NB-1}"); k("v_add_u32 v16, s26, v16")
        k(f"v_lshl_add_u32 v{8+i}, v16, 6, v15")
    assert TN <= NB or (TN % NB == 0)
    ACC = 128 if TM * TN > 4 else 80
    FR = 28; AB = 20
    nfr = (TM + TN) * 4
    for i in range(TM * TN * 16): k(f"v_mov_b32 v{ACC+i}, 0")
    k("s_mov_b32 s40, s36")
    k("s_mov_b32 s41, s37")
    k(f"s_lshl_b32 s42, s20, 6")
    k(f"s_mul_i32 s43, s20, {NW*RPI}")
    k(f"s_lshl_b32 s44, s4, 10")
    k("s_mov_b32 s45, 0")
    def dma_list():
        r = []
        for t in range(IA):
            r.append([f"s_add_u32 s46, s40, {t*NW*8*pitchA}", f"s_add_u32 m0, s44, {t*NW*1024}", "s_nop 0",
                      "buffer_load_dwordx4 v2, s[8:11], s46 offen lds"])
        for t in range(IB):
            r.append([f"s_add_u32 m0, s44, {ABY + t*NW*1024}",
                      "s_add_u32 s49, s49, s43" if t else "s_mov_b32 s49, s41",
                      "buffer_load_dwordx4 v3, s[12:15], s49 offen lds"])
        r[-1] += ["s_add_u32 s40, s40, 128", "s_add_u32 s41, s41, s42", f"s_add_u32 s44, s44, {STG}",
                  f"s_cmp_ge_u32 s44, {NS*STG}", f"s_cselect_b32 s46, {NS*STG}, 0", "s_sub_u32 s44, s44, s46"]
        return r
    def dma():
        for g in dma_list():
            for t in g: k(t)
    def reads(kk, buf):
        b = FR + buf * nfr
        for tn in range(TN):
            o = kk * 16 * RB + (tn // NB) * NB * 64
            k(f"ds_read_b64_tr_b16 v[{b+tn*4}:{b+tn*4+1}], v{8+tn%NB} offset:{o}")
            k(f"ds_read_b64_tr_b16 v[{b+tn*4+2}:{b+tn*4+3}], v{8+tn%NB} offset:{o+4*RB}")
        for tm in range(TM):
            k(f"ds_read_b128 v[{b+TN*4+tm*4}:{b+TN*4+tm*4+3}], v{4+kk} offset:{tm*4096}")
    def mfmas(buf, extra):
        b = FR + buf * nfr
        for tm in range(TM):
            for tn in range(TN):
                a = ACC + (tm * TN + tn) * 16
                k(f"v_mfma_f32_32x32x16_bf16 v[{a}:{a+15}], v[{b+tn*4}:{b+tn*4+3}], v[{b+TN*4+tm*4}:{b+TN*4+tm*4+3}], v[{a}:{a+15}]")
                if extra:
                    for t in extra.pop(0): k(t)
    def epi_addr():
        k(f"s_mul_i32 s7, s5, {TM*32}"); k("s_add_u32 s7, s7, s23")
        k("v_add_u32 v14, s7, v12")
        k("v_mul_lo_u32 v15, v14, s21")
        k(f"s_mul_i32 s7, s6, {TN*32}"); k("s_add_u32 s7, s7, s25")
        esz = 2 if mode == 'f32' else 1
        k(f"s_lshl_b32 s7, s7, {esz}")
        k("v_add_u32 v15, s7, v15"); k("v_lshl_add_u32 v16, v13, 4, v15")
        k("v_lshl_add_u32 v17, v13, 3, v15")
        k("v_lshlrev_b32 v18, 1, v17")
        k("s_lshl_b32 s47, s21, 5")
    NPART = 2; PB = ACC + TM * TN * 16; PSZ = 8 + 16 * NPART
    if mode == 'final':
        epi_addr()
        for tm in range(TM):
            if tm:
                k("v_add_u32 v17, s47, v17"); k("v_lshlrev_b32 v18, 1, v17")
            for tn in range(TN):
                X = PB + (tm * TN + tn) * PSZ
                for q in range(4):
                    k(f"buffer_load_dwordx2 v[{X+2*q}:{X+2*q+1}], v17, s[32:35], 0 offen offset:{tn*64+q*16}")
                    for pi in range(NPART):
                        so = ["0", "s39", "s50", "s51"][pi]
                        R = X + 8 + 16 * pi + 4 * q
                        k(f"buffer_load_dwordx4 v[{R}:{R+3}], v18, s[28:31], {so} offen offset:{tn*128+q*32}")
    ND = IA + IB
    for i in range(4 + NREG): k(f"v_mov_b32 v{AB+i}, v{4+i}")
    k("s_mov_b32 s48, 0")
    for i in range(NS - 1): dma()
    lp = k.new("loop"); k.label(lp)
    k(f"s_waitcnt vmcnt({(NS-2)*ND})"); k("s_barrier")
    k("s_add_u32 s45, s45, 1")
    reads(0, 0)
    nrd = 2 * TN + TM
    dl = dma_list()
    per = max((ND + 3) // 4, min(ND, TM * TN))
    for kk in range(4):
        if kk < 3:
            reads(kk + 1, (kk + 1) % 2); k(f"s_waitcnt lgkmcnt({nrd})")
        else: k("s_waitcnt lgkmcnt(0)")
        ex = dl[:per]; dl = dl[per:]
        mfmas(kk % 2, ex)
        assert not ex
    k(f"s_add_u32 s48, s48, {STG}"); k(f"s_cmp_ge_u32 s48, {NS*STG}"); k("s_cselect_b32 s48, 0, s48")
    for i in range(4 + NREG): k(f"v_add_u32 v{4+i}, s48, v{AB+i}")
    k(f"s_cmp_lt_u32 s45, {ksteps}"); k(f"s_cbranch_scc1 {lp}")
    k("s_waitcnt vmcnt(0)")
    epi_addr()
    k("s_nop 7"); k("s_nop 7")
    for tm in range(TM):
        if tm:
            k("v_add_u32 v16, s47, v16"); k("v_add_u32 v17, s47, v17"); k("v_lshlrev_b32 v18, 1, v17")
        if mode == 'f32':
            for tn in range(TN):
                a = ACC + (tm * TN + tn) * 16
                for q in range(4):
                    k(f"buffer_store_dwordx4 v[{a+4*q}:{a+4*q+3}], v16, s[16:19], 0 offen offset:{tn*128+q*32}")
            continue
        for tn in range(TN):
            a = ACC + (tm * TN + tn) * 16
            if mode == 'final':
                X = PB + (tm * TN + tn) * PSZ; P0 = X + 8; P1 = X + 24
                for j in range(16):
                    k(f"v_add_f32 v{P0+j}, v{P0+j}, v{P1+j}")
                for j in range(8):
                    k(f"v_lshlrev_b32 v{P1+2*j}, 16, v{X+j}"); k(f"v_and_b32 v{P1+2*j+1}, 0xffff0000, v{X+j}")
                for j in range(16):
                    k(f"v_add_f32 v{a+j}, v{a+j}, v{P1+j}"); k(f"v_add_f32 v{a+j}, v{a+j}, v{P0+j}")
            else:
                for j in range(16):
                    k(f"v_max_f32 v{a+j}, s22, v{a+j}"); k(f"v_mul_f32 v{a+j}, s38, v{a+j}")
            for j in range(8): k(f"v_cvt_pk_bf16_f32 v{a+j}, v{a+2*j}, v{a+2*j+1}")
            k("s_nop 1")
            for qq in range(2):
                b = a + 4 * qq
                k(f"v_permlane32_swap_b32 v{b}, v{b+2}"); k(f"v_permlane32_swap_b32 v{b+1}, v{b+3}")
            for qq in range(2):
                b = a + 4 * qq
                k(f"buffer_store_dwordx4 v[{b}:{b+3}], v16, s[16:19], 0 offen offset:{tn*64+qq*32}")
    return (PB + TM * TN * PSZ if mode == 'final' else ACC + TM * TN * 16), STG * NS

def simple_kernel(name, nwg, fn):
    k = K(name)
    load_args(k)
    k(f"s_cmp_ge_u32 s2, {nwg}"); k(f"s_cbranch_scc1 {name}_end")
    k("s_waitcnt lgkmcnt(0)")
    nv, lds = fn(k)
    k.label(f"{name}_end"); k("s_endpgm")
    return k.text(nv), lds

def setup_g1(BM, BN):
    nq = 3072 // BN; nt = 6656 // BN
    def f(k):
        k("s_and_b32 s23, s2, 7"); k("s_mul_i32 s23, s23, 26"); k("s_lshr_b32 s24, s2, 3"); k("s_add_u32 s24, s24, s23")
        k("s_and_b32 s23, s24, 7"); k("s_lshl_b32 s23, s23, 8")
        k("s_lshr_b32 s24, s24, 3"); k("s_lshl_b32 s24, s24, 8")
        k.srd(8, 80, 2048 * 2048, XN_OFF)
        k("s_mov_b32 s36, 0"); k("s_mov_b32 s37, 0"); k("s_mov_b32 s38, 1.0")
        l1, l2 = k.new("ffn"), k.new("j")
        k("s_cmp_ge_u32 s24, 3072"); k(f"s_cbranch_scc1 {l1}")
        k.srd(12, 66, 1024 * 6144); k.srd(16, 80, 2048 * QKVP, QKV_OFF)
        k("s_mov_b32 s20, 6144"); k(f"s_mov_b32 s21, {QKVP}"); k("s_mov_b32 s22, 0xff800000"); k("s_mov_b32 s25, s24")
        k("s_cmp_lt_u32 s24, 1024"); k("s_cselect_b32 s38, 0x3e8293ee, s38")
        k(f"s_branch {l2}")
        k.label(l1)
        k.srd(12, 72, 1024 * 7168); k.srd(16, 80, 2048 * CATP, CAT_OFF)
        k("s_mov_b32 s20, 7168"); k(f"s_mov_b32 s21, {CATP}"); k("s_mov_b32 s22, 0")
        k("s_sub_u32 s24, s24, 3072"); k("s_add_u32 s25, s24, 1024")
        k.label(l2)
    return f

PART_OFF = 0x2400000
def setup_ffn2(k):
    k("s_lshr_b32 s7, s2, 3")
    k("s_and_b32 s23, s7, 7"); k("s_lshr_b32 s24, s2, 1"); k("s_and_b32 s24, s24, 1"); k("s_lshl_b32 s24, s24, 3")
    k("s_add_u32 s23, s23, s24"); k("s_lshl_b32 s23, s23, 7")
    k("s_lshr_b32 s24, s7, 3"); k("s_and_b32 s7, s2, 1"); k("s_lshl_b32 s7, s7, 2"); k("s_add_u32 s24, s24, s7"); k("s_lshl_b32 s24, s24, 7")
    k("s_lshr_b32 s7, s2, 2"); k("s_and_b32 s7, s7, 1")
    k.srd(8, 80, 2048 * CATP, CAT_OFF); k.srd(12, 74, 3584 * 2048)
    k.srd(16, 80, 2 * 2048 * 4096, PART_OFF)
    k("s_mul_i32 s36, s7, 3584"); k("s_add_u32 s36, s36, 2048")
    k(f"s_mul_i32 s37, s7, {1792*2048}")
    k("s_mov_b32 s20, 2048"); k("s_mov_b32 s21, 4096")
    k(f"s_mul_i32 s25, s7, {2048*1024}"); k("s_add_u32 s25, s25, s24")

def setup_final(BM, BN):
    def f(k):
        nn = 1024 // BN
        k(f"s_and_b32 s24, s2, {nn-1}"); k(f"s_mul_i32 s24, s24, {BN}")
        k(f"s_lshr_b32 s23, s2, {nn.bit_length()-1}"); k(f"s_lshl_b32 s23, s23, {BM.bit_length()-1}")
        k.srd(8, 80, 2048 * CATP, CAT_OFF)
        k.srd(12, 68, 1024 * 2048); k.srd(28, 80, 2 * 2048 * 4096, PART_OFF)
        k.srd(16, 76, 2048 * 2048); k.srd(32, 64, 2048 * 2048)
        k("s_mov_b32 s20, 2048"); k("s_mov_b32 s21, 2048"); k("s_mov_b32 s25, s24")
        k("s_mov_b32 s36, 0"); k("s_mov_b32 s37, 0"); k(f"s_mov_b32 s39, {2048*4096}"); k(f"s_mov_b32 s50, {2*2048*4096}"); k(f"s_mov_b32 s51, {3*2048*4096}")
    return f

def attn_body(k, wgid="s2"):
    Q, ONE, KF, VF, S, P, O, Lr, MB = 24, 20, 32, 48, 64, 128, 160, 176, 192
    k("v_lshrrev_b32 v1, 6, v0"); k("v_and_b32 v0, 63, v0"); k("s_nop 0")
    k("v_readfirstlane_b32 s4, v1")
    k(f"s_and_b32 s5, {wgid}, 31"); k(f"s_lshr_b32 s6, {wgid}, 5")
    k.srd(8, 80, 2048 * QKVP, QKV_OFF); k.srd(16, 80, 2048 * CATP, CAT_OFF)
    k("v_and_b32 v12, 31, v0"); k("v_lshrrev_b32 v13, 5, v0")
    k("s_lshl_b32 s7, s6, 7"); k("s_lshl_b32 s20, s4, 5"); k("s_add_u32 s7, s7, s20")
    k("v_add_u32 v14, s7, v12")
    k(f"s_mov_b32 s21, {QKVP}"); k("v_mul_lo_u32 v15, v14, s21")
    k("s_lshl_b32 s22, s5, 6"); k("v_add_u32 v15, s22, v15"); k("v_lshl_add_u32 v15, v13, 4, v15")
    k(f"buffer_load_dwordx4 v[{Q}:{Q+3}], v15, s[8:11], 0 offen")
    k(f"buffer_load_dwordx4 v[{Q+4}:{Q+7}], v15, s[8:11], 0 offen offset:32")
    k("v_lshrrev_b32 v4, 2, v0"); k("s_lshl_b32 s7, s4, 4"); k("v_add_u32 v4, s7, v4")
    k("v_mul_lo_u32 v4, v4, s21"); k("v_add_u32 v4, s22, v4")
    k("v_and_b32 v5, 3, v0"); k("v_lshrrev_b32 v6, 4, v0"); k("v_xor_b32 v6, v6, v5")
    k("v_lshl_add_u32 v2, v6, 4, v4"); k("v_add_u32 v2, 2048, v2")
    k("v_lshl_add_u32 v3, v5, 4, v4"); k("v_add_u32 v3, 4096, v3")
    k("v_lshrrev_b32 v7, 2, v0"); k("v_and_b32 v7, 3, v7")
    for kk in range(2):
        k(f"v_add_u32 v8, {2*kk}, v13"); k("v_xor_b32 v8, v8, v7"); k("v_lshlrev_b32 v8, 4, v8")
        k(f"v_lshl_add_u32 v{4+kk}, v12, 6, v8")
    k("v_lshl_add_u32 v8, v13, 2, v7"); k("v_lshlrev_b32 v8, 6, v8")
    k("v_lshrrev_b32 v9, 4, v0"); k("v_and_b32 v9, 1, v9"); k("v_lshl_add_u32 v8, v9, 5, v8")
    k("v_and_b32 v9, 3, v0"); k("v_lshl_add_u32 v8, v9, 3, v8"); k("v_add_u32 v6, 16384, v8")
    for i in range(4): k(f"v_mov_b32 v{ONE+i}, 0x3f803f80")
    for i in range(32): k(f"v_mov_b32 v{O+i}, 0")
    k("v_mov_b32 v10, 0")
    k("s_mov_b32 s40, 0"); k("s_mov_b32 s41, 0"); k("s_lshl_b32 s44, s4, 10"); k("s_mov_b32 s45, 0")
    k("s_mov_b32 s30, 0x3e8293ee")
    k("s_mov_b64 s[34:35], 0"); k("s_mov_b32 s31, 0x41000000")
    BLK = 64 * QKVP
    def dmaK(par):
        k(f"s_add_u32 m0, s44, {par*4096}"); k("s_nop 0")
        k("buffer_load_dwordx4 v2, s[8:11], s40 offen lds"); k(f"s_add_u32 s40, s40, {BLK}")
    def dmaV(par):
        k(f"s_add_u32 m0, s44, {16384+par*4096}"); k("s_nop 0")
        k("buffer_load_dwordx4 v3, s[8:11], s41 offen lds"); k(f"s_add_u32 s41, s41, {BLK}")
    def readK(par):
        for kt in range(2):
            for kk in range(2):
                b = KF + (kt * 2 + kk) * 4
                k(f"ds_read_b128 v[{b}:{b+3}], v{4+kk} offset:{par*4096+kt*2048}")
    def readV(par):
        for b in range(4):
            r = VF + b * 4
            k(f"ds_read_b64_tr_b16 v[{r}:{r+1}], v6 offset:{par*4096+b*1024}")
            k(f"ds_read_b64_tr_b16 v[{r+2}:{r+3}], v6 offset:{par*4096+b*1024+512}")
    def mfA(par, first=False):
        r = []
        for kt in range(2):
            b = KF + kt * 8; s = S + par * 32 + kt * 16
            c = "0" if first else f"v[{MB}:{MB+15}]"
            r.append(f"v_mfma_f32_32x32x16_bf16 v[{s}:{s+15}], v[{b}:{b+3}], v[{Q}:{Q+3}], {c}")
            r.append(f"v_mfma_f32_32x32x16_bf16 v[{s}:{s+15}], v[{b+4}:{b+7}], v[{Q+4}:{Q+7}], v[{s}:{s+15}]")
        return r
    def mfC(par):
        r = []
        for b in range(4):
            p = P + par * 16 + b * 4
            r.append(f"v_mfma_f32_32x32x16_bf16 v[{O}:{O+15}], v[{VF+b*4}:{VF+b*4+3}], v[{p}:{p+3}], v[{O}:{O+15}]")
            r.append(f"v_mfma_f32_32x32x16_bf16 v[{Lr}:{Lr+15}], v[{ONE}:{ONE+3}], v[{p}:{p+3}], v[{Lr}:{Lr+15}]")
        return r
    def maxB(par, first):
        s = S + par * 32
        k(f"v_max3_f32 v11, v{s}, v{s+1}, v{s+2}")
        k(f"v_max3_f32 v9, v{s+15}, v{s+16}, v{s+17}")
        for i in range(6):
            k(f"v_max3_f32 v11, v11, v{s+3+2*i}, v{s+4+2*i}")
            k(f"v_max3_f32 v9, v9, v{s+18+2*i}, v{s+19+2*i}")
        k(f"v_max3_f32 v9, v9, v{s+30}, v{s+31}")
        k("v_max_f32 v11, v11, v9"); k("v_mov_b32 v9, v11"); k("s_nop 1"); k("v_permlane32_swap_b32 v11, v9")
        k("v_max_f32 v11, v11, v9")
        sk = k.new("nochg")
        if not first:
            k("v_cmp_lt_f32 s[34:35], s31, v11")
            k("v_max_f32 v11, 0, v11")
            k("s_cmp_eq_u64 s[34:35], 0"); k(f"s_cbranch_scc1 {sk}")
        for i in range(32): k(f"v_sub_f32 v{s+i}, v{s+i}, v11")
        k("v_add_f32 v10, v10, v11"); k("v_exp_f32 v17, -v11")
        for i in range(16): k(f"v_sub_f32 v{MB+i}, 0, v10")
        k.label(sk)
    def valuB(par):
        s = S + par * 32; p = P + par * 16; r = []
        for g in range(5):
            if g < 4:
                for i in range(8): r.append(f"v_exp_f32 v{s+8*g+i}, v{s+8*g+i}")
            if g > 0:
                for i in range(4): r.append(f"v_cvt_pk_bf16_f32 v{p+4*(g-1)+i}, v{s+8*(g-1)+2*i}, v{s+8*(g-1)+2*i+1}")
        return r
    def rescale():
        sk = k.new("skip")
        k("s_cmp_eq_u64 s[34:35], 0"); k(f"s_cbranch_scc1 {sk}")
        for i in range(17): k(f"v_mul_f32 v{O+i}, v{O+i}, v17")
        k.label(sk)
    def body(i4, doA, doB, doC, first=False, fast=False):
        par = i4 % 2
        k("s_waitcnt vmcnt(4)"); k("s_barrier")
        if doA: readK((i4 + 1) % 4)
        if doC: readV((i4 - 1) % 4)
        if doB: dmaK(i4 % 4); dmaV((i4 + 2) % 4)
        if doC and not fast: rescale()
        mf = []
        if doA: mf += [("s_waitcnt lgkmcnt(%d)" % (8 if doC else 0), m) if i == 0 else (None, m) for i, m in enumerate(mfA(1 - par))]
        if doC: mf += [("s_waitcnt lgkmcnt(0)", m) if i == 0 else (None, m) for i, m in enumerate(mfC(1 - par))]
        if doB and (first or not fast): maxB(par, first)
        va = valuB(par) if doB else []
        step = max(1, (len(va) - 6) // max(1, len(mf)))
        pos = 2
        for i, v in enumerate(va):
            if mf and i == pos:
                w, m = mf.pop(0)
                if w: k(w)
                k(m); pos += step
            k(v)
        for w, m in mf:
            if w: k(w)
            k(m)
    def run(fast):
        dmaK(0); dmaK(1); dmaK(2); dmaV(0); dmaK(3); dmaV(1)
        k("s_waitcnt vmcnt(4)"); k("s_barrier")
        readK(0); k("s_waitcnt lgkmcnt(0)")
        for m in mfA(0, True): k(m)
        k("s_nop 7"); k("s_nop 3")
        body(0, True, True, False, True, fast)
        lp = k.new("loop"); k.label(lp)
        for i4 in (1, 2, 3, 0): body(i4, True, True, True, False, fast)
        k("s_add_u32 s45, s45, 1"); k("s_cmp_lt_u32 s45, 7"); k(f"s_cbranch_scc1 {lp}")
        body(1, True, True, True, False, fast); body(2, True, True, True, False, fast)
        body(3, False, True, True, False, fast)
        body(0, False, False, True, False, fast)
    run(True)
    done = k.new("done")
    k("s_nop 7"); k("s_nop 7")
    k("s_mov_b32 s7, 0x5f800000")
    k(f"v_cmp_nlt_f32 s[34:35], v{Lr}, s7")
    k("s_cmp_lg_u64 s[34:35], 0"); k("s_cselect_b32 s7, 1, 0")
    k("v_mov_b32 v9, s7"); k("s_lshl_b32 s7, s4, 2"); k("s_add_u32 s7, s7, 40960"); k("v_mov_b32 v11, s7")
    k("ds_write_b32 v11, v9")
    k("s_waitcnt vmcnt(0) lgkmcnt(0)"); k("s_barrier")
    k("v_mov_b32 v11, 40960"); k("ds_read_b128 v[32:35], v11"); k("s_waitcnt lgkmcnt(0)")
    k("v_or3_b32 v9, v32, v33, v34"); k("v_or_b32 v9, v9, v35"); k("s_nop 0")
    k("v_readfirstlane_b32 s7, v9"); k("s_cmp_eq_u32 s7, 0"); k(f"s_cbranch_scc1 {done}")
    for i in range(32): k(f"v_mov_b32 v{O+i}, 0")
    k("v_mov_b32 v10, 0")
    k("s_mov_b32 s40, 0"); k("s_mov_b32 s41, 0"); k("s_mov_b32 s45, 0"); k("s_mov_b64 s[34:35], 0")
    run(False)
    k.label(done)
    k("s_waitcnt vmcnt(0)")
    k(f"s_mov_b32 s21, {CATP}"); k("v_mul_lo_u32 v15, v14, s21"); k("v_add_u32 v15, s22, v15")
    k("v_lshl_add_u32 v15, v13, 4, v15")
    k("s_nop 7"); k("s_nop 7")
    k(f"v_rcp_f32 v9, v{Lr}"); k("s_nop 0")
    for i in range(16): k(f"v_mul_f32 v{O+i}, v{O+i}, v9")
    for j in range(8): k(f"v_cvt_pk_bf16_f32 v{O+j}, v{O+2*j}, v{O+2*j+1}")
    k("s_nop 1")
    for qq in range(2):
        b = O + 4 * qq
        k(f"v_permlane32_swap_b32 v{b}, v{b+2}"); k(f"v_permlane32_swap_b32 v{b+1}, v{b+3}")
    for qq in range(2):
        k(f"buffer_store_dwordx4 v[{O+4*qq}:{O+4*qq+3}], v15, s[16:19], 0 offen offset:{qq*32}")
    return 208

def mid_kernel():
    k = K("mid_kernel")
    load_args(k)
    k("s_cmp_ge_u32 s2, 768"); k("s_cbranch_scc1 mid_kernel_end")
    k("s_waitcnt lgkmcnt(0)")
    k("s_cmp_ge_u32 s2, 256"); k("s_cbranch_scc1 mid_kernel_attn")
    import os
    if "A" in os.environ.get("XP", ""): k("s_endpgm")
    if "P" in os.environ.get("XP", ""): k("s_setprio 3")
    nv, lds = gemm_body(k, 128, 128, 2, 2, setup_ffn2, CATP, 28, 'f32')
    k("s_endpgm")
    k.label("mid_kernel_attn")
    k("s_sub_u32 s3, s2, 256")
    k("s_setprio 3")
    nv2 = attn_body(k, "s3")
    k.label("mid_kernel_end"); k("s_endpgm")
    return k.text(max(nv, nv2)), max(lds, 16384)

def main():
    out = sys.argv[1] if len(sys.argv) > 1 else f"cdna_kernels/{NAME}.s"
    hdr = [l for l in open(f"cdna_kernels/{NAME}.s.ref").read().split("\n") if l.startswith(";") and "@launch" not in l]
    g1, lds1 = simple_kernel("gemm1_kernel", 208, lambda k: gemm_body(k, 256, 256, 4, 2, setup_g1(256, 256), 2048, 16, 'bf16'))
    md, ldsm = mid_kernel()
    g2, lds2 = simple_kernel("final_kernel", 256, lambda k: gemm_body(k, 128, 64, 2, 2, setup_final(128, 64), CATP, 16, 'final', NS=4))
    hdr += ["; @launch kernel=ln_kernel grid=(512,1,1) block=(256,1,1) lds=0",
            f"; @launch kernel=gemm1_kernel grid=(208,1,1) block=(512,1,1) lds={lds1}",
            f"; @launch kernel=mid_kernel grid=(768,1,1) block=(256,1,1) lds={ldsm}",
            f"; @launch kernel=final_kernel grid=(256,1,1) block=(256,1,1) lds={lds2}"]
    txt = "\n".join(hdr) + "\n.amdgcn_target \"amdgcn-amd-amdhsa--gfx950\"\n" + ln_kernel() + g1 + md + g2
    open(out, "w").write(txt)
main()
```

```python
import sys
NAME = "parallel_sum__mha_block__dense_activation_relu__prompt"
XN_OFF, QKV_OFF, CAT_OFF = 0, 0x400000, 0x1000000
WS_BYTES = 268435456
CATP = 4608 * 2
QKVP = 3072 * 2

class K:
    def __init__(s, name): s.name = name; s.L = []; s.uid = 0
    def __call__(s, t=""):
        import os
        X = os.environ.get("XP", "")
        if s.name == "mid_kernel":
            if "e" in X and t.startswith("v_exp_f32"): t = t.replace("v_exp_f32", "v_mov_b32")
            if "m" in X and t.startswith("v_mfma"): return
            if "b" in X and t.startswith("s_barrier"): return
            if "d" in X and t.startswith("buffer_load") and t.endswith("lds"): return
            if "v" in X and (t.startswith("v_fma") or t.startswith("v_exp") or t.startswith("v_cvt") or t.startswith("v_max3")): return
            if "l" in X and t.startswith("ds_read"): return
        s.L.append("    " + t)
    def label(s, l): s.L.append(l + ":")
    def new(s, p): s.uid += 1; return f"{s.name}_{p}{s.uid}"
    def srd(s, d, lo, nbytes, add=0):
        if add:
            s(f"s_add_u32 s{d}, s{lo}, 0x{add:x}"); s(f"s_addc_u32 s{d+1}, s{lo+1}, 0")
        else:
            s(f"s_mov_b32 s{d}, s{lo}"); s(f"s_mov_b32 s{d+1}, s{lo+1}")
        s(f"s_and_b32 s{d+1}, s{d+1}, 0xffff")
        s(f"s_mov_b32 s{d+2}, 0x{nbytes:x}"); s(f"s_mov_b32 s{d+3}, 0x00020000")
    def text(s, vgpr, agpr=0, sgpr=100):
        acc = (vgpr + 3) // 4 * 4
        nf = vgpr if agpr == 0 else acc + agpr
        h = [".text", f".globl {s.name}", ".p2align 8", f".type {s.name},@function", f"{s.name}:"]
        d = [".section .rodata,\"a\"", ".p2align 6", f".amdhsa_kernel {s.name}",
             f"  .amdhsa_next_free_vgpr {nf}", f"  .amdhsa_next_free_sgpr {sgpr}",
             f"  .amdhsa_accum_offset {acc}", "  .amdhsa_group_segment_fixed_size 0",
             "  .amdhsa_kernarg_size 72", "  .amdhsa_user_sgpr_count 2",
             "  .amdhsa_user_sgpr_kernarg_segment_ptr 1", "  .amdhsa_system_sgpr_workgroup_id_x 1",
             ".end_amdhsa_kernel"]
        return "\n".join(h + s.L + d) + "\n"

def load_args(k):
    k("s_load_dwordx16 s[64:79], s[0:1], 0")
    k("s_load_dwordx2 s[80:81], s[0:1], 64")

def wave_sum(k, v, t, sa, sb):
    for o in (0x041F, 0x081F, 0x101F, 0x201F, 0x401F):
        k(f"ds_swizzle_b32 v{t}, v{v} offset:0x{o:x}"); k("s_waitcnt lgkmcnt(0)")
        k(f"v_add_f32 v{v}, v{v}, v{t}")
    k("s_nop 0")
    k(f"v_readlane_b32 s{sa}, v{v}, 0"); k(f"v_readlane_b32 s{sb}, v{v}, 32"); k("s_nop 1")
    k(f"v_mov_b32 v{v}, s{sa}"); k(f"v_add_f32 v{v}, s{sb}, v{v}")

def rbf(k, v, t):
    k(f"v_cvt_pk_bf16_f32 v{t}, v{v}, v{v}"); k(f"v_lshlrev_b32 v{v}, 16, v{t}")

def ln_kernel():
    k = K("ln_kernel")
    load_args(k)
    k("s_cmp_ge_u32 s2, 512"); k(f"s_cbranch_scc1 ln_kernel_end")
    k("v_lshrrev_b32 v1, 6, v0")
    k("v_and_b32 v2, 63, v0")
    k("s_lshl_b32 s3, s2, 2")
    k("v_add_u32 v1, s3, v1")
    k("v_lshlrev_b32 v1, 11, v1")
    k("v_lshl_add_u32 v1, v2, 4, v1")
    k("s_waitcnt lgkmcnt(0)")
    k.srd(8, 64, 2048 * 2048)
    k.srd(12, 80, 2048 * 2048, XN_OFF)
    k("buffer_load_dwordx4 v[4:7], v1, s[8:11], 0 offen")
    k("buffer_load_dwordx4 v[8:11], v1, s[8:11], 0 offen offset:1024")
    k("s_lshl_b32 s4, s2, 8"); k("v_add_u32 v88, s4, v0"); k("v_lshlrev_b32 v88, 4, v88")
    for j in range(1, 4): k(f"v_add_u32 v{88+j}, 0x{j*0x200000:x}, v88")
    k.srd(16, 66, 1024 * 6144); k.srd(20, 72, 1024 * 7168); k.srd(24, 74, 3584 * 2048); k.srd(28, 68, 1024 * 2048)
    n = 0
    for sr, cnt in ():
        for j in range(cnt):
            k(f"buffer_load_dwordx4 v[{40+4*n}:{43+4*n}], v{88+j}, s[{sr}:{sr+3}], 0 offen"); n += 1
    k("s_waitcnt vmcnt(0)")
    for i in range(8):
        k(f"v_lshlrev_b32 v{16+2*i}, 16, v{4+i}"); k(f"v_and_b32 v{17+2*i}, 0xffff0000, v{4+i}")
    k("v_add_f32 v32, v16, v17")
    for i in range(2, 16): k(f"v_add_f32 v32, v32, v{16+i}")
    wave_sum(k, 32, 33, 20, 21)
    k("v_mul_f32 v32, 0x3a800000, v32")
    k("v_sub_f32 v34, v16, v32"); k("v_mul_f32 v35, v34, v34")
    for i in range(1, 16):
        k(f"v_sub_f32 v34, v{16+i}, v32"); k("v_fmac_f32 v35, v34, v34")
    wave_sum(k, 35, 33, 20, 21)
    k("v_mul_f32 v35, 0x3a800000, v35")
    rbf(k, 35, 33); rbf(k, 32, 33)
    k("v_add_f32 v35, 0x3727c5ac, v35"); rbf(k, 35, 33)
    k("v_sqrt_f32 v35, v35"); k("s_nop 0"); rbf(k, 35, 33)
    k("v_rcp_f32 v35, v35"); k("s_nop 0")
    for i in range(16):
        k(f"v_sub_f32 v{16+i}, v{16+i}, v32")
    for i in range(8):
        k(f"v_cvt_pk_bf16_f32 v33, v{16+2*i}, v{17+2*i}")
        k(f"v_lshlrev_b32 v{16+2*i}, 16, v33"); k(f"v_and_b32 v{17+2*i}, 0xffff0000, v33")
        k(f"v_mul_f32 v{16+2*i}, v{16+2*i}, v35"); k(f"v_mul_f32 v{17+2*i}, v{17+2*i}, v35")
        k(f"v_cvt_pk_bf16_f32 v{4+i}, v{16+2*i}, v{17+2*i}")
    k("buffer_store_dwordx4 v[4:7], v1, s[12:15], 0 offen")
    k("buffer_store_dwordx4 v[8:11], v1, s[12:15], 0 offen offset:1024")
    k("s_waitcnt vmcnt(0)")
    k.label("ln_kernel_end"); k("s_endpgm")
    return k.text(92)

def gemm_body(k, BM, BN, WM, WN, setup, pitchA, ksteps, mode, NS=2):
    NW = WM * WN; TM = BM // WM // 32; TN = BN // WN // 32
    ABY = BM * 128; RB = BN * 2; BBY = 64 * RB
    STG = ABY + BBY
    IA = BM // 8 // NW; IB = BN // 8 // NW
    CPR = BN // 8; RPI = 1024 // RB
    k("v_lshrrev_b32 v1, 6, v0"); k("v_and_b32 v0, 63, v0"); k("s_nop 0")
    k("v_readfirstlane_b32 s4, v1")
    setup(k)
    k(f"s_lshr_b32 s5, s4, {WN.bit_length()-1}")
    k(f"s_and_b32 s6, s4, {WN-1}")
    k("v_lshrrev_b32 v3, 3, v0"); k("s_lshl_b32 s7, s4, 3"); k("s_add_u32 s7, s7, s23")
    k("v_add_u32 v3, s7, v3"); k(f"s_mov_b32 s7, {pitchA}"); k("v_mul_lo_u32 v2, v3, s7")
    k("s_and_b32 s7, s4, 1"); k("s_lshl_b32 s7, s7, 2")
    k("v_lshrrev_b32 v3, 4, v0"); k("v_add_u32 v3, s7, v3"); k("v_and_b32 v3, 7, v3")
    k("v_and_b32 v4, 7, v0"); k("v_xor_b32 v3, v3, v4"); k("v_lshl_add_u32 v2, v3, 4, v2")
    k(f"v_lshrrev_b32 v4, {CPR.bit_length()-1}, v0"); k(f"s_mul_i32 s7, s4, {RPI}")
    k("v_add_u32 v4, s7, v4")
    k("v_mul_lo_u32 v3, v4, s20")
    if BN >= 128: k("v_and_b32 v4, 3, v4"); k("v_lshlrev_b32 v4, 2, v4")
    else: k("v_lshrrev_b32 v4, 1, v4"); k("v_and_b32 v4, 1, v4"); k("v_lshlrev_b32 v4, 2, v4")
    k(f"v_and_b32 v5, {CPR-1}, v0"); k("v_xor_b32 v4, v4, v5"); k("v_lshl_add_u32 v3, v4, 4, v3")
    k("s_lshl_b32 s7, s24, 1"); k("v_add_u32 v3, s7, v3")
    k("v_and_b32 v12, 31, v0"); k("v_lshrrev_b32 v13, 5, v0")
    k(f"s_mul_i32 s7, s5, {TM*32*128}")
    k("v_lshlrev_b32 v14, 7, v12"); k("v_add_u32 v14, s7, v14")
    k("v_lshrrev_b32 v15, 1, v0"); k("v_and_b32 v15, 7, v15")
    for kk in range(4):
        k(f"v_add_u32 v16, {2*kk}, v13"); k("v_xor_b32 v16, v16, v15"); k(f"v_lshl_add_u32 v{4+kk}, v16, 4, v14")
    k("v_lshrrev_b32 v14, 2, v0"); k("v_and_b32 v14, 3, v14")
    k("v_lshl_add_u32 v15, v13, 3, v14")
    k(f"s_mov_b32 s7, {RB}"); k("v_mul_lo_u32 v15, v15, s7")
    k("v_lshrrev_b32 v16, 4, v0"); k("v_and_b32 v16, 1, v16"); k("v_lshl_add_u32 v15, v16, 5, v15")
    k("v_and_b32 v16, 3, v0"); k("v_lshl_add_u32 v15, v16, 3, v15")
    k(f"v_add_u32 v15, {ABY}, v15")
    NB = 4 if BN >= 128 else 2
    if BN < 128: k("v_lshrrev_b32 v14, 1, v14")
    k(f"s_mul_i32 s7, s6, {TN}")
    NREG = min(TN, NB)
    for i in range(NREG):
        k(f"s_add_u32 s26, s7, {i}")
        k(f"s_and_b32 s27, s26, {NB-1}"); k(f"v_xor_b32 v16, s27, v14")
        k(f"s_andn2_b32 s26, s26, {NB-1}"); k("v_add_u32 v16, s26, v16")
        k(f"v_lshl_add_u32 v{8+i}, v16, 6, v15")
    assert TN <= NB or (TN % NB == 0)
    ACC = 128 if TM * TN > 4 else 80
    FR = 28; AB = 20
    nfr = (TM + TN) * 4
    for i in range(TM * TN * 16): k(f"v_mov_b32 v{ACC+i}, 0")
    k("s_mov_b32 s40, s36")
    k("s_mov_b32 s41, s37")
    k(f"s_lshl_b32 s42, s20, 6")
    k(f"s_mul_i32 s43, s20, {NW*RPI}")
    k(f"s_lshl_b32 s44, s4, 10")
    k("s_mov_b32 s45, 0")
    def dma_list():
        r = []
        for t in range(IA):
            r.append([f"s_add_u32 s46, s40, {t*NW*8*pitchA}", f"s_add_u32 m0, s44, {t*NW*1024}", "s_nop 0",
                      "buffer_load_dwordx4 v2, s[8:11], s46 offen lds"])
        for t in range(IB):
            r.append([f"s_add_u32 m0, s44, {ABY + t*NW*1024}",
                      "s_add_u32 s49, s49, s43" if t else "s_mov_b32 s49, s41",
                      "buffer_load_dwordx4 v3, s[12:15], s49 offen lds"])
        r[-1] += ["s_add_u32 s40, s40, 128", "s_add_u32 s41, s41, s42", f"s_add_u32 s44, s44, {STG}",
                  f"s_cmp_ge_u32 s44, {NS*STG}", f"s_cselect_b32 s46, {NS*STG}, 0", "s_sub_u32 s44, s44, s46"]
        return r
    def dma():
        for g in dma_list():
            for t in g: k(t)
    def reads(kk, buf):
        b = FR + buf * nfr
        for tn in range(TN):
            o = kk * 16 * RB + (tn // NB) * NB * 64
            k(f"ds_read_b64_tr_b16 v[{b+tn*4}:{b+tn*4+1}], v{8+tn%NB} offset:{o}")
            k(f"ds_read_b64_tr_b16 v[{b+tn*4+2}:{b+tn*4+3}], v{8+tn%NB} offset:{o+4*RB}")
        for tm in range(TM):
            k(f"ds_read_b128 v[{b+TN*4+tm*4}:{b+TN*4+tm*4+3}], v{4+kk} offset:{tm*4096}")
    def mfmas(buf, extra):
        b = FR + buf * nfr
        for tm in range(TM):
            for tn in range(TN):
                a = ACC + (tm * TN + tn) * 16
                k(f"v_mfma_f32_32x32x16_bf16 v[{a}:{a+15}], v[{b+tn*4}:{b+tn*4+3}], v[{b+TN*4+tm*4}:{b+TN*4+tm*4+3}], v[{a}:{a+15}]")
                if extra:
                    for t in extra.pop(0): k(t)
    def epi_addr():
        k(f"s_mul_i32 s7, s5, {TM*32}"); k("s_add_u32 s7, s7, s23")
        k("v_add_u32 v14, s7, v12")
        k("v_mul_lo_u32 v15, v14, s21")
        k(f"s_mul_i32 s7, s6, {TN*32}"); k("s_add_u32 s7, s7, s25")
        esz = 2 if mode == 'f32' else 1
        k(f"s_lshl_b32 s7, s7, {esz}")
        k("v_add_u32 v15, s7, v15"); k("v_lshl_add_u32 v16, v13, 4, v15")
        k("v_lshl_add_u32 v17, v13, 3, v15")
        k("v_lshlrev_b32 v18, 1, v17")
        k("s_lshl_b32 s47, s21, 5")
    NPART = 2; PB = ACC + TM * TN * 16; PSZ = 8 + 16 * NPART
    if mode == 'final':
        epi_addr()
        for tm in range(TM):
            if tm:
                k("v_add_u32 v17, s47, v17"); k("v_lshlrev_b32 v18, 1, v17")
            for tn in range(TN):
                X = PB + (tm * TN + tn) * PSZ
                for q in range(4):
                    k(f"buffer_load_dwordx2 v[{X+2*q}:{X+2*q+1}], v17, s[32:35], 0 offen offset:{tn*64+q*16}")
                    for pi in range(NPART):
                        so = ["0", "s39", "s50", "s51"][pi]
                        R = X + 8 + 16 * pi + 4 * q
                        k(f"buffer_load_dwordx4 v[{R}:{R+3}], v18, s[28:31], {so} offen offset:{tn*128+q*32}")
    ND = IA + IB
    for i in range(4 + NREG): k(f"v_mov_b32 v{AB+i}, v{4+i}")
    k("s_mov_b32 s48, 0")
    for i in range(NS - 1): dma()
    lp = k.new("loop"); k.label(lp)
    k(f"s_waitcnt vmcnt({(NS-2)*ND})"); k("s_barrier")
    k("s_add_u32 s45, s45, 1")
    reads(0, 0)
    nrd = 2 * TN + TM
    dl = dma_list()
    per = max((ND + 3) // 4, min(ND, TM * TN))
    for kk in range(4):
        if kk < 3:
            reads(kk + 1, (kk + 1) % 2); k(f"s_waitcnt lgkmcnt({nrd})")
        else: k("s_waitcnt lgkmcnt(0)")
        ex = dl[:per]; dl = dl[per:]
        mfmas(kk % 2, ex)
        assert not ex
    k(f"s_add_u32 s48, s48, {STG}"); k(f"s_cmp_ge_u32 s48, {NS*STG}"); k("s_cselect_b32 s48, 0, s48")
    for i in range(4 + NREG): k(f"v_add_u32 v{4+i}, s48, v{AB+i}")
    k(f"s_cmp_lt_u32 s45, {ksteps}"); k(f"s_cbranch_scc1 {lp}")
    k("s_waitcnt vmcnt(0)")
    epi_addr()
    k("s_nop 7"); k("s_nop 7")
    for tm in range(TM):
        if tm:
            k("v_add_u32 v16, s47, v16"); k("v_add_u32 v17, s47, v17"); k("v_lshlrev_b32 v18, 1, v17")
        if mode == 'f32':
            for tn in range(TN):
                a = ACC + (tm * TN + tn) * 16
                for q in range(4):
                    k(f"buffer_store_dwordx4 v[{a+4*q}:{a+4*q+3}], v16, s[16:19], 0 offen offset:{tn*128+q*32}")
            continue
        for tn in range(TN):
            a = ACC + (tm * TN + tn) * 16
            if mode == 'final':
                X = PB + (tm * TN + tn) * PSZ; P0 = X + 8; P1 = X + 24
                for j in range(16):
                    k(f"v_add_f32 v{P0+j}, v{P0+j}, v{P1+j}")
                for j in range(8):
                    k(f"v_lshlrev_b32 v{P1+2*j}, 16, v{X+j}"); k(f"v_and_b32 v{P1+2*j+1}, 0xffff0000, v{X+j}")
                for j in range(16):
                    k(f"v_add_f32 v{a+j}, v{a+j}, v{P1+j}"); k(f"v_add_f32 v{a+j}, v{a+j}, v{P0+j}")
            else:
                for j in range(16):
                    k(f"v_max_f32 v{a+j}, s22, v{a+j}"); k(f"v_mul_f32 v{a+j}, s38, v{a+j}")
            for j in range(8): k(f"v_cvt_pk_bf16_f32 v{a+j}, v{a+2*j}, v{a+2*j+1}")
            k("s_nop 1")
            for qq in range(2):
                b = a + 4 * qq
                k(f"v_permlane32_swap_b32 v{b}, v{b+2}"); k(f"v_permlane32_swap_b32 v{b+1}, v{b+3}")
            for qq in range(2):
                b = a + 4 * qq
                k(f"buffer_store_dwordx4 v[{b}:{b+3}], v16, s[16:19], 0 offen offset:{tn*64+qq*32}")
    return (PB + TM * TN * PSZ if mode == 'final' else ACC + TM * TN * 16), STG * NS

def simple_kernel(name, nwg, fn, npf=0):
    k = K(name)
    load_args(k)
    k(f"s_cmp_ge_u32 s2, {nwg+npf}"); k(f"s_cbranch_scc1 {name}_end")
    k("s_waitcnt lgkmcnt(0)")
    if npf:
        k(f"s_cmp_lt_u32 s2, {nwg}"); k(f"s_cbranch_scc1 {name}_main")
        st = npf * 512 * 16
        k(f"s_sub_u32 s4, s2, {nwg}"); k("s_lshl_b32 s4, s4, 9"); k("v_add_u32 v1, s4, v0"); k("v_lshlrev_b32 v1, 4, v1")
        k.srd(24, 74, 3584 * 2048); k.srd(28, 68, 1024 * 2048)
        n = 0
        for sr, nb in ((24, 3584 * 2048), (28, 1024 * 2048)):
            for j in range((nb + st - 1) // st):
                k(f"v_add_u32 v{2+n}, 0x{j*st:x}, v1")
                k(f"buffer_load_dwordx4 v[{40+4*n}:{43+4*n}], v{2+n}, s[{sr}:{sr+3}], 0 offen"); n += 1
        assert n <= 30
        k("s_waitcnt vmcnt(0)"); k("s_endpgm")
        k.label(f"{name}_main")
    nv, lds = fn(k)
    k.label(f"{name}_end"); k("s_endpgm")
    return k.text(nv), lds

def setup_g1(BM, BN):
    nq = 3072 // BN; nt = 6656 // BN
    def f(k):
        k("s_and_b32 s23, s2, 7"); k("s_mul_i32 s23, s23, 26"); k("s_lshr_b32 s24, s2, 3"); k("s_add_u32 s24, s24, s23")
        k("s_and_b32 s23, s24, 7"); k("s_lshl_b32 s23, s23, 8")
        k("s_lshr_b32 s24, s24, 3"); k("s_lshl_b32 s24, s24, 8")
        k.srd(8, 80, 2048 * 2048, XN_OFF)
        k("s_mov_b32 s36, 0"); k("s_mov_b32 s37, 0"); k("s_mov_b32 s38, 1.0")
        l1, l2 = k.new("ffn"), k.new("j")
        k("s_cmp_ge_u32 s24, 3072"); k(f"s_cbranch_scc1 {l1}")
        k.srd(12, 66, 1024 * 6144); k.srd(16, 80, 2048 * QKVP, QKV_OFF)
        k("s_mov_b32 s20, 6144"); k(f"s_mov_b32 s21, {QKVP}"); k("s_mov_b32 s22, 0xff800000"); k("s_mov_b32 s25, s24")
        k("s_cmp_lt_u32 s24, 1024"); k("s_cselect_b32 s38, 0x3e8293ee, s38")
        k(f"s_branch {l2}")
        k.label(l1)
        k.srd(12, 72, 1024 * 7168); k.srd(16, 80, 2048 * CATP, CAT_OFF)
        k("s_mov_b32 s20, 7168"); k(f"s_mov_b32 s21, {CATP}"); k("s_mov_b32 s22, 0")
        k("s_sub_u32 s24, s24, 3072"); k("s_add_u32 s25, s24, 1024")
        k.label(l2)
    return f

PART_OFF = 0x2400000
def setup_ffn2(k):
    k("s_lshr_b32 s7, s2, 3")
    k("s_and_b32 s23, s7, 7"); k("s_lshr_b32 s24, s2, 1"); k("s_and_b32 s24, s24, 1"); k("s_lshl_b32 s24, s24, 3")
    k("s_add_u32 s23, s23, s24"); k("s_lshl_b32 s23, s23, 7")
    k("s_lshr_b32 s24, s7, 3"); k("s_and_b32 s7, s2, 1"); k("s_lshl_b32 s7, s7, 2"); k("s_add_u32 s24, s24, s7"); k("s_lshl_b32 s24, s24, 7")
    k("s_lshr_b32 s7, s2, 2"); k("s_and_b32 s7, s7, 1")
    k.srd(8, 80, 2048 * CATP, CAT_OFF); k.srd(12, 74, 3584 * 2048)
    k.srd(16, 80, 2 * 2048 * 4096, PART_OFF)
    k("s_mul_i32 s36, s7, 3584"); k("s_add_u32 s36, s36, 2048")
    k(f"s_mul_i32 s37, s7, {1792*2048}")
    k("s_mov_b32 s20, 2048"); k("s_mov_b32 s21, 4096")
    k(f"s_mul_i32 s25, s7, {2048*1024}"); k("s_add_u32 s25, s25, s24")

def setup_final(BM, BN):
    def f(k):
        nn = 1024 // BN
        k(f"s_and_b32 s24, s2, {nn-1}"); k(f"s_mul_i32 s24, s24, {BN}")
        k(f"s_lshr_b32 s23, s2, {nn.bit_length()-1}"); k(f"s_lshl_b32 s23, s23, {BM.bit_length()-1}")
        k.srd(8, 80, 2048 * CATP, CAT_OFF)
        k.srd(12, 68, 1024 * 2048); k.srd(28, 80, 2 * 2048 * 4096, PART_OFF)
        k.srd(16, 76, 2048 * 2048); k.srd(32, 64, 2048 * 2048)
        k("s_mov_b32 s20, 2048"); k("s_mov_b32 s21, 2048"); k("s_mov_b32 s25, s24")
        k("s_mov_b32 s36, 0"); k("s_mov_b32 s37, 0"); k(f"s_mov_b32 s39, {2048*4096}"); k(f"s_mov_b32 s50, {2*2048*4096}"); k(f"s_mov_b32 s51, {3*2048*4096}")
    return f

def attn_body(k, wgid="s2"):
    Q, ONE, KF, VF, S, P, O, Lr, MB = 24, 20, 32, 48, 64, 128, 160, 176, 192
    k("v_lshrrev_b32 v1, 6, v0"); k("v_and_b32 v0, 63, v0"); k("s_nop 0")
    k("v_readfirstlane_b32 s4, v1")
    k(f"s_and_b32 s5, {wgid}, 31"); k(f"s_lshr_b32 s6, {wgid}, 5")
    k.srd(8, 80, 2048 * QKVP, QKV_OFF); k.srd(16, 80, 2048 * CATP, CAT_OFF)
    k("v_and_b32 v12, 31, v0"); k("v_lshrrev_b32 v13, 5, v0")
    k("s_lshl_b32 s7, s6, 7"); k("s_lshl_b32 s20, s4, 5"); k("s_add_u32 s7, s7, s20")
    k("v_add_u32 v14, s7, v12")
    k(f"s_mov_b32 s21, {QKVP}"); k("v_mul_lo_u32 v15, v14, s21")
    k("s_lshl_b32 s22, s5, 6"); k("v_add_u32 v15, s22, v15"); k("v_lshl_add_u32 v15, v13, 4, v15")
    k(f"buffer_load_dwordx4 v[{Q}:{Q+3}], v15, s[8:11], 0 offen")
    k(f"buffer_load_dwordx4 v[{Q+4}:{Q+7}], v15, s[8:11], 0 offen offset:32")
    k("v_lshrrev_b32 v4, 2, v0"); k("s_lshl_b32 s7, s4, 4"); k("v_add_u32 v4, s7, v4")
    k("v_mul_lo_u32 v4, v4, s21"); k("v_add_u32 v4, s22, v4")
    k("v_and_b32 v5, 3, v0"); k("v_lshrrev_b32 v6, 4, v0"); k("v_xor_b32 v6, v6, v5")
    k("v_lshl_add_u32 v2, v6, 4, v4"); k("v_add_u32 v2, 2048, v2")
    k("v_lshl_add_u32 v3, v5, 4, v4"); k("v_add_u32 v3, 4096, v3")
    k("v_lshrrev_b32 v7, 2, v0"); k("v_and_b32 v7, 3, v7")
    for kk in range(2):
        k(f"v_add_u32 v8, {2*kk}, v13"); k("v_xor_b32 v8, v8, v7"); k("v_lshlrev_b32 v8, 4, v8")
        k(f"v_lshl_add_u32 v{4+kk}, v12, 6, v8")
    k("v_lshl_add_u32 v8, v13, 2, v7"); k("v_lshlrev_b32 v8, 6, v8")
    k("v_lshrrev_b32 v9, 4, v0"); k("v_and_b32 v9, 1, v9"); k("v_lshl_add_u32 v8, v9, 5, v8")
    k("v_and_b32 v9, 3, v0"); k("v_lshl_add_u32 v8, v9, 3, v8"); k("v_add_u32 v6, 16384, v8")
    for i in range(4): k(f"v_mov_b32 v{ONE+i}, 0x3f803f80")
    for i in range(32): k(f"v_mov_b32 v{O+i}, 0")
    k("v_mov_b32 v10, 0")
    k("s_mov_b32 s40, 0"); k("s_mov_b32 s41, 0"); k("s_lshl_b32 s44, s4, 10"); k("s_mov_b32 s45, 0")
    k("s_mov_b32 s30, 0x3e8293ee")
    k("s_mov_b64 s[34:35], 0"); k("s_mov_b32 s31, 0x41000000")
    BLK = 64 * QKVP
    def dmaK(par):
        k(f"s_add_u32 m0, s44, {par*4096}"); k("s_nop 0")
        k("buffer_load_dwordx4 v2, s[8:11], s40 offen lds"); k(f"s_add_u32 s40, s40, {BLK}")
    def dmaV(par):
        k(f"s_add_u32 m0, s44, {16384+par*4096}"); k("s_nop 0")
        k("buffer_load_dwordx4 v3, s[8:11], s41 offen lds"); k(f"s_add_u32 s41, s41, {BLK}")
    def readK(par):
        for kt in range(2):
            for kk in range(2):
                b = KF + (kt * 2 + kk) * 4
                k(f"ds_read_b128 v[{b}:{b+3}], v{4+kk} offset:{par*4096+kt*2048}")
    def readV(par):
        for b in range(4):
            r = VF + b * 4
            k(f"ds_read_b64_tr_b16 v[{r}:{r+1}], v6 offset:{par*4096+b*1024}")
            k(f"ds_read_b64_tr_b16 v[{r+2}:{r+3}], v6 offset:{par*4096+b*1024+512}")
    def mfA(par, first=False):
        r = []
        for kt in range(2):
            b = KF + kt * 8; s = S + par * 32 + kt * 16
            c = "0" if first else f"v[{MB}:{MB+15}]"
            r.append(f"v_mfma_f32_32x32x16_bf16 v[{s}:{s+15}], v[{b}:{b+3}], v[{Q}:{Q+3}], {c}")
            r.append(f"v_mfma_f32_32x32x16_bf16 v[{s}:{s+15}], v[{b+4}:{b+7}], v[{Q+4}:{Q+7}], v[{s}:{s+15}]")
        return r
    def mfC(par):
        r = []
        for b in range(4):
            p = P + par * 16 + b * 4
            r.append(f"v_mfma_f32_32x32x16_bf16 v[{O}:{O+15}], v[{VF+b*4}:{VF+b*4+3}], v[{p}:{p+3}], v[{O}:{O+15}]")
            r.append(f"v_mfma_f32_32x32x16_bf16 v[{Lr}:{Lr+15}], v[{ONE}:{ONE+3}], v[{p}:{p+3}], v[{Lr}:{Lr+15}]")
        return r
    def maxB(par, first):
        s = S + par * 32
        k(f"v_max3_f32 v11, v{s}, v{s+1}, v{s+2}")
        k(f"v_max3_f32 v9, v{s+15}, v{s+16}, v{s+17}")
        for i in range(6):
            k(f"v_max3_f32 v11, v11, v{s+3+2*i}, v{s+4+2*i}")
            k(f"v_max3_f32 v9, v9, v{s+18+2*i}, v{s+19+2*i}")
        k(f"v_max3_f32 v9, v9, v{s+30}, v{s+31}")
        k("v_max_f32 v11, v11, v9"); k("v_mov_b32 v9, v11"); k("s_nop 1"); k("v_permlane32_swap_b32 v11, v9")
        k("v_max_f32 v11, v11, v9")
        sk = k.new("nochg")
        if not first:
            k("v_cmp_lt_f32 s[34:35], s31, v11")
            k("v_max_f32 v11, 0, v11")
            k("s_cmp_eq_u64 s[34:35], 0"); k(f"s_cbranch_scc1 {sk}")
        for i in range(32): k(f"v_sub_f32 v{s+i}, v{s+i}, v11")
        k("v_add_f32 v10, v10, v11"); k("v_exp_f32 v17, -v11")
        for i in range(16): k(f"v_sub_f32 v{MB+i}, 0, v10")
        k.label(sk)
    def valuB(par):
        s = S + par * 32; p = P + par * 16; r = []
        for g in range(5):
            if g < 4:
                for i in range(8): r.append(f"v_exp_f32 v{s+8*g+i}, v{s+8*g+i}")
            if g > 0:
                for i in range(4): r.append(f"v_cvt_pk_bf16_f32 v{p+4*(g-1)+i}, v{s+8*(g-1)+2*i}, v{s+8*(g-1)+2*i+1}")
        return r
    def rescale():
        sk = k.new("skip")
        k("s_cmp_eq_u64 s[34:35], 0"); k(f"s_cbranch_scc1 {sk}")
        for i in range(17): k(f"v_mul_f32 v{O+i}, v{O+i}, v17")
        k.label(sk)
    def body(i4, doA, doB, doC, first=False, fast=False):
        par = i4 % 2
        k("s_waitcnt vmcnt(4)"); k("s_barrier")
        if doA: readK((i4 + 1) % 4)
        if doC: readV((i4 - 1) % 4)
        if doB: dmaK(i4 % 4); dmaV((i4 + 2) % 4)
        if doC and not fast: rescale()
        mf = []
        if doA: mf += [("s_waitcnt lgkmcnt(%d)" % (8 if doC else 0), m) if i == 0 else (None, m) for i, m in enumerate(mfA(1 - par))]
        if doC: mf += [("s_waitcnt lgkmcnt(0)", m) if i == 0 else (None, m) for i, m in enumerate(mfC(1 - par))]
        if doB and (first or not fast): maxB(par, first)
        va = valuB(par) if doB else []
        step = max(1, (len(va) - 6) // max(1, len(mf)))
        pos = 2
        for i, v in enumerate(va):
            if mf and i == pos:
                w, m = mf.pop(0)
                if w: k(w)
                k(m); pos += step
            k(v)
        for w, m in mf:
            if w: k(w)
            k(m)
    def run(fast):
        dmaK(0); dmaK(1); dmaK(2); dmaV(0); dmaK(3); dmaV(1)
        k("s_waitcnt vmcnt(4)"); k("s_barrier")
        readK(0); k("s_waitcnt lgkmcnt(0)")
        for m in mfA(0, True): k(m)
        k("s_nop 7"); k("s_nop 3")
        body(0, True, True, False, True, fast)
        lp = k.new("loop"); k.label(lp)
        for i4 in (1, 2, 3, 0): body(i4, True, True, True, False, fast)
        k("s_add_u32 s45, s45, 1"); k("s_cmp_lt_u32 s45, 7"); k(f"s_cbranch_scc1 {lp}")
        body(1, True, True, True, False, fast); body(2, True, True, True, False, fast)
        body(3, False, True, True, False, fast)
        body(0, False, False, True, False, fast)
    run(True)
    done = k.new("done")
    k("s_nop 7"); k("s_nop 7")
    k("s_mov_b32 s7, 0x5f800000")
    k(f"v_cmp_nlt_f32 s[34:35], v{Lr}, s7")
    k("s_cmp_lg_u64 s[34:35], 0"); k("s_cselect_b32 s7, 1, 0")
    k("v_mov_b32 v9, s7"); k("s_lshl_b32 s7, s4, 2"); k("s_add_u32 s7, s7, 40960"); k("v_mov_b32 v11, s7")
    k("ds_write_b32 v11, v9")
    k("s_waitcnt vmcnt(0) lgkmcnt(0)"); k("s_barrier")
    k("v_mov_b32 v11, 40960"); k("ds_read_b128 v[32:35], v11"); k("s_waitcnt lgkmcnt(0)")
    k("v_or3_b32 v9, v32, v33, v34"); k("v_or_b32 v9, v9, v35"); k("s_nop 0")
    k("v_readfirstlane_b32 s7, v9"); k("s_cmp_eq_u32 s7, 0"); k(f"s_cbranch_scc1 {done}")
    for i in range(32): k(f"v_mov_b32 v{O+i}, 0")
    k("v_mov_b32 v10, 0")
    k("s_mov_b32 s40, 0"); k("s_mov_b32 s41, 0"); k("s_mov_b32 s45, 0"); k("s_mov_b64 s[34:35], 0")
    run(False)
    k.label(done)
    k("s_waitcnt vmcnt(0)")
    k(f"s_mov_b32 s21, {CATP}"); k("v_mul_lo_u32 v15, v14, s21"); k("v_add_u32 v15, s22, v15")
    k("v_lshl_add_u32 v15, v13, 4, v15")
    k("s_nop 7"); k("s_nop 7")
    k(f"v_rcp_f32 v9, v{Lr}"); k("s_nop 0")
    for i in range(16): k(f"v_mul_f32 v{O+i}, v{O+i}, v9")
    for j in range(8): k(f"v_cvt_pk_bf16_f32 v{O+j}, v{O+2*j}, v{O+2*j+1}")
    k("s_nop 1")
    for qq in range(2):
        b = O + 4 * qq
        k(f"v_permlane32_swap_b32 v{b}, v{b+2}"); k(f"v_permlane32_swap_b32 v{b+1}, v{b+3}")
    for qq in range(2):
        k(f"buffer_store_dwordx4 v[{O+4*qq}:{O+4*qq+3}], v15, s[16:19], 0 offen offset:{qq*32}")
    return 208

def mid_kernel():
    k = K("mid_kernel")
    load_args(k)
    k("s_cmp_ge_u32 s2, 768"); k("s_cbranch_scc1 mid_kernel_end")
    k("s_waitcnt lgkmcnt(0)")
    k("s_cmp_ge_u32 s2, 256"); k("s_cbranch_scc1 mid_kernel_attn")
    import os
    if "A" in os.environ.get("XP", ""): k("s_endpgm")
    if "P" in os.environ.get("XP", ""): k("s_setprio 3")
    nv, lds = gemm_body(k, 128, 128, 2, 2, setup_ffn2, CATP, 28, 'f32')
    k("s_endpgm")
    k.label("mid_kernel_attn")
    k("s_sub_u32 s3, s2, 256")
    k("s_setprio 3")
    nv2 = attn_body(k, "s3")
    k.label("mid_kernel_end"); k("s_endpgm")
    return k.text(max(nv, nv2)), max(lds, 16384)

def main():
    out = sys.argv[1] if len(sys.argv) > 1 else f"cdna_kernels/{NAME}.s"
    hdr = [l for l in open(f"cdna_kernels/{NAME}.s.ref").read().split("\n") if l.startswith(";") and "@launch" not in l]
    g1, lds1 = simple_kernel("gemm1_kernel", 208, lambda k: gemm_body(k, 256, 256, 4, 2, setup_g1(256, 256), 2048, 16, "bf16"), 48)
    md, ldsm = mid_kernel()
    g2, lds2 = simple_kernel("final_kernel", 256, lambda k: gemm_body(k, 128, 64, 2, 2, setup_final(128, 64), CATP, 16, 'final', NS=4))
    hdr += ["; @launch kernel=ln_kernel grid=(512,1,1) block=(256,1,1) lds=0",
            f"; @launch kernel=gemm1_kernel grid=(256,1,1) block=(512,1,1) lds={lds1}",
            f"; @launch kernel=mid_kernel grid=(768,1,1) block=(256,1,1) lds={ldsm}",
            f"; @launch kernel=final_kernel grid=(256,1,1) block=(256,1,1) lds={lds2}"]
    txt = "\n".join(hdr) + "\n.amdgcn_target \"amdgcn-amd-amdhsa--gfx950\"\n" + ln_kernel() + g1 + md + g2
    open(out, "w").write(txt)
main()
```

```python
import sys
NAME = "parallel_sum__mha_block__dense_activation_relu__prompt"
XN_OFF, QKV_OFF, CAT_OFF = 0, 0x400000, 0x1000000
WS_BYTES = 268435456
CATP = 4608 * 2
QKVP = 3072 * 2

class K:
    def __init__(s, name): s.name = name; s.L = []; s.uid = 0
    def __call__(s, t=""):
        import os
        X = os.environ.get("XP", "")
        if s.name == "mid_kernel":
            if "e" in X and t.startswith("v_exp_f32"): t = t.replace("v_exp_f32", "v_mov_b32")
            if "m" in X and t.startswith("v_mfma"): return
            if "b" in X and t.startswith("s_barrier"): return
            if "d" in X and t.startswith("buffer_load") and t.endswith("lds"): return
            if "v" in X and (t.startswith("v_fma") or t.startswith("v_exp") or t.startswith("v_cvt") or t.startswith("v_max3")): return
            if "l" in X and t.startswith("ds_read"): return
        s.L.append("    " + t)
    def label(s, l): s.L.append(l + ":")
    def new(s, p): s.uid += 1; return f"{s.name}_{p}{s.uid}"
    def srd(s, d, lo, nbytes, add=0):
        if add:
            s(f"s_add_u32 s{d}, s{lo}, 0x{add:x}"); s(f"s_addc_u32 s{d+1}, s{lo+1}, 0")
        else:
            s(f"s_mov_b32 s{d}, s{lo}"); s(f"s_mov_b32 s{d+1}, s{lo+1}")
        s(f"s_and_b32 s{d+1}, s{d+1}, 0xffff")
        s(f"s_mov_b32 s{d+2}, 0x{nbytes:x}"); s(f"s_mov_b32 s{d+3}, 0x00020000")
    def text(s, vgpr, agpr=0, sgpr=100):
        acc = (vgpr + 3) // 4 * 4
        nf = vgpr if agpr == 0 else acc + agpr
        h = [".text", f".globl {s.name}", ".p2align 8", f".type {s.name},@function", f"{s.name}:"]
        d = [".section .rodata,\"a\"", ".p2align 6", f".amdhsa_kernel {s.name}",
             f"  .amdhsa_next_free_vgpr {nf}", f"  .amdhsa_next_free_sgpr {sgpr}",
             f"  .amdhsa_accum_offset {acc}", "  .amdhsa_group_segment_fixed_size 0",
             "  .amdhsa_kernarg_size 72", "  .amdhsa_user_sgpr_count 2",
             "  .amdhsa_user_sgpr_kernarg_segment_ptr 1", "  .amdhsa_system_sgpr_workgroup_id_x 1",
             ".end_amdhsa_kernel"]
        return "\n".join(h + s.L + d) + "\n"

def load_args(k):
    k("s_load_dwordx16 s[64:79], s[0:1], 0")
    k("s_load_dwordx2 s[80:81], s[0:1], 64")

def wave_sum(k, v, t, sa, sb):
    for o in (0x041F, 0x081F, 0x101F, 0x201F, 0x401F):
        k(f"ds_swizzle_b32 v{t}, v{v} offset:0x{o:x}"); k("s_waitcnt lgkmcnt(0)")
        k(f"v_add_f32 v{v}, v{v}, v{t}")
    k("s_nop 0")
    k(f"v_readlane_b32 s{sa}, v{v}, 0"); k(f"v_readlane_b32 s{sb}, v{v}, 32"); k("s_nop 1")
    k(f"v_mov_b32 v{v}, s{sa}"); k(f"v_add_f32 v{v}, s{sb}, v{v}")

def rbf(k, v, t):
    k(f"v_cvt_pk_bf16_f32 v{t}, v{v}, v{v}"); k(f"v_lshlrev_b32 v{v}, 16, v{t}")

def ln_kernel():
    k = K("ln_kernel")
    load_args(k)
    k("s_cmp_ge_u32 s2, 512"); k(f"s_cbranch_scc1 ln_kernel_end")
    k("v_lshrrev_b32 v1, 6, v0")
    k("v_and_b32 v2, 63, v0")
    k("s_lshl_b32 s3, s2, 2")
    k("v_add_u32 v1, s3, v1")
    k("v_lshlrev_b32 v1, 11, v1")
    k("v_lshl_add_u32 v1, v2, 4, v1")
    k("s_waitcnt lgkmcnt(0)")
    k.srd(8, 64, 2048 * 2048)
    k.srd(12, 80, 2048 * 2048, XN_OFF)
    k("buffer_load_dwordx4 v[4:7], v1, s[8:11], 0 offen")
    k("buffer_load_dwordx4 v[8:11], v1, s[8:11], 0 offen offset:1024")
    k("s_lshl_b32 s4, s2, 8"); k("v_add_u32 v88, s4, v0"); k("v_lshlrev_b32 v88, 4, v88")
    for j in range(1, 4): k(f"v_add_u32 v{88+j}, 0x{j*0x200000:x}, v88")
    k.srd(16, 66, 1024 * 6144); k.srd(20, 72, 1024 * 7168); k.srd(24, 74, 3584 * 2048); k.srd(28, 68, 1024 * 2048)
    n = 0
    for sr, cnt in ((16, 3), (20, 4)):
        for j in range(cnt):
            k(f"buffer_load_dwordx4 v[{40+4*n}:{43+4*n}], v{88+j}, s[{sr}:{sr+3}], 0 offen"); n += 1
    k("s_waitcnt vmcnt(7)")
    for i in range(8):
        k(f"v_lshlrev_b32 v{16+2*i}, 16, v{4+i}"); k(f"v_and_b32 v{17+2*i}, 0xffff0000, v{4+i}")
    k("v_add_f32 v32, v16, v17")
    for i in range(2, 16): k(f"v_add_f32 v32, v32, v{16+i}")
    wave_sum(k, 32, 33, 20, 21)
    k("v_mul_f32 v32, 0x3a800000, v32")
    k("v_sub_f32 v34, v16, v32"); k("v_mul_f32 v35, v34, v34")
    for i in range(1, 16):
        k(f"v_sub_f32 v34, v{16+i}, v32"); k("v_fmac_f32 v35, v34, v34")
    wave_sum(k, 35, 33, 20, 21)
    k("v_mul_f32 v35, 0x3a800000, v35")
    rbf(k, 35, 33); rbf(k, 32, 33)
    k("v_add_f32 v35, 0x3727c5ac, v35"); rbf(k, 35, 33)
    k("v_sqrt_f32 v35, v35"); k("s_nop 0"); rbf(k, 35, 33)
    k("v_rcp_f32 v35, v35"); k("s_nop 0")
    for i in range(16):
        k(f"v_sub_f32 v{16+i}, v{16+i}, v32")
    for i in range(8):
        k(f"v_cvt_pk_bf16_f32 v33, v{16+2*i}, v{17+2*i}")
        k(f"v_lshlrev_b32 v{16+2*i}, 16, v33"); k(f"v_and_b32 v{17+2*i}, 0xffff0000, v33")
        k(f"v_mul_f32 v{16+2*i}, v{16+2*i}, v35"); k(f"v_mul_f32 v{17+2*i}, v{17+2*i}, v35")
        k(f"v_cvt_pk_bf16_f32 v{4+i}, v{16+2*i}, v{17+2*i}")
    k("buffer_store_dwordx4 v[4:7], v1, s[12:15], 0 offen")
    k("buffer_store_dwordx4 v[8:11], v1, s[12:15], 0 offen offset:1024")
    k("s_waitcnt vmcnt(0)")
    k.label("ln_kernel_end"); k("s_endpgm")
    return k.text(92)

def gemm_body(k, BM, BN, WM, WN, setup, pitchA, ksteps, mode, NS=2):
    NW = WM * WN; TM = BM // WM // 32; TN = BN // WN // 32
    ABY = BM * 128; RB = BN * 2; BBY = 64 * RB
    STG = ABY + BBY
    IA = BM // 8 // NW; IB = BN // 8 // NW
    CPR = BN // 8; RPI = 1024 // RB
    k("v_lshrrev_b32 v1, 6, v0"); k("v_and_b32 v0, 63, v0"); k("s_nop 0")
    k("v_readfirstlane_b32 s4, v1")
    if NW == 8:
        lq = k.new("pr"); k("s_cmp_ge_u32 s4, 4"); k(f"s_cbranch_scc1 {lq}"); k("s_setprio 2"); k.label(lq)
    setup(k)
    k(f"s_lshr_b32 s5, s4, {WN.bit_length()-1}")
    k(f"s_and_b32 s6, s4, {WN-1}")
    k("v_lshrrev_b32 v3, 3, v0"); k("s_lshl_b32 s7, s4, 3"); k("s_add_u32 s7, s7, s23")
    k("v_add_u32 v3, s7, v3"); k(f"s_mov_b32 s7, {pitchA}"); k("v_mul_lo_u32 v2, v3, s7")
    k("s_and_b32 s7, s4, 1"); k("s_lshl_b32 s7, s7, 2")
    k("v_lshrrev_b32 v3, 4, v0"); k("v_add_u32 v3, s7, v3"); k("v_and_b32 v3, 7, v3")
    k("v_and_b32 v4, 7, v0"); k("v_xor_b32 v3, v3, v4"); k("v_lshl_add_u32 v2, v3, 4, v2")
    k(f"v_lshrrev_b32 v4, {CPR.bit_length()-1}, v0"); k(f"s_mul_i32 s7, s4, {RPI}")
    k("v_add_u32 v4, s7, v4")
    k("v_mul_lo_u32 v3, v4, s20")
    if BN >= 128: k("v_and_b32 v4, 3, v4"); k("v_lshlrev_b32 v4, 2, v4")
    else: k("v_lshrrev_b32 v4, 1, v4"); k("v_and_b32 v4, 1, v4"); k("v_lshlrev_b32 v4, 2, v4")
    k(f"v_and_b32 v5, {CPR-1}, v0"); k("v_xor_b32 v4, v4, v5"); k("v_lshl_add_u32 v3, v4, 4, v3")
    k("s_lshl_b32 s7, s24, 1"); k("v_add_u32 v3, s7, v3")
    k("v_and_b32 v12, 31, v0"); k("v_lshrrev_b32 v13, 5, v0")
    k(f"s_mul_i32 s7, s5, {TM*32*128}")
    k("v_lshlrev_b32 v14, 7, v12"); k("v_add_u32 v14, s7, v14")
    k("v_lshrrev_b32 v15, 1, v0"); k("v_and_b32 v15, 7, v15")
    for kk in range(4):
        k(f"v_add_u32 v16, {2*kk}, v13"); k("v_xor_b32 v16, v16, v15"); k(f"v_lshl_add_u32 v{4+kk}, v16, 4, v14")
    k("v_lshrrev_b32 v14, 2, v0"); k("v_and_b32 v14, 3, v14")
    k("v_lshl_add_u32 v15, v13, 3, v14")
    k(f"s_mov_b32 s7, {RB}"); k("v_mul_lo_u32 v15, v15, s7")
    k("v_lshrrev_b32 v16, 4, v0"); k("v_and_b32 v16, 1, v16"); k("v_lshl_add_u32 v15, v16, 5, v15")
    k("v_and_b32 v16, 3, v0"); k("v_lshl_add_u32 v15, v16, 3, v15")
    k(f"v_add_u32 v15, {ABY}, v15")
    NB = 4 if BN >= 128 else 2
    if BN < 128: k("v_lshrrev_b32 v14, 1, v14")
    k(f"s_mul_i32 s7, s6, {TN}")
    NREG = min(TN, NB)
    for i in range(NREG):
        k(f"s_add_u32 s26, s7, {i}")
        k(f"s_and_b32 s27, s26, {NB-1}"); k(f"v_xor_b32 v16, s27, v14")
        k(f"s_andn2_b32 s26, s26, {NB-1}"); k("v_add_u32 v16, s26, v16")
        k(f"v_lshl_add_u32 v{8+i}, v16, 6, v15")
    assert TN <= NB or (TN % NB == 0)
    ACC = 128 if TM * TN > 4 else 80
    FR = 28; AB = 20
    nfr = (TM + TN) * 4
    for i in range(TM * TN * 16): k(f"v_mov_b32 v{ACC+i}, 0")
    k("s_mov_b32 s40, s36")
    k("s_mov_b32 s41, s37")
    k(f"s_lshl_b32 s42, s20, 6")
    k(f"s_mul_i32 s43, s20, {NW*RPI}")
    k(f"s_lshl_b32 s44, s4, 10")
    k("s_mov_b32 s45, 0")
    def dma_list():
        r = []
        for t in range(IA):
            r.append([f"s_add_u32 s46, s40, {t*NW*8*pitchA}", f"s_add_u32 m0, s44, {t*NW*1024}", "s_nop 0",
                      "buffer_load_dwordx4 v2, s[8:11], s46 offen lds"])
        for t in range(IB):
            r.append([f"s_add_u32 m0, s44, {ABY + t*NW*1024}",
                      "s_add_u32 s49, s49, s43" if t else "s_mov_b32 s49, s41",
                      "buffer_load_dwordx4 v3, s[12:15], s49 offen lds"])
        r[-1] += ["s_add_u32 s40, s40, 128", "s_add_u32 s41, s41, s42", f"s_add_u32 s44, s44, {STG}",
                  f"s_cmp_ge_u32 s44, {NS*STG}", f"s_cselect_b32 s46, {NS*STG}, 0", "s_sub_u32 s44, s44, s46"]
        return r
    def dma():
        for g in dma_list():
            for t in g: k(t)
    def reads(kk, buf):
        b = FR + buf * nfr
        for tn in range(TN):
            o = kk * 16 * RB + (tn // NB) * NB * 64
            k(f"ds_read_b64_tr_b16 v[{b+tn*4}:{b+tn*4+1}], v{8+tn%NB} offset:{o}")
            k(f"ds_read_b64_tr_b16 v[{b+tn*4+2}:{b+tn*4+3}], v{8+tn%NB} offset:{o+4*RB}")
        for tm in range(TM):
            k(f"ds_read_b128 v[{b+TN*4+tm*4}:{b+TN*4+tm*4+3}], v{4+kk} offset:{tm*4096}")
    def mfmas(buf, extra):
        b = FR + buf * nfr
        for tm in range(TM):
            for tn in range(TN):
                a = ACC + (tm * TN + tn) * 16
                k(f"v_mfma_f32_32x32x16_bf16 v[{a}:{a+15}], v[{b+tn*4}:{b+tn*4+3}], v[{b+TN*4+tm*4}:{b+TN*4+tm*4+3}], v[{a}:{a+15}]")
                if extra:
                    for t in extra.pop(0): k(t)
    def epi_addr():
        k(f"s_mul_i32 s7, s5, {TM*32}"); k("s_add_u32 s7, s7, s23")
        k("v_add_u32 v14, s7, v12")
        k("v_mul_lo_u32 v15, v14, s21")
        k(f"s_mul_i32 s7, s6, {TN*32}"); k("s_add_u32 s7, s7, s25")
        esz = 2 if mode == 'f32' else 1
        k(f"s_lshl_b32 s7, s7, {esz}")
        k("v_add_u32 v15, s7, v15"); k("v_lshl_add_u32 v16, v13, 4, v15")
        k("v_lshl_add_u32 v17, v13, 3, v15")
        k("v_lshlrev_b32 v18, 1, v17")
        k("s_lshl_b32 s47, s21, 5")
    NPART = 2; PB = ACC + TM * TN * 16; PSZ = 8 + 16 * NPART
    if mode == 'final':
        epi_addr()
        for tm in range(TM):
            if tm:
                k("v_add_u32 v17, s47, v17"); k("v_lshlrev_b32 v18, 1, v17")
            for tn in range(TN):
                X = PB + (tm * TN + tn) * PSZ
                for q in range(4):
                    k(f"buffer_load_dwordx2 v[{X+2*q}:{X+2*q+1}], v17, s[32:35], 0 offen offset:{tn*64+q*16}")
                    for pi in range(NPART):
                        so = ["0", "s39", "s50", "s51"][pi]
                        R = X + 8 + 16 * pi + 4 * q
                        k(f"buffer_load_dwordx4 v[{R}:{R+3}], v18, s[28:31], {so} offen offset:{tn*128+q*32}")
    ND = IA + IB
    for i in range(4 + NREG): k(f"v_mov_b32 v{AB+i}, v{4+i}")
    k("s_mov_b32 s48, 0")
    for i in range(NS - 1): dma()
    lp = k.new("loop"); k.label(lp)
    k(f"s_waitcnt vmcnt({(NS-2)*ND})"); k("s_barrier")
    k("s_add_u32 s45, s45, 1")
    reads(0, 0)
    nrd = 2 * TN + TM
    dl = dma_list()
    per = max((ND + 3) // 4, min(ND, TM * TN))
    for kk in range(4):
        if kk < 3:
            reads(kk + 1, (kk + 1) % 2); k(f"s_waitcnt lgkmcnt({nrd})")
        else: k("s_waitcnt lgkmcnt(0)")
        ex = dl[:per]; dl = dl[per:]
        mfmas(kk % 2, ex)
        assert not ex
    k(f"s_add_u32 s48, s48, {STG}"); k(f"s_cmp_ge_u32 s48, {NS*STG}"); k("s_cselect_b32 s48, 0, s48")
    for i in range(4 + NREG): k(f"v_add_u32 v{4+i}, s48, v{AB+i}")
    k(f"s_cmp_lt_u32 s45, {ksteps}"); k(f"s_cbranch_scc1 {lp}")
    k("s_waitcnt vmcnt(0)")
    epi_addr()
    k("s_nop 7"); k("s_nop 7")
    for tm in range(TM):
        if tm:
            k("v_add_u32 v16, s47, v16"); k("v_add_u32 v17, s47, v17"); k("v_lshlrev_b32 v18, 1, v17")
        if mode == 'f32':
            for tn in range(TN):
                a = ACC + (tm * TN + tn) * 16
                for q in range(4):
                    k(f"buffer_store_dwordx4 v[{a+4*q}:{a+4*q+3}], v16, s[16:19], 0 offen offset:{tn*128+q*32}")
            continue
        for tn in range(TN):
            a = ACC + (tm * TN + tn) * 16
            if mode == 'final':
                X = PB + (tm * TN + tn) * PSZ; P0 = X + 8; P1 = X + 24
                for j in range(16):
                    k(f"v_add_f32 v{P0+j}, v{P0+j}, v{P1+j}")
                for j in range(8):
                    k(f"v_lshlrev_b32 v{P1+2*j}, 16, v{X+j}"); k(f"v_and_b32 v{P1+2*j+1}, 0xffff0000, v{X+j}")
                for j in range(16):
                    k(f"v_add_f32 v{a+j}, v{a+j}, v{P1+j}"); k(f"v_add_f32 v{a+j}, v{a+j}, v{P0+j}")
            else:
                for j in range(16):
                    k(f"v_max_f32 v{a+j}, s22, v{a+j}"); k(f"v_mul_f32 v{a+j}, s38, v{a+j}")
            for j in range(8): k(f"v_cvt_pk_bf16_f32 v{a+j}, v{a+2*j}, v{a+2*j+1}")
            k("s_nop 1")
            for qq in range(2):
                b = a + 4 * qq
                k(f"v_permlane32_swap_b32 v{b}, v{b+2}"); k(f"v_permlane32_swap_b32 v{b+1}, v{b+3}")
            for qq in range(2):
                b = a + 4 * qq
                k(f"buffer_store_dwordx4 v[{b}:{b+3}], v16, s[16:19], 0 offen offset:{tn*64+qq*32}")
    return (PB + TM * TN * PSZ if mode == 'final' else ACC + TM * TN * 16), STG * NS

def simple_kernel(name, nwg, fn, npf=0):
    k = K(name)
    load_args(k)
    k(f"s_cmp_ge_u32 s2, {nwg+npf}"); k(f"s_cbranch_scc1 {name}_end")
    k("s_waitcnt lgkmcnt(0)")
    if npf:
        k(f"s_cmp_lt_u32 s2, {nwg}"); k(f"s_cbranch_scc1 {name}_main")
        st = npf * 512 * 16
        k(f"s_sub_u32 s4, s2, {nwg}"); k("s_lshl_b32 s4, s4, 9"); k("v_add_u32 v1, s4, v0"); k("v_lshlrev_b32 v1, 4, v1")
        k.srd(24, 74, 3584 * 2048); k.srd(28, 68, 1024 * 2048)
        n = 0
        for sr, nb in ((24, 3584 * 2048), (28, 1024 * 2048)):
            for j in range((nb + st - 1) // st):
                k(f"v_add_u32 v{2+n}, 0x{j*st:x}, v1")
                k(f"buffer_load_dwordx4 v[{40+4*n}:{43+4*n}], v{2+n}, s[{sr}:{sr+3}], 0 offen"); n += 1
        assert n <= 30
        k("s_waitcnt vmcnt(0)"); k("s_endpgm")
        k.label(f"{name}_main")
    nv, lds = fn(k)
    k.label(f"{name}_end"); k("s_endpgm")
    return k.text(nv), lds

def setup_g1(BM, BN):
    nq = 3072 // BN; nt = 6656 // BN
    def f(k):
        k("s_and_b32 s23, s2, 7"); k("s_mul_i32 s23, s23, 26"); k("s_lshr_b32 s24, s2, 3"); k("s_add_u32 s24, s24, s23")
        k("s_and_b32 s23, s24, 7"); k("s_lshl_b32 s23, s23, 8")
        k("s_lshr_b32 s24, s24, 3"); k("s_lshl_b32 s24, s24, 8")
        k.srd(8, 80, 2048 * 2048, XN_OFF)
        k("s_mov_b32 s36, 0"); k("s_mov_b32 s37, 0"); k("s_mov_b32 s38, 1.0")
        l1, l2 = k.new("ffn"), k.new("j")
        k("s_cmp_ge_u32 s24, 3072"); k(f"s_cbranch_scc1 {l1}")
        k.srd(12, 66, 1024 * 6144); k.srd(16, 80, 2048 * QKVP, QKV_OFF)
        k("s_mov_b32 s20, 6144"); k(f"s_mov_b32 s21, {QKVP}"); k("s_mov_b32 s22, 0xff800000"); k("s_mov_b32 s25, s24")
        k("s_cmp_lt_u32 s24, 1024"); k("s_cselect_b32 s38, 0x3e8293ee, s38")
        k(f"s_branch {l2}")
        k.label(l1)
        k.srd(12, 72, 1024 * 7168); k.srd(16, 80, 2048 * CATP, CAT_OFF)
        k("s_mov_b32 s20, 7168"); k(f"s_mov_b32 s21, {CATP}"); k("s_mov_b32 s22, 0")
        k("s_sub_u32 s24, s24, 3072"); k("s_add_u32 s25, s24, 1024")
        k.label(l2)
    return f

PART_OFF = 0x2400000
def setup_ffn2(k):
    k("s_lshr_b32 s7, s2, 3")
    k("s_and_b32 s23, s7, 7"); k("s_lshr_b32 s24, s2, 1"); k("s_and_b32 s24, s24, 1"); k("s_lshl_b32 s24, s24, 3")
    k("s_add_u32 s23, s23, s24"); k("s_lshl_b32 s23, s23, 7")
    k("s_lshr_b32 s24, s7, 3"); k("s_and_b32 s7, s2, 1"); k("s_lshl_b32 s7, s7, 2"); k("s_add_u32 s24, s24, s7"); k("s_lshl_b32 s24, s24, 7")
    k("s_lshr_b32 s7, s2, 2"); k("s_and_b32 s7, s7, 1")
    k.srd(8, 80, 2048 * CATP, CAT_OFF); k.srd(12, 74, 3584 * 2048)
    k.srd(16, 80, 2 * 2048 * 4096, PART_OFF)
    k("s_mul_i32 s36, s7, 3584"); k("s_add_u32 s36, s36, 2048")
    k(f"s_mul_i32 s37, s7, {1792*2048}")
    k("s_mov_b32 s20, 2048"); k("s_mov_b32 s21, 4096")
    k(f"s_mul_i32 s25, s7, {2048*1024}"); k("s_add_u32 s25, s25, s24")

def setup_final(BM, BN):
    def f(k):
        nn = 1024 // BN
        k(f"s_and_b32 s24, s2, {nn-1}"); k(f"s_mul_i32 s24, s24, {BN}")
        k(f"s_lshr_b32 s23, s2, {nn.bit_length()-1}"); k(f"s_lshl_b32 s23, s23, {BM.bit_length()-1}")
        k.srd(8, 80, 2048 * CATP, CAT_OFF)
        k.srd(12, 68, 1024 * 2048); k.srd(28, 80, 2 * 2048 * 4096, PART_OFF)
        k.srd(16, 76, 2048 * 2048); k.srd(32, 64, 2048 * 2048)
        k("s_mov_b32 s20, 2048"); k("s_mov_b32 s21, 2048"); k("s_mov_b32 s25, s24")
        k("s_mov_b32 s36, 0"); k("s_mov_b32 s37, 0"); k(f"s_mov_b32 s39, {2048*4096}"); k(f"s_mov_b32 s50, {2*2048*4096}"); k(f"s_mov_b32 s51, {3*2048*4096}")
    return f

def attn_body(k, wgid="s2"):
    Q, ONE, KF, VF, S, P, O, Lr, MB = 24, 20, 32, 48, 64, 128, 160, 176, 192
    k("v_lshrrev_b32 v1, 6, v0"); k("v_and_b32 v0, 63, v0"); k("s_nop 0")
    k("v_readfirstlane_b32 s4, v1")
    k(f"s_and_b32 s5, {wgid}, 31"); k(f"s_lshr_b32 s6, {wgid}, 5")
    k.srd(8, 80, 2048 * QKVP, QKV_OFF); k.srd(16, 80, 2048 * CATP, CAT_OFF)
    k("v_and_b32 v12, 31, v0"); k("v_lshrrev_b32 v13, 5, v0")
    k("s_lshl_b32 s7, s6, 7"); k("s_lshl_b32 s20, s4, 5"); k("s_add_u32 s7, s7, s20")
    k("v_add_u32 v14, s7, v12")
    k(f"s_mov_b32 s21, {QKVP}"); k("v_mul_lo_u32 v15, v14, s21")
    k("s_lshl_b32 s22, s5, 6"); k("v_add_u32 v15, s22, v15"); k("v_lshl_add_u32 v15, v13, 4, v15")
    k(f"buffer_load_dwordx4 v[{Q}:{Q+3}], v15, s[8:11], 0 offen")
    k(f"buffer_load_dwordx4 v[{Q+4}:{Q+7}], v15, s[8:11], 0 offen offset:32")
    k("v_lshrrev_b32 v4, 2, v0"); k("s_lshl_b32 s7, s4, 4"); k("v_add_u32 v4, s7, v4")
    k("v_mul_lo_u32 v4, v4, s21"); k("v_add_u32 v4, s22, v4")
    k("v_and_b32 v5, 3, v0"); k("v_lshrrev_b32 v6, 4, v0"); k("v_xor_b32 v6, v6, v5")
    k("v_lshl_add_u32 v2, v6, 4, v4"); k("v_add_u32 v2, 2048, v2")
    k("v_lshl_add_u32 v3, v5, 4, v4"); k("v_add_u32 v3, 4096, v3")
    k("v_lshrrev_b32 v7, 2, v0"); k("v_and_b32 v7, 3, v7")
    for kk in range(2):
        k(f"v_add_u32 v8, {2*kk}, v13"); k("v_xor_b32 v8, v8, v7"); k("v_lshlrev_b32 v8, 4, v8")
        k(f"v_lshl_add_u32 v{4+kk}, v12, 6, v8")
    k("v_lshl_add_u32 v8, v13, 2, v7"); k("v_lshlrev_b32 v8, 6, v8")
    k("v_lshrrev_b32 v9, 4, v0"); k("v_and_b32 v9, 1, v9"); k("v_lshl_add_u32 v8, v9, 5, v8")
    k("v_and_b32 v9, 3, v0"); k("v_lshl_add_u32 v8, v9, 3, v8"); k("v_add_u32 v6, 16384, v8")
    for i in range(4): k(f"v_mov_b32 v{ONE+i}, 0x3f803f80")
    for i in range(32): k(f"v_mov_b32 v{O+i}, 0")
    k("v_mov_b32 v10, 0")
    k("s_mov_b32 s40, 0"); k("s_mov_b32 s41, 0"); k("s_lshl_b32 s44, s4, 10"); k("s_mov_b32 s45, 0")
    k("s_mov_b32 s30, 0x3e8293ee")
    k("s_mov_b64 s[34:35], 0"); k("s_mov_b32 s31, 0x41000000")
    BLK = 64 * QKVP
    def dmaK(par):
        k(f"s_add_u32 m0, s44, {par*4096}"); k("s_nop 0")
        k("buffer_load_dwordx4 v2, s[8:11], s40 offen lds"); k(f"s_add_u32 s40, s40, {BLK}")
    def dmaV(par):
        k(f"s_add_u32 m0, s44, {16384+par*4096}"); k("s_nop 0")
        k("buffer_load_dwordx4 v3, s[8:11], s41 offen lds"); k(f"s_add_u32 s41, s41, {BLK}")
    def readK(par):
        for kt in range(2):
            for kk in range(2):
                b = KF + (kt * 2 + kk) * 4
                k(f"ds_read_b128 v[{b}:{b+3}], v{4+kk} offset:{par*4096+kt*2048}")
    def readV(par):
        for b in range(4):
            r = VF + b * 4
            k(f"ds_read_b64_tr_b16 v[{r}:{r+1}], v6 offset:{par*4096+b*1024}")
            k(f"ds_read_b64_tr_b16 v[{r+2}:{r+3}], v6 offset:{par*4096+b*1024+512}")
    def mfA(par, first=False):
        r = []
        for kt in range(2):
            b = KF + kt * 8; s = S + par * 32 + kt * 16
            c = "0" if first else f"v[{MB}:{MB+15}]"
            r.append(f"v_mfma_f32_32x32x16_bf16 v[{s}:{s+15}], v[{b}:{b+3}], v[{Q}:{Q+3}], {c}")
            r.append(f"v_mfma_f32_32x32x16_bf16 v[{s}:{s+15}], v[{b+4}:{b+7}], v[{Q+4}:{Q+7}], v[{s}:{s+15}]")
        return r
    def mfC(par):
        r = []
        for b in range(4):
            p = P + par * 16 + b * 4
            r.append(f"v_mfma_f32_32x32x16_bf16 v[{O}:{O+15}], v[{VF+b*4}:{VF+b*4+3}], v[{p}:{p+3}], v[{O}:{O+15}]")
            r.append(f"v_mfma_f32_32x32x16_bf16 v[{Lr}:{Lr+15}], v[{ONE}:{ONE+3}], v[{p}:{p+3}], v[{Lr}:{Lr+15}]")
        return r
    def maxB(par, first):
        s = S + par * 32
        k(f"v_max3_f32 v11, v{s}, v{s+1}, v{s+2}")
        k(f"v_max3_f32 v9, v{s+15}, v{s+16}, v{s+17}")
        for i in range(6):
            k(f"v_max3_f32 v11, v11, v{s+3+2*i}, v{s+4+2*i}")
            k(f"v_max3_f32 v9, v9, v{s+18+2*i}, v{s+19+2*i}")
        k(f"v_max3_f32 v9, v9, v{s+30}, v{s+31}")
        k("v_max_f32 v11, v11, v9"); k("v_mov_b32 v9, v11"); k("s_nop 1"); k("v_permlane32_swap_b32 v11, v9")
        k("v_max_f32 v11, v11, v9")
        sk = k.new("nochg")
        if not first:
            k("v_cmp_lt_f32 s[34:35], s31, v11")
            k("v_max_f32 v11, 0, v11")
            k("s_cmp_eq_u64 s[34:35], 0"); k(f"s_cbranch_scc1 {sk}")
        for i in range(32): k(f"v_sub_f32 v{s+i}, v{s+i}, v11")
        k("v_add_f32 v10, v10, v11"); k("v_exp_f32 v17, -v11")
        for i in range(16): k(f"v_sub_f32 v{MB+i}, 0, v10")
        k.label(sk)
    def valuB(par):
        s = S + par * 32; p = P + par * 16; r = []
        for g in range(5):
            if g < 4:
                for i in range(8): r.append(f"v_exp_f32 v{s+8*g+i}, v{s+8*g+i}")
            if g > 0:
                for i in range(4): r.append(f"v_cvt_pk_bf16_f32 v{p+4*(g-1)+i}, v{s+8*(g-1)+2*i}, v{s+8*(g-1)+2*i+1}")
        return r
    def rescale():
        sk = k.new("skip")
        k("s_cmp_eq_u64 s[34:35], 0"); k(f"s_cbranch_scc1 {sk}")
        for i in range(17): k(f"v_mul_f32 v{O+i}, v{O+i}, v17")
        k.label(sk)
    def body(i4, doA, doB, doC, first=False, fast=False):
        par = i4 % 2
        k("s_waitcnt vmcnt(4)"); k("s_barrier")
        if doA: readK((i4 + 1) % 4)
        if doC: readV((i4 - 1) % 4)
        if doB: dmaK(i4 % 4); dmaV((i4 + 2) % 4)
        if doC and not fast: rescale()
        mf = []
        if doA: mf += [("s_waitcnt lgkmcnt(%d)" % (8 if doC else 0), m) if i == 0 else (None, m) for i, m in enumerate(mfA(1 - par))]
        if doC: mf += [("s_waitcnt lgkmcnt(0)", m) if i == 0 else (None, m) for i, m in enumerate(mfC(1 - par))]
        if doB and (first or not fast): maxB(par, first)
        va = valuB(par) if doB else []
        step = max(1, (len(va) - 6) // max(1, len(mf)))
        import os
        if fast and os.environ.get('XS'): step = int(os.environ['XS'])
        pos = 2
        for i, v in enumerate(va):
            if mf and i == pos:
                w, m = mf.pop(0)
                if w: k(w)
                k(m); pos += step
            k(v)
        for w, m in mf:
            if w: k(w)
            k(m)
    def run(fast):
        dmaK(0); dmaK(1); dmaK(2); dmaV(0); dmaK(3); dmaV(1)
        k("s_waitcnt vmcnt(4)"); k("s_barrier")
        readK(0); k("s_waitcnt lgkmcnt(0)")
        for m in mfA(0, True): k(m)
        k("s_nop 7"); k("s_nop 3")
        body(0, True, True, False, True, fast)
        lp = k.new("loop"); k.label(lp)
        for i4 in (1, 2, 3, 0): body(i4, True, True, True, False, fast)
        k("s_add_u32 s45, s45, 1"); k("s_cmp_lt_u32 s45, 7"); k(f"s_cbranch_scc1 {lp}")
        body(1, True, True, True, False, fast); body(2, True, True, True, False, fast)
        body(3, False, True, True, False, fast)
        body(0, False, False, True, False, fast)
    run(True)
    done = k.new("done")
    k("s_nop 7"); k("s_nop 7")
    k("s_mov_b32 s7, 0x5f800000")
    k(f"v_cmp_nlt_f32 s[34:35], v{Lr}, s7")
    k("s_cmp_lg_u64 s[34:35], 0"); k("s_cselect_b32 s7, 1, 0")
    k("v_mov_b32 v9, s7"); k("s_lshl_b32 s7, s4, 2"); k("s_add_u32 s7, s7, 40960"); k("v_mov_b32 v11, s7")
    k("ds_write_b32 v11, v9")
    k("s_waitcnt vmcnt(0) lgkmcnt(0)"); k("s_barrier")
    k("v_mov_b32 v11, 40960"); k("ds_read_b128 v[32:35], v11"); k("s_waitcnt lgkmcnt(0)")
    k("v_or3_b32 v9, v32, v33, v34"); k("v_or_b32 v9, v9, v35"); k("s_nop 0")
    k("v_readfirstlane_b32 s7, v9"); k("s_cmp_eq_u32 s7, 0"); k(f"s_cbranch_scc1 {done}")
    for i in range(32): k(f"v_mov_b32 v{O+i}, 0")
    k("v_mov_b32 v10, 0")
    k("s_mov_b32 s40, 0"); k("s_mov_b32 s41, 0"); k("s_mov_b32 s45, 0"); k("s_mov_b64 s[34:35], 0")
    run(False)
    k.label(done)
    k("s_waitcnt vmcnt(0)")
    k(f"s_mov_b32 s21, {CATP}"); k("v_mul_lo_u32 v15, v14, s21"); k("v_add_u32 v15, s22, v15")
    k("v_lshl_add_u32 v15, v13, 4, v15")
    k("s_nop 7"); k("s_nop 7")
    k(f"v_rcp_f32 v9, v{Lr}"); k("s_nop 0")
    for i in range(16): k(f"v_mul_f32 v{O+i}, v{O+i}, v9")
    for j in range(8): k(f"v_cvt_pk_bf16_f32 v{O+j}, v{O+2*j}, v{O+2*j+1}")
    k("s_nop 1")
    for qq in range(2):
        b = O + 4 * qq
        k(f"v_permlane32_swap_b32 v{b}, v{b+2}"); k(f"v_permlane32_swap_b32 v{b+1}, v{b+3}")
    for qq in range(2):
        k(f"buffer_store_dwordx4 v[{O+4*qq}:{O+4*qq+3}], v15, s[16:19], 0 offen offset:{qq*32}")
    return 208

def mid_kernel():
    k = K("mid_kernel")
    load_args(k)
    k("s_cmp_ge_u32 s2, 768"); k("s_cbranch_scc1 mid_kernel_end")
    k("s_waitcnt lgkmcnt(0)")
    k("s_cmp_ge_u32 s2, 256"); k("s_cbranch_scc1 mid_kernel_attn")
    import os
    if "A" in os.environ.get("XP", ""): k("s_endpgm")
    if "P" in os.environ.get("XP", ""): k("s_setprio 3")
    nv, lds = gemm_body(k, 128, 128, 2, 2, setup_ffn2, CATP, 28, 'f32')
    k("s_endpgm")
    k.label("mid_kernel_attn")
    k("s_sub_u32 s3, s2, 256")
    k("s_setprio 3")
    nv2 = attn_body(k, "s3")
    k.label("mid_kernel_end"); k("s_endpgm")
    return k.text(max(nv, nv2)), max(lds, 16384)

def main():
    out = sys.argv[1] if len(sys.argv) > 1 else f"cdna_kernels/{NAME}.s"
    hdr = [l for l in open(f"cdna_kernels/{NAME}.s.ref").read().split("\n") if l.startswith(";") and "@launch" not in l]
    g1, lds1 = simple_kernel("gemm1_kernel", 208, lambda k: gemm_body(k, 256, 256, 4, 2, setup_g1(256, 256), 2048, 16, "bf16"), 48)
    md, ldsm = mid_kernel()
    g2, lds2 = simple_kernel("final_kernel", 256, lambda k: gemm_body(k, 128, 64, 2, 2, setup_final(128, 64), CATP, 16, 'final', NS=4))
    hdr += ["; @launch kernel=ln_kernel grid=(512,1,1) block=(256,1,1) lds=0",
            f"; @launch kernel=gemm1_kernel grid=(256,1,1) block=(512,1,1) lds={lds1}",
            f"; @launch kernel=mid_kernel grid=(768,1,1) block=(256,1,1) lds={ldsm}",
            f"; @launch kernel=final_kernel grid=(256,1,1) block=(256,1,1) lds={lds2}"]
    txt = "\n".join(hdr) + "\n.amdgcn_target \"amdgcn-amd-amdhsa--gfx950\"\n" + ln_kernel() + g1 + md + g2
    open(out, "w").write(txt)
main()
```

```python
import sys
NAME = "parallel_sum__mha_block__dense_activation_relu__prompt"
XN_OFF, QKV_OFF, CAT_OFF = 0, 0x400000, 0x1000000
WS_BYTES = 268435456
CATP = 4608 * 2
QKVP = 3072 * 2

class K:
    def __init__(s, name): s.name = name; s.L = []; s.uid = 0
    def __call__(s, t=""):
        import os
        X = os.environ.get("XP", "")
        if s.name == "mid_kernel":
            if "e" in X and t.startswith("v_exp_f32"): t = t.replace("v_exp_f32", "v_mov_b32")
            if "m" in X and t.startswith("v_mfma"): return
            if "b" in X and t.startswith("s_barrier"): return
            if "d" in X and t.startswith("buffer_load") and t.endswith("lds"): return
            if "v" in X and (t.startswith("v_fma") or t.startswith("v_exp") or t.startswith("v_cvt") or t.startswith("v_max3")): return
            if "l" in X and t.startswith("ds_read"): return
        s.L.append("    " + t)
    def label(s, l): s.L.append(l + ":")
    def new(s, p): s.uid += 1; return f"{s.name}_{p}{s.uid}"
    def srd(s, d, lo, nbytes, add=0):
        if add:
            s(f"s_add_u32 s{d}, s{lo}, 0x{add:x}"); s(f"s_addc_u32 s{d+1}, s{lo+1}, 0")
        else:
            s(f"s_mov_b32 s{d}, s{lo}"); s(f"s_mov_b32 s{d+1}, s{lo+1}")
        s(f"s_and_b32 s{d+1}, s{d+1}, 0xffff")
        s(f"s_mov_b32 s{d+2}, 0x{nbytes:x}"); s(f"s_mov_b32 s{d+3}, 0x00020000")
    def text(s, vgpr, agpr=0, sgpr=100):
        acc = (vgpr + 3) // 4 * 4
        nf = vgpr if agpr == 0 else acc + agpr
        h = [".text", f".globl {s.name}", ".p2align 8", f".type {s.name},@function", f"{s.name}:"]
        d = [".section .rodata,\"a\"", ".p2align 6", f".amdhsa_kernel {s.name}",
             f"  .amdhsa_next_free_vgpr {nf}", f"  .amdhsa_next_free_sgpr {sgpr}",
             f"  .amdhsa_accum_offset {acc}", "  .amdhsa_group_segment_fixed_size 0",
             "  .amdhsa_kernarg_size 72", "  .amdhsa_user_sgpr_count 2",
             "  .amdhsa_user_sgpr_kernarg_segment_ptr 1", "  .amdhsa_system_sgpr_workgroup_id_x 1",
             ".end_amdhsa_kernel"]
        return "\n".join(h + s.L + d) + "\n"

def load_args(k):
    k("s_load_dwordx16 s[64:79], s[0:1], 0")
    k("s_load_dwordx2 s[80:81], s[0:1], 64")

def wave_sum(k, v, t, sa, sb):
    for o in (0x041F, 0x081F, 0x101F, 0x201F, 0x401F):
        k(f"ds_swizzle_b32 v{t}, v{v} offset:0x{o:x}"); k("s_waitcnt lgkmcnt(0)")
        k(f"v_add_f32 v{v}, v{v}, v{t}")
    k("s_nop 0")
    k(f"v_readlane_b32 s{sa}, v{v}, 0"); k(f"v_readlane_b32 s{sb}, v{v}, 32"); k("s_nop 1")
    k(f"v_mov_b32 v{v}, s{sa}"); k(f"v_add_f32 v{v}, s{sb}, v{v}")

def rbf(k, v, t):
    k(f"v_cvt_pk_bf16_f32 v{t}, v{v}, v{v}"); k(f"v_lshlrev_b32 v{v}, 16, v{t}")

def ln_kernel():
    k = K("ln_kernel")
    load_args(k)
    k("s_cmp_ge_u32 s2, 512"); k(f"s_cbranch_scc1 ln_kernel_end")
    k("v_lshrrev_b32 v1, 6, v0")
    k("v_and_b32 v2, 63, v0")
    k("s_lshl_b32 s3, s2, 2")
    k("v_add_u32 v1, s3, v1")
    k("v_lshlrev_b32 v1, 11, v1")
    k("v_lshl_add_u32 v1, v2, 4, v1")
    k("s_waitcnt lgkmcnt(0)")
    k.srd(8, 64, 2048 * 2048)
    k.srd(12, 80, 2048 * 2048, XN_OFF)
    k("buffer_load_dwordx4 v[4:7], v1, s[8:11], 0 offen")
    k("buffer_load_dwordx4 v[8:11], v1, s[8:11], 0 offen offset:1024")
    k("s_lshl_b32 s4, s2, 8"); k("v_add_u32 v88, s4, v0"); k("v_lshlrev_b32 v88, 4, v88")
    for j in range(1, 4): k(f"v_add_u32 v{88+j}, 0x{j*0x200000:x}, v88")
    k.srd(16, 66, 1024 * 6144); k.srd(20, 72, 1024 * 7168); k.srd(24, 74, 3584 * 2048); k.srd(28, 68, 1024 * 2048)
    n = 0
    for sr, cnt in ((16, 3), (20, 4)):
        for j in range(cnt):
            k(f"buffer_load_dwordx4 v[{40+4*n}:{43+4*n}], v{88+j}, s[{sr}:{sr+3}], 0 offen"); n += 1
    k("s_waitcnt vmcnt(7)")
    for i in range(8):
        k(f"v_lshlrev_b32 v{16+2*i}, 16, v{4+i}"); k(f"v_and_b32 v{17+2*i}, 0xffff0000, v{4+i}")
    k("v_add_f32 v32, v16, v17")
    for i in range(2, 16): k(f"v_add_f32 v32, v32, v{16+i}")
    wave_sum(k, 32, 33, 20, 21)
    k("v_mul_f32 v32, 0x3a800000, v32")
    k("v_sub_f32 v34, v16, v32"); k("v_mul_f32 v35, v34, v34")
    for i in range(1, 16):
        k(f"v_sub_f32 v34, v{16+i}, v32"); k("v_fmac_f32 v35, v34, v34")
    wave_sum(k, 35, 33, 20, 21)
    k("v_mul_f32 v35, 0x3a800000, v35")
    rbf(k, 35, 33); rbf(k, 32, 33)
    k("v_add_f32 v35, 0x3727c5ac, v35"); rbf(k, 35, 33)
    k("v_sqrt_f32 v35, v35"); k("s_nop 0"); rbf(k, 35, 33)
    k("v_rcp_f32 v35, v35"); k("s_nop 0")
    for i in range(16):
        k(f"v_sub_f32 v{16+i}, v{16+i}, v32")
    for i in range(8):
        k(f"v_cvt_pk_bf16_f32 v33, v{16+2*i}, v{17+2*i}")
        k(f"v_lshlrev_b32 v{16+2*i}, 16, v33"); k(f"v_and_b32 v{17+2*i}, 0xffff0000, v33")
        k(f"v_mul_f32 v{16+2*i}, v{16+2*i}, v35"); k(f"v_mul_f32 v{17+2*i}, v{17+2*i}, v35")
        k(f"v_cvt_pk_bf16_f32 v{4+i}, v{16+2*i}, v{17+2*i}")
    k("buffer_store_dwordx4 v[4:7], v1, s[12:15], 0 offen")
    k("buffer_store_dwordx4 v[8:11], v1, s[12:15], 0 offen offset:1024")
    k("s_waitcnt vmcnt(0)")
    k.label("ln_kernel_end"); k("s_endpgm")
    return k.text(92)

def gemm_body(k, BM, BN, WM, WN, setup, pitchA, ksteps, mode, NS=2):
    NW = WM * WN; TM = BM // WM // 32; TN = BN // WN // 32
    ABY = BM * 128; RB = BN * 2; BBY = 64 * RB
    STG = ABY + BBY
    IA = BM // 8 // NW; IB = BN // 8 // NW
    CPR = BN // 8; RPI = 1024 // RB
    k("v_lshrrev_b32 v1, 6, v0"); k("v_and_b32 v0, 63, v0"); k("s_nop 0")
    k("v_readfirstlane_b32 s4, v1")
    if NW == 8:
        lq = k.new("pr"); k("s_cmp_ge_u32 s4, 4"); k(f"s_cbranch_scc1 {lq}"); k("s_setprio 2"); k.label(lq)
    setup(k)
    k(f"s_lshr_b32 s5, s4, {WN.bit_length()-1}")
    k(f"s_and_b32 s6, s4, {WN-1}")
    k("v_lshrrev_b32 v3, 3, v0"); k("s_lshl_b32 s7, s4, 3"); k("s_add_u32 s7, s7, s23")
    k("v_add_u32 v3, s7, v3"); k(f"s_mov_b32 s7, {pitchA}"); k("v_mul_lo_u32 v2, v3, s7")
    k("s_and_b32 s7, s4, 1"); k("s_lshl_b32 s7, s7, 2")
    k("v_lshrrev_b32 v3, 4, v0"); k("v_add_u32 v3, s7, v3"); k("v_and_b32 v3, 7, v3")
    k("v_and_b32 v4, 7, v0"); k("v_xor_b32 v3, v3, v4"); k("v_lshl_add_u32 v2, v3, 4, v2")
    k(f"v_lshrrev_b32 v4, {CPR.bit_length()-1}, v0"); k(f"s_mul_i32 s7, s4, {RPI}")
    k("v_add_u32 v4, s7, v4")
    k("v_mul_lo_u32 v3, v4, s20")
    if BN >= 128: k("v_and_b32 v4, 3, v4"); k("v_lshlrev_b32 v4, 2, v4")
    else: k("v_lshrrev_b32 v4, 1, v4"); k("v_and_b32 v4, 1, v4"); k("v_lshlrev_b32 v4, 2, v4")
    k(f"v_and_b32 v5, {CPR-1}, v0"); k("v_xor_b32 v4, v4, v5"); k("v_lshl_add_u32 v3, v4, 4, v3")
    k("s_lshl_b32 s7, s24, 1"); k("v_add_u32 v3, s7, v3")
    k("v_and_b32 v12, 31, v0"); k("v_lshrrev_b32 v13, 5, v0")
    k(f"s_mul_i32 s7, s5, {TM*32*128}")
    k("v_lshlrev_b32 v14, 7, v12"); k("v_add_u32 v14, s7, v14")
    k("v_lshrrev_b32 v15, 1, v0"); k("v_and_b32 v15, 7, v15")
    for kk in range(4):
        k(f"v_add_u32 v16, {2*kk}, v13"); k("v_xor_b32 v16, v16, v15"); k(f"v_lshl_add_u32 v{4+kk}, v16, 4, v14")
    k("v_lshrrev_b32 v14, 2, v0"); k("v_and_b32 v14, 3, v14")
    k("v_lshl_add_u32 v15, v13, 3, v14")
    k(f"s_mov_b32 s7, {RB}"); k("v_mul_lo_u32 v15, v15, s7")
    k("v_lshrrev_b32 v16, 4, v0"); k("v_and_b32 v16, 1, v16"); k("v_lshl_add_u32 v15, v16, 5, v15")
    k("v_and_b32 v16, 3, v0"); k("v_lshl_add_u32 v15, v16, 3, v15")
    k(f"v_add_u32 v15, {ABY}, v15")
    NB = 4 if BN >= 128 else 2
    if BN < 128: k("v_lshrrev_b32 v14, 1, v14")
    k(f"s_mul_i32 s7, s6, {TN}")
    NREG = min(TN, NB)
    for i in range(NREG):
        k(f"s_add_u32 s26, s7, {i}")
        k(f"s_and_b32 s27, s26, {NB-1}"); k(f"v_xor_b32 v16, s27, v14")
        k(f"s_andn2_b32 s26, s26, {NB-1}"); k("v_add_u32 v16, s26, v16")
        k(f"v_lshl_add_u32 v{8+i}, v16, 6, v15")
    assert TN <= NB or (TN % NB == 0)
    ACC = 128 if TM * TN > 4 else 80
    FR = 28; AB = 20
    nfr = (TM + TN) * 4
    for i in range(TM * TN * 16): k(f"v_mov_b32 v{ACC+i}, 0")
    k("s_mov_b32 s40, s36")
    k("s_mov_b32 s41, s37")
    k(f"s_lshl_b32 s42, s20, 6")
    k(f"s_mul_i32 s43, s20, {NW*RPI}")
    k(f"s_lshl_b32 s44, s4, 10")
    k("s_mov_b32 s45, 0")
    def dma_list():
        r = []
        for t in range(IA):
            r.append([f"s_add_u32 s46, s40, {t*NW*8*pitchA}", f"s_add_u32 m0, s44, {t*NW*1024}", "s_nop 0",
                      "buffer_load_dwordx4 v2, s[8:11], s46 offen lds"])
        for t in range(IB):
            r.append([f"s_add_u32 m0, s44, {ABY + t*NW*1024}",
                      "s_add_u32 s49, s49, s43" if t else "s_mov_b32 s49, s41",
                      "buffer_load_dwordx4 v3, s[12:15], s49 offen lds"])
        r[-1] += ["s_add_u32 s40, s40, 128", "s_add_u32 s41, s41, s42", f"s_add_u32 s44, s44, {STG}",
                  f"s_cmp_ge_u32 s44, {NS*STG}", f"s_cselect_b32 s46, {NS*STG}, 0", "s_sub_u32 s44, s44, s46"]
        return r
    def dma():
        for g in dma_list():
            for t in g: k(t)
    def reads(kk, buf):
        b = FR + buf * nfr
        for tn in range(TN):
            o = kk * 16 * RB + (tn // NB) * NB * 64
            k(f"ds_read_b64_tr_b16 v[{b+tn*4}:{b+tn*4+1}], v{8+tn%NB} offset:{o}")
            k(f"ds_read_b64_tr_b16 v[{b+tn*4+2}:{b+tn*4+3}], v{8+tn%NB} offset:{o+4*RB}")
        for tm in range(TM):
            k(f"ds_read_b128 v[{b+TN*4+tm*4}:{b+TN*4+tm*4+3}], v{4+kk} offset:{tm*4096}")
    def mfmas(buf, extra):
        b = FR + buf * nfr
        for tm in range(TM):
            for tn in range(TN):
                a = ACC + (tm * TN + tn) * 16
                k(f"v_mfma_f32_32x32x16_bf16 v[{a}:{a+15}], v[{b+tn*4}:{b+tn*4+3}], v[{b+TN*4+tm*4}:{b+TN*4+tm*4+3}], v[{a}:{a+15}]")
                if extra:
                    for t in extra.pop(0): k(t)
    def epi_addr():
        k(f"s_mul_i32 s7, s5, {TM*32}"); k("s_add_u32 s7, s7, s23")
        k("v_add_u32 v14, s7, v12")
        k("v_mul_lo_u32 v15, v14, s21")
        k(f"s_mul_i32 s7, s6, {TN*32}"); k("s_add_u32 s7, s7, s25")
        esz = 2 if mode == 'f32' else 1
        k(f"s_lshl_b32 s7, s7, {esz}")
        k("v_add_u32 v15, s7, v15"); k("v_lshl_add_u32 v16, v13, 4, v15")
        k("v_lshl_add_u32 v17, v13, 3, v15")
        k("v_lshlrev_b32 v18, 1, v17")
        k("s_lshl_b32 s47, s21, 5")
    NPART = 2; PB = ACC + TM * TN * 16; PSZ = 8 + 16 * NPART
    if mode == 'final':
        epi_addr()
        for tm in range(TM):
            if tm:
                k("v_add_u32 v17, s47, v17"); k("v_lshlrev_b32 v18, 1, v17")
            for tn in range(TN):
                X = PB + (tm * TN + tn) * PSZ
                for q in range(4):
                    k(f"buffer_load_dwordx2 v[{X+2*q}:{X+2*q+1}], v17, s[32:35], 0 offen offset:{tn*64+q*16}")
                    for pi in range(NPART):
                        so = ["0", "s39", "s50", "s51"][pi]
                        R = X + 8 + 16 * pi + 4 * q
                        k(f"buffer_load_dwordx4 v[{R}:{R+3}], v18, s[28:31], {so} offen offset:{tn*128+q*32}")
    ND = IA + IB
    for i in range(4 + NREG): k(f"v_mov_b32 v{AB+i}, v{4+i}")
    k("s_mov_b32 s48, 0")
    for i in range(NS - 1): dma()
    lp = k.new("loop"); k.label(lp)
    k(f"s_waitcnt vmcnt({(NS-2)*ND})"); k("s_barrier")
    k("s_add_u32 s45, s45, 1")
    reads(0, 0)
    nrd = 2 * TN + TM
    dl = dma_list()
    per = max((ND + 3) // 4, min(ND, TM * TN))
    for kk in range(4):
        if kk < 3:
            reads(kk + 1, (kk + 1) % 2); k(f"s_waitcnt lgkmcnt({nrd})")
        else: k("s_waitcnt lgkmcnt(0)")
        ex = dl[:per]; dl = dl[per:]
        mfmas(kk % 2, ex)
        assert not ex
    k(f"s_add_u32 s48, s48, {STG}"); k(f"s_cmp_ge_u32 s48, {NS*STG}"); k("s_cselect_b32 s48, 0, s48")
    for i in range(4 + NREG): k(f"v_add_u32 v{4+i}, s48, v{AB+i}")
    k(f"s_cmp_lt_u32 s45, {ksteps}"); k(f"s_cbranch_scc1 {lp}")
    k("s_waitcnt vmcnt(0)")
    epi_addr()
    k("s_nop 7"); k("s_nop 7")
    for tm in range(TM):
        if tm:
            k("v_add_u32 v16, s47, v16"); k("v_add_u32 v17, s47, v17"); k("v_lshlrev_b32 v18, 1, v17")
        if mode == 'f32':
            for tn in range(TN):
                a = ACC + (tm * TN + tn) * 16
                for q in range(4):
                    k(f"buffer_store_dwordx4 v[{a+4*q}:{a+4*q+3}], v16, s[16:19], 0 offen offset:{tn*128+q*32}")
            continue
        for tn in range(TN):
            a = ACC + (tm * TN + tn) * 16
            if mode == 'final':
                X = PB + (tm * TN + tn) * PSZ; P0 = X + 8; P1 = X + 24
                for j in range(16):
                    k(f"v_add_f32 v{P0+j}, v{P0+j}, v{P1+j}")
                for j in range(8):
                    k(f"v_lshlrev_b32 v{P1+2*j}, 16, v{X+j}"); k(f"v_and_b32 v{P1+2*j+1}, 0xffff0000, v{X+j}")
                for j in range(16):
                    k(f"v_add_f32 v{a+j}, v{a+j}, v{P1+j}"); k(f"v_add_f32 v{a+j}, v{a+j}, v{P0+j}")
            else:
                for j in range(16):
                    k(f"v_max_f32 v{a+j}, s22, v{a+j}"); k(f"v_mul_f32 v{a+j}, s38, v{a+j}")
            for j in range(8): k(f"v_cvt_pk_bf16_f32 v{a+j}, v{a+2*j}, v{a+2*j+1}")
            k("s_nop 1")
            for qq in range(2):
                b = a + 4 * qq
                k(f"v_permlane32_swap_b32 v{b}, v{b+2}"); k(f"v_permlane32_swap_b32 v{b+1}, v{b+3}")
            for qq in range(2):
                b = a + 4 * qq
                k(f"buffer_store_dwordx4 v[{b}:{b+3}], v16, s[16:19], 0 offen offset:{tn*64+qq*32}")
    return (PB + TM * TN * PSZ if mode == 'final' else ACC + TM * TN * 16), STG * NS

def simple_kernel(name, nwg, fn, npf=0):
    k = K(name)
    load_args(k)
    k(f"s_cmp_ge_u32 s2, {nwg+npf}"); k(f"s_cbranch_scc1 {name}_end")
    k("s_waitcnt lgkmcnt(0)")
    if npf:
        k(f"s_cmp_lt_u32 s2, {nwg}"); k(f"s_cbranch_scc1 {name}_main")
        st = npf * 512 * 16
        k(f"s_sub_u32 s4, s2, {nwg}"); k("s_lshl_b32 s4, s4, 9"); k("v_add_u32 v1, s4, v0"); k("v_lshlrev_b32 v1, 4, v1")
        k.srd(24, 74, 3584 * 2048); k.srd(28, 68, 1024 * 2048)
        n = 0
        for sr, nb in ((24, 3584 * 2048), (28, 1024 * 2048)):
            for j in range((nb + st - 1) // st):
                k(f"v_add_u32 v{2+n}, 0x{j*st:x}, v1")
                k(f"buffer_load_dwordx4 v[{40+4*n}:{43+4*n}], v{2+n}, s[{sr}:{sr+3}], 0 offen"); n += 1
        assert n <= 30
        k("s_waitcnt vmcnt(0)"); k("s_endpgm")
        k.label(f"{name}_main")
    nv, lds = fn(k)
    k.label(f"{name}_end"); k("s_endpgm")
    return k.text(nv), lds

def setup_g1(BM, BN):
    nq = 3072 // BN; nt = 6656 // BN
    def f(k):
        k("s_and_b32 s23, s2, 7"); k("s_mul_i32 s23, s23, 26"); k("s_lshr_b32 s24, s2, 3"); k("s_add_u32 s24, s24, s23")
        k("s_and_b32 s23, s24, 7"); k("s_lshl_b32 s23, s23, 8")
        k("s_lshr_b32 s24, s24, 3"); k("s_lshl_b32 s24, s24, 8")
        k.srd(8, 80, 2048 * 2048, XN_OFF)
        k("s_mov_b32 s36, 0"); k("s_mov_b32 s37, 0"); k("s_mov_b32 s38, 1.0")
        l1, l2 = k.new("ffn"), k.new("j")
        k("s_cmp_ge_u32 s24, 3072"); k(f"s_cbranch_scc1 {l1}")
        k.srd(12, 66, 1024 * 6144); k.srd(16, 80, 2048 * QKVP, QKV_OFF)
        k("s_mov_b32 s20, 6144"); k(f"s_mov_b32 s21, {QKVP}"); k("s_mov_b32 s22, 0xff800000"); k("s_mov_b32 s25, s24")
        k("s_cmp_lt_u32 s24, 1024"); k("s_cselect_b32 s38, 0x3e8293ee, s38")
        k(f"s_branch {l2}")
        k.label(l1)
        k.srd(12, 72, 1024 * 7168); k.srd(16, 80, 2048 * CATP, CAT_OFF)
        k("s_mov_b32 s20, 7168"); k(f"s_mov_b32 s21, {CATP}"); k("s_mov_b32 s22, 0")
        k("s_sub_u32 s24, s24, 3072"); k("s_add_u32 s25, s24, 1024")
        k.label(l2)
    return f

PART_OFF = 0x2400000
def setup_ffn2(k):
    k("s_lshr_b32 s7, s2, 3")
    k("s_and_b32 s23, s7, 7"); k("s_lshr_b32 s24, s2, 1"); k("s_and_b32 s24, s24, 1"); k("s_lshl_b32 s24, s24, 3")
    k("s_add_u32 s23, s23, s24"); k("s_lshl_b32 s23, s23, 7")
    k("s_lshr_b32 s24, s7, 3"); k("s_and_b32 s7, s2, 1"); k("s_lshl_b32 s7, s7, 2"); k("s_add_u32 s24, s24, s7"); k("s_lshl_b32 s24, s24, 7")
    k("s_lshr_b32 s7, s2, 2"); k("s_and_b32 s7, s7, 1")
    k.srd(8, 80, 2048 * CATP, CAT_OFF); k.srd(12, 74, 3584 * 2048)
    k.srd(16, 80, 2 * 2048 * 4096, PART_OFF)
    k("s_mul_i32 s36, s7, 3584"); k("s_add_u32 s36, s36, 2048")
    k(f"s_mul_i32 s37, s7, {1792*2048}")
    k("s_mov_b32 s20, 2048"); k("s_mov_b32 s21, 4096")
    k(f"s_mul_i32 s25, s7, {2048*1024}"); k("s_add_u32 s25, s25, s24")

def setup_final(BM, BN):
    def f(k):
        nn = 1024 // BN
        k(f"s_and_b32 s24, s2, {nn-1}"); k(f"s_mul_i32 s24, s24, {BN}")
        k(f"s_lshr_b32 s23, s2, {nn.bit_length()-1}"); k(f"s_lshl_b32 s23, s23, {BM.bit_length()-1}")
        k.srd(8, 80, 2048 * CATP, CAT_OFF)
        k.srd(12, 68, 1024 * 2048); k.srd(28, 80, 2 * 2048 * 4096, PART_OFF)
        k.srd(16, 76, 2048 * 2048); k.srd(32, 64, 2048 * 2048)
        k("s_mov_b32 s20, 2048"); k("s_mov_b32 s21, 2048"); k("s_mov_b32 s25, s24")
        k("s_mov_b32 s36, 0"); k("s_mov_b32 s37, 0"); k(f"s_mov_b32 s39, {2048*4096}"); k(f"s_mov_b32 s50, {2*2048*4096}"); k(f"s_mov_b32 s51, {3*2048*4096}")
    return f

def attn_body(k, wgid="s2"):
    Q, ONE, KF, VF, S, P, O, Lr, MB = 24, 20, 32, 48, 64, 128, 160, 176, 192
    k("v_lshrrev_b32 v1, 6, v0"); k("v_and_b32 v0, 63, v0"); k("s_nop 0")
    k("v_readfirstlane_b32 s4, v1")
    k(f"s_and_b32 s5, {wgid}, 31"); k(f"s_lshr_b32 s6, {wgid}, 5")
    k.srd(8, 80, 2048 * QKVP, QKV_OFF); k.srd(16, 80, 2048 * CATP, CAT_OFF)
    k("v_and_b32 v12, 31, v0"); k("v_lshrrev_b32 v13, 5, v0")
    k("s_lshl_b32 s7, s6, 7"); k("s_lshl_b32 s20, s4, 5"); k("s_add_u32 s7, s7, s20")
    k("v_add_u32 v14, s7, v12")
    k(f"s_mov_b32 s21, {QKVP}"); k("v_mul_lo_u32 v15, v14, s21")
    k("s_lshl_b32 s22, s5, 6"); k("v_add_u32 v15, s22, v15"); k("v_lshl_add_u32 v15, v13, 4, v15")
    k(f"buffer_load_dwordx4 v[{Q}:{Q+3}], v15, s[8:11], 0 offen")
    k(f"buffer_load_dwordx4 v[{Q+4}:{Q+7}], v15, s[8:11], 0 offen offset:32")
    k("v_lshrrev_b32 v4, 2, v0"); k("s_lshl_b32 s7, s4, 4"); k("v_add_u32 v4, s7, v4")
    k("v_mul_lo_u32 v4, v4, s21"); k("v_add_u32 v4, s22, v4")
    k("v_and_b32 v5, 3, v0"); k("v_lshrrev_b32 v6, 4, v0"); k("v_xor_b32 v6, v6, v5")
    k("v_lshl_add_u32 v2, v6, 4, v4"); k("v_add_u32 v2, 2048, v2")
    k("v_lshl_add_u32 v3, v5, 4, v4"); k("v_add_u32 v3, 4096, v3")
    k("v_lshrrev_b32 v7, 2, v0"); k("v_and_b32 v7, 3, v7")
    for kk in range(2):
        k(f"v_add_u32 v8, {2*kk}, v13"); k("v_xor_b32 v8, v8, v7"); k("v_lshlrev_b32 v8, 4, v8")
        k(f"v_lshl_add_u32 v{4+kk}, v12, 6, v8")
    k("v_lshl_add_u32 v8, v13, 2, v7"); k("v_lshlrev_b32 v8, 6, v8")
    k("v_lshrrev_b32 v9, 4, v0"); k("v_and_b32 v9, 1, v9"); k("v_lshl_add_u32 v8, v9, 5, v8")
    k("v_and_b32 v9, 3, v0"); k("v_lshl_add_u32 v8, v9, 3, v8"); k("v_add_u32 v6, 16384, v8")
    for i in range(4): k(f"v_mov_b32 v{ONE+i}, 0x3f803f80")
    for i in range(32): k(f"v_mov_b32 v{O+i}, 0")
    k("v_mov_b32 v10, 0")
    k("s_mov_b32 s40, 0"); k("s_mov_b32 s41, 0"); k("s_lshl_b32 s44, s4, 10"); k("s_mov_b32 s45, 0")
    k("s_mov_b32 s30, 0x3e8293ee")
    k("s_mov_b64 s[34:35], 0"); k("s_mov_b32 s31, 0x41000000")
    BLK = 64 * QKVP
    def dmaK(par):
        k(f"s_add_u32 m0, s44, {par*4096}"); k("s_nop 0")
        k("buffer_load_dwordx4 v2, s[8:11], s40 offen lds"); k(f"s_add_u32 s40, s40, {BLK}")
    def dmaV(par):
        k(f"s_add_u32 m0, s44, {16384+par*4096}"); k("s_nop 0")
        k("buffer_load_dwordx4 v3, s[8:11], s41 offen lds"); k(f"s_add_u32 s41, s41, {BLK}")
    def readK(par):
        for kt in range(2):
            for kk in range(2):
                b = KF + (kt * 2 + kk) * 4
                k(f"ds_read_b128 v[{b}:{b+3}], v{4+kk} offset:{par*4096+kt*2048}")
    def readV(par):
        for b in range(4):
            r = VF + b * 4
            k(f"ds_read_b64_tr_b16 v[{r}:{r+1}], v6 offset:{par*4096+b*1024}")
            k(f"ds_read_b64_tr_b16 v[{r+2}:{r+3}], v6 offset:{par*4096+b*1024+512}")
    def mfA(par, first=False):
        r = []
        for kt in range(2):
            b = KF + kt * 8; s = S + par * 32 + kt * 16
            c = "0" if first else f"v[{MB}:{MB+15}]"
            r.append(f"v_mfma_f32_32x32x16_bf16 v[{s}:{s+15}], v[{b}:{b+3}], v[{Q}:{Q+3}], {c}")
            r.append(f"v_mfma_f32_32x32x16_bf16 v[{s}:{s+15}], v[{b+4}:{b+7}], v[{Q+4}:{Q+7}], v[{s}:{s+15}]")
        return r
    def mfC(par):
        r = []
        for b in range(4):
            p = P + par * 16 + b * 4
            r.append(f"v_mfma_f32_32x32x16_bf16 v[{O}:{O+15}], v[{VF+b*4}:{VF+b*4+3}], v[{p}:{p+3}], v[{O}:{O+15}]")
            r.append(f"v_mfma_f32_32x32x16_bf16 v[{Lr}:{Lr+15}], v[{ONE}:{ONE+3}], v[{p}:{p+3}], v[{Lr}:{Lr+15}]")
        return r
    def maxB(par, first):
        s = S + par * 32
        k(f"v_max3_f32 v11, v{s}, v{s+1}, v{s+2}")
        k(f"v_max3_f32 v9, v{s+15}, v{s+16}, v{s+17}")
        for i in range(6):
            k(f"v_max3_f32 v11, v11, v{s+3+2*i}, v{s+4+2*i}")
            k(f"v_max3_f32 v9, v9, v{s+18+2*i}, v{s+19+2*i}")
        k(f"v_max3_f32 v9, v9, v{s+30}, v{s+31}")
        k("v_max_f32 v11, v11, v9"); k("v_mov_b32 v9, v11"); k("s_nop 1"); k("v_permlane32_swap_b32 v11, v9")
        k("v_max_f32 v11, v11, v9")
        sk = k.new("nochg")
        if not first:
            k("v_cmp_lt_f32 s[34:35], s31, v11")
            k("v_max_f32 v11, 0, v11")
            k("s_cmp_eq_u64 s[34:35], 0"); k(f"s_cbranch_scc1 {sk}")
        for i in range(32): k(f"v_sub_f32 v{s+i}, v{s+i}, v11")
        k("v_add_f32 v10, v10, v11"); k("v_exp_f32 v17, -v11")
        for i in range(16): k(f"v_sub_f32 v{MB+i}, 0, v10")
        k.label(sk)
    def valuB(par):
        s = S + par * 32; p = P + par * 16; r = []
        for g in range(5):
            if g < 4:
                for i in range(8): r.append(f"v_exp_f32 v{s+8*g+i}, v{s+8*g+i}")
            if g > 0:
                for i in range(4): r.append(f"v_cvt_pk_bf16_f32 v{p+4*(g-1)+i}, v{s+8*(g-1)+2*i}, v{s+8*(g-1)+2*i+1}")
        return r
    def rescale():
        sk = k.new("skip")
        k("s_cmp_eq_u64 s[34:35], 0"); k(f"s_cbranch_scc1 {sk}")
        for i in range(17): k(f"v_mul_f32 v{O+i}, v{O+i}, v17")
        k.label(sk)
    def body(i4, doA, doB, doC, first=False, fast=False):
        par = i4 % 2
        k("s_waitcnt vmcnt(4)"); k("s_barrier")
        if doA: readK((i4 + 1) % 4)
        if doC: readV((i4 - 1) % 4)
        if doB: dmaK(i4 % 4); dmaV((i4 + 2) % 4)
        if doC and not fast: rescale()
        mf = []
        if doA: mf += [("s_waitcnt lgkmcnt(%d)" % (8 if doC else 0), m) if i == 0 else (None, m) for i, m in enumerate(mfA(1 - par))]
        if doC: mf += [("s_waitcnt lgkmcnt(0)", m) if i == 0 else (None, m) for i, m in enumerate(mfC(1 - par))]
        if doB and (first or not fast): maxB(par, first)
        va = valuB(par) if doB else []
        step = max(1, (len(va) - 6) // max(1, len(mf)))
        import os
        if fast and os.environ.get('XS'): step = int(os.environ['XS'])
        pos = 2
        for i, v in enumerate(va):
            if mf and i == pos:
                w, m = mf.pop(0)
                if w: k(w)
                k(m); pos += step
            k(v)
        for w, m in mf:
            if w: k(w)
            k(m)
    def run(fast):
        dmaK(0); dmaK(1); dmaK(2); dmaV(0); dmaK(3); dmaV(1)
        k("s_waitcnt vmcnt(4)"); k("s_barrier")
        readK(0); k("s_waitcnt lgkmcnt(0)")
        for m in mfA(0, True): k(m)
        k("s_nop 7"); k("s_nop 3")
        body(0, True, True, False, True, fast)
        lp = k.new("loop"); k.label(lp)
        for i4 in (1, 2, 3, 0): body(i4, True, True, True, False, fast)
        k("s_add_u32 s45, s45, 1"); k("s_cmp_lt_u32 s45, 7"); k(f"s_cbranch_scc1 {lp}")
        body(1, True, True, True, False, fast); body(2, True, True, True, False, fast)
        body(3, False, True, True, False, fast)
        body(0, False, False, True, False, fast)
    run(True)
    done = k.new("done")
    k("s_nop 7"); k("s_nop 7")
    k("s_mov_b32 s7, 0x5f800000")
    k(f"v_cmp_nlt_f32 s[34:35], v{Lr}, s7")
    k("s_cmp_lg_u64 s[34:35], 0"); k("s_cselect_b32 s7, 1, 0")
    k("v_mov_b32 v9, s7"); k("s_lshl_b32 s7, s4, 2"); k("s_add_u32 s7, s7, 40960"); k("v_mov_b32 v11, s7")
    k("ds_write_b32 v11, v9")
    k("s_waitcnt vmcnt(0) lgkmcnt(0)"); k("s_barrier")
    k("v_mov_b32 v11, 40960"); k("ds_read_b128 v[32:35], v11"); k("s_waitcnt lgkmcnt(0)")
    k("v_or3_b32 v9, v32, v33, v34"); k("v_or_b32 v9, v9, v35"); k("s_nop 0")
    k("v_readfirstlane_b32 s7, v9"); k("s_cmp_eq_u32 s7, 0"); k(f"s_cbranch_scc1 {done}")
    for i in range(32): k(f"v_mov_b32 v{O+i}, 0")
    k("v_mov_b32 v10, 0")
    k("s_mov_b32 s40, 0"); k("s_mov_b32 s41, 0"); k("s_mov_b32 s45, 0"); k("s_mov_b64 s[34:35], 0")
    run(False)
    k.label(done)
    k("s_waitcnt vmcnt(0)")
    k(f"s_mov_b32 s21, {CATP}"); k("v_mul_lo_u32 v15, v14, s21"); k("v_add_u32 v15, s22, v15")
    k("v_lshl_add_u32 v15, v13, 4, v15")
    k("s_nop 7"); k("s_nop 7")
    k(f"v_rcp_f32 v9, v{Lr}"); k("s_nop 0")
    for i in range(16): k(f"v_mul_f32 v{O+i}, v{O+i}, v9")
    for j in range(8): k(f"v_cvt_pk_bf16_f32 v{O+j}, v{O+2*j}, v{O+2*j+1}")
    k("s_nop 1")
    for qq in range(2):
        b = O + 4 * qq
        k(f"v_permlane32_swap_b32 v{b}, v{b+2}"); k(f"v_permlane32_swap_b32 v{b+1}, v{b+3}")
    for qq in range(2):
        k(f"buffer_store_dwordx4 v[{O+4*qq}:{O+4*qq+3}], v15, s[16:19], 0 offen offset:{qq*32}")
    return 208

def mid_kernel():
    k = K("mid_kernel")
    load_args(k)
    k("s_cmp_ge_u32 s2, 768"); k("s_cbranch_scc1 mid_kernel_end")
    k("s_waitcnt lgkmcnt(0)")
    k("s_cmp_ge_u32 s2, 256"); k("s_cbranch_scc1 mid_kernel_attn")
    import os
    if "A" in os.environ.get("XP", ""): k("s_endpgm")
    if os.environ.get("XQ") == "1": k("s_setprio 1")
    nv, lds = gemm_body(k, 128, 128, 2, 2, setup_ffn2, CATP, 28, 'f32')
    k("s_endpgm")
    k.label("mid_kernel_attn")
    k("s_sub_u32 s3, s2, 256")
    if os.environ.get("XQ") == "1":
        lq = k.new("pr"); k("s_cmp_ge_u32 s2, 512"); k(f"s_cbranch_scc1 {lq}"); k("s_setprio 3"); k.label(lq)
    else: k("s_setprio 3")
    nv2 = attn_body(k, "s3")
    k.label("mid_kernel_end"); k("s_endpgm")
    return k.text(max(nv, nv2)), max(lds, 16384)

def main():
    out = sys.argv[1] if len(sys.argv) > 1 else f"cdna_kernels/{NAME}.s"
    hdr = [l for l in open(f"cdna_kernels/{NAME}.s.ref").read().split("\n") if l.startswith(";") and "@launch" not in l]
    g1, lds1 = simple_kernel("gemm1_kernel", 208, lambda k: gemm_body(k, 256, 256, 4, 2, setup_g1(256, 256), 2048, 16, "bf16"), 48)
    md, ldsm = mid_kernel()
    g2, lds2 = simple_kernel("final_kernel", 256, lambda k: gemm_body(k, 128, 64, 2, 2, setup_final(128, 64), CATP, 16, 'final', NS=4))
    hdr += ["; @launch kernel=ln_kernel grid=(512,1,1) block=(256,1,1) lds=0",
            f"; @launch kernel=gemm1_kernel grid=(256,1,1) block=(512,1,1) lds={lds1}",
            f"; @launch kernel=mid_kernel grid=(768,1,1) block=(256,1,1) lds={ldsm}",
            f"; @launch kernel=final_kernel grid=(256,1,1) block=(256,1,1) lds={lds2}"]
    txt = "\n".join(hdr) + "\n.amdgcn_target \"amdgcn-amd-amdhsa--gfx950\"\n" + ln_kernel() + g1 + md + g2
    open(out, "w").write(txt)
main()
```

```python
import sys
NAME = "parallel_sum__mha_block__dense_activation_relu__prompt"
XN_OFF, QKV_OFF, CAT_OFF = 0, 0x400000, 0x1000000
WS_BYTES = 268435456
CATP = 4608 * 2
QKVP = 3072 * 2

class K:
    def __init__(s, name): s.name = name; s.L = []; s.uid = 0
    def __call__(s, t=""):
        import os
        X = os.environ.get("XP", "")
        if s.name == "mid_kernel":
            if "e" in X and t.startswith("v_exp_f32"): t = t.replace("v_exp_f32", "v_mov_b32")
            if "m" in X and t.startswith("v_mfma"): return
            if "b" in X and t.startswith("s_barrier"): return
            if "d" in X and t.startswith("buffer_load") and t.endswith("lds"): return
            if "v" in X and (t.startswith("v_fma") or t.startswith("v_exp") or t.startswith("v_cvt") or t.startswith("v_max3")): return
            if "l" in X and t.startswith("ds_read"): return
        s.L.append("    " + t)
    def label(s, l): s.L.append(l + ":")
    def new(s, p): s.uid += 1; return f"{s.name}_{p}{s.uid}"
    def srd(s, d, lo, nbytes, add=0):
        if add:
            s(f"s_add_u32 s{d}, s{lo}, 0x{add:x}"); s(f"s_addc_u32 s{d+1}, s{lo+1}, 0")
        else:
            s(f"s_mov_b32 s{d}, s{lo}"); s(f"s_mov_b32 s{d+1}, s{lo+1}")
        s(f"s_and_b32 s{d+1}, s{d+1}, 0xffff")
        s(f"s_mov_b32 s{d+2}, 0x{nbytes:x}"); s(f"s_mov_b32 s{d+3}, 0x00020000")
    def text(s, vgpr, agpr=0, sgpr=100):
        acc = (vgpr + 3) // 4 * 4
        nf = vgpr if agpr == 0 else acc + agpr
        h = [".text", f".globl {s.name}", ".p2align 8", f".type {s.name},@function", f"{s.name}:"]
        d = [".section .rodata,\"a\"", ".p2align 6", f".amdhsa_kernel {s.name}",
             f"  .amdhsa_next_free_vgpr {nf}", f"  .amdhsa_next_free_sgpr {sgpr}",
             f"  .amdhsa_accum_offset {acc}", "  .amdhsa_group_segment_fixed_size 0",
             "  .amdhsa_kernarg_size 72", "  .amdhsa_user_sgpr_count 2",
             "  .amdhsa_user_sgpr_kernarg_segment_ptr 1", "  .amdhsa_system_sgpr_workgroup_id_x 1",
             ".end_amdhsa_kernel"]
        return "\n".join(h + s.L + d) + "\n"

def load_args(k):
    k("s_load_dwordx16 s[64:79], s[0:1], 0")
    k("s_load_dwordx2 s[80:81], s[0:1], 64")

def wave_sum(k, v, t, sa, sb):
    for o in (0x041F, 0x081F, 0x101F, 0x201F, 0x401F):
        k(f"ds_swizzle_b32 v{t}, v{v} offset:0x{o:x}"); k("s_waitcnt lgkmcnt(0)")
        k(f"v_add_f32 v{v}, v{v}, v{t}")
    k("s_nop 0")
    k(f"v_readlane_b32 s{sa}, v{v}, 0"); k(f"v_readlane_b32 s{sb}, v{v}, 32"); k("s_nop 1")
    k(f"v_mov_b32 v{v}, s{sa}"); k(f"v_add_f32 v{v}, s{sb}, v{v}")

def rbf(k, v, t):
    k(f"v_cvt_pk_bf16_f32 v{t}, v{v}, v{v}"); k(f"v_lshlrev_b32 v{v}, 16, v{t}")

def ln_kernel():
    k = K("ln_kernel")
    load_args(k)
    k("s_cmp_ge_u32 s2, 512"); k(f"s_cbranch_scc1 ln_kernel_end")
    k("v_lshrrev_b32 v1, 6, v0")
    k("v_and_b32 v2, 63, v0")
    k("s_lshl_b32 s3, s2, 2")
    k("v_add_u32 v1, s3, v1")
    k("v_lshlrev_b32 v1, 11, v1")
    k("v_lshl_add_u32 v1, v2, 4, v1")
    k("s_waitcnt lgkmcnt(0)")
    k.srd(8, 64, 2048 * 2048)
    k.srd(12, 80, 2048 * 2048, XN_OFF)
    k("buffer_load_dwordx4 v[4:7], v1, s[8:11], 0 offen")
    k("buffer_load_dwordx4 v[8:11], v1, s[8:11], 0 offen offset:1024")
    k("s_lshl_b32 s4, s2, 8"); k("v_add_u32 v88, s4, v0"); k("v_lshlrev_b32 v88, 4, v88")
    for j in range(1, 4): k(f"v_add_u32 v{88+j}, 0x{j*0x200000:x}, v88")
    k.srd(16, 66, 1024 * 6144); k.srd(20, 72, 1024 * 7168); k.srd(24, 74, 3584 * 2048); k.srd(28, 68, 1024 * 2048)
    n = 0
    for sr, cnt in ((16, 3), (20, 4)):
        for j in range(cnt):
            k(f"buffer_load_dwordx4 v[{40+4*n}:{43+4*n}], v{88+j}, s[{sr}:{sr+3}], 0 offen"); n += 1
    k("s_waitcnt vmcnt(7)")
    for i in range(8):
        k(f"v_lshlrev_b32 v{16+2*i}, 16, v{4+i}"); k(f"v_and_b32 v{17+2*i}, 0xffff0000, v{4+i}")
    k("v_add_f32 v32, v16, v17")
    for i in range(2, 16): k(f"v_add_f32 v32, v32, v{16+i}")
    wave_sum(k, 32, 33, 20, 21)
    k("v_mul_f32 v32, 0x3a800000, v32")
    k("v_sub_f32 v34, v16, v32"); k("v_mul_f32 v35, v34, v34")
    for i in range(1, 16):
        k(f"v_sub_f32 v34, v{16+i}, v32"); k("v_fmac_f32 v35, v34, v34")
    wave_sum(k, 35, 33, 20, 21)
    k("v_mul_f32 v35, 0x3a800000, v35")
    rbf(k, 35, 33); rbf(k, 32, 33)
    k("v_add_f32 v35, 0x3727c5ac, v35"); rbf(k, 35, 33)
    k("v_sqrt_f32 v35, v35"); k("s_nop 0"); rbf(k, 35, 33)
    k("v_rcp_f32 v35, v35"); k("s_nop 0")
    for i in range(16):
        k(f"v_sub_f32 v{16+i}, v{16+i}, v32")
    for i in range(8):
        k(f"v_cvt_pk_bf16_f32 v33, v{16+2*i}, v{17+2*i}")
        k(f"v_lshlrev_b32 v{16+2*i}, 16, v33"); k(f"v_and_b32 v{17+2*i}, 0xffff0000, v33")
        k(f"v_mul_f32 v{16+2*i}, v{16+2*i}, v35"); k(f"v_mul_f32 v{17+2*i}, v{17+2*i}, v35")
        k(f"v_cvt_pk_bf16_f32 v{4+i}, v{16+2*i}, v{17+2*i}")
    k("buffer_store_dwordx4 v[4:7], v1, s[12:15], 0 offen")
    k("buffer_store_dwordx4 v[8:11], v1, s[12:15], 0 offen offset:1024")
    k("s_waitcnt vmcnt(0)")
    k.label("ln_kernel_end"); k("s_endpgm")
    return k.text(92)

def gemm_body(k, BM, BN, WM, WN, setup, pitchA, ksteps, mode, NS=2):
    NW = WM * WN; TM = BM // WM // 32; TN = BN // WN // 32
    ABY = BM * 128; RB = BN * 2; BBY = 64 * RB
    STG = ABY + BBY
    IA = BM // 8 // NW; IB = BN // 8 // NW
    CPR = BN // 8; RPI = 1024 // RB
    k("v_lshrrev_b32 v1, 6, v0"); k("v_and_b32 v0, 63, v0"); k("s_nop 0")
    k("v_readfirstlane_b32 s4, v1")
    if NW == 8:
        lq = k.new("pr"); k("s_cmp_ge_u32 s4, 4"); k(f"s_cbranch_scc1 {lq}"); k("s_setprio 2"); k.label(lq)
    setup(k)
    k(f"s_lshr_b32 s5, s4, {WN.bit_length()-1}")
    k(f"s_and_b32 s6, s4, {WN-1}")
    k("v_lshrrev_b32 v3, 3, v0"); k("s_lshl_b32 s7, s4, 3"); k("s_add_u32 s7, s7, s23")
    k("v_add_u32 v3, s7, v3"); k(f"s_mov_b32 s7, {pitchA}"); k("v_mul_lo_u32 v2, v3, s7")
    k("s_and_b32 s7, s4, 1"); k("s_lshl_b32 s7, s7, 2")
    k("v_lshrrev_b32 v3, 4, v0"); k("v_add_u32 v3, s7, v3"); k("v_and_b32 v3, 7, v3")
    k("v_and_b32 v4, 7, v0"); k("v_xor_b32 v3, v3, v4"); k("v_lshl_add_u32 v2, v3, 4, v2")
    k(f"v_lshrrev_b32 v4, {CPR.bit_length()-1}, v0"); k(f"s_mul_i32 s7, s4, {RPI}")
    k("v_add_u32 v4, s7, v4")
    k("v_mul_lo_u32 v3, v4, s20")
    if BN >= 128: k("v_and_b32 v4, 3, v4"); k("v_lshlrev_b32 v4, 2, v4")
    else: k("v_lshrrev_b32 v4, 1, v4"); k("v_and_b32 v4, 1, v4"); k("v_lshlrev_b32 v4, 2, v4")
    k(f"v_and_b32 v5, {CPR-1}, v0"); k("v_xor_b32 v4, v4, v5"); k("v_lshl_add_u32 v3, v4, 4, v3")
    k("s_lshl_b32 s7, s24, 1"); k("v_add_u32 v3, s7, v3")
    k("v_and_b32 v12, 31, v0"); k("v_lshrrev_b32 v13, 5, v0")
    k(f"s_mul_i32 s7, s5, {TM*32*128}")
    k("v_lshlrev_b32 v14, 7, v12"); k("v_add_u32 v14, s7, v14")
    k("v_lshrrev_b32 v15, 1, v0"); k("v_and_b32 v15, 7, v15")
    for kk in range(4):
        k(f"v_add_u32 v16, {2*kk}, v13"); k("v_xor_b32 v16, v16, v15"); k(f"v_lshl_add_u32 v{4+kk}, v16, 4, v14")
    k("v_lshrrev_b32 v14, 2, v0"); k("v_and_b32 v14, 3, v14")
    k("v_lshl_add_u32 v15, v13, 3, v14")
    k(f"s_mov_b32 s7, {RB}"); k("v_mul_lo_u32 v15, v15, s7")
    k("v_lshrrev_b32 v16, 4, v0"); k("v_and_b32 v16, 1, v16"); k("v_lshl_add_u32 v15, v16, 5, v15")
    k("v_and_b32 v16, 3, v0"); k("v_lshl_add_u32 v15, v16, 3, v15")
    k(f"v_add_u32 v15, {ABY}, v15")
    NB = 4 if BN >= 128 else 2
    if BN < 128: k("v_lshrrev_b32 v14, 1, v14")
    k(f"s_mul_i32 s7, s6, {TN}")
    NREG = min(TN, NB)
    for i in range(NREG):
        k(f"s_add_u32 s26, s7, {i}")
        k(f"s_and_b32 s27, s26, {NB-1}"); k(f"v_xor_b32 v16, s27, v14")
        k(f"s_andn2_b32 s26, s26, {NB-1}"); k("v_add_u32 v16, s26, v16")
        k(f"v_lshl_add_u32 v{8+i}, v16, 6, v15")
    assert TN <= NB or (TN % NB == 0)
    ACC = 128 if TM * TN > 4 else 80
    FR = 28; AB = 20
    nfr = (TM + TN) * 4
    for i in range(TM * TN * 16): k(f"v_mov_b32 v{ACC+i}, 0")
    k("s_mov_b32 s40, s36")
    k("s_mov_b32 s41, s37")
    k(f"s_lshl_b32 s42, s20, 6")
    k(f"s_mul_i32 s43, s20, {NW*RPI}")
    k(f"s_lshl_b32 s44, s4, 10")
    k("s_mov_b32 s45, 0")
    def dma_list():
        r = []
        for t in range(IA):
            r.append([f"s_add_u32 s46, s40, {t*NW*8*pitchA}", f"s_add_u32 m0, s44, {t*NW*1024}", "s_nop 0",
                      "buffer_load_dwordx4 v2, s[8:11], s46 offen lds"])
        for t in range(IB):
            r.append([f"s_add_u32 m0, s44, {ABY + t*NW*1024}",
                      "s_add_u32 s49, s49, s43" if t else "s_mov_b32 s49, s41",
                      "buffer_load_dwordx4 v3, s[12:15], s49 offen lds"])
        r[-1] += ["s_add_u32 s40, s40, 128", "s_add_u32 s41, s41, s42", f"s_add_u32 s44, s44, {STG}",
                  f"s_cmp_ge_u32 s44, {NS*STG}", f"s_cselect_b32 s46, {NS*STG}, 0", "s_sub_u32 s44, s44, s46"]
        return r
    def dma():
        for g in dma_list():
            for t in g: k(t)
    def reads(kk, buf):
        b = FR + buf * nfr
        for tn in range(TN):
            o = kk * 16 * RB + (tn // NB) * NB * 64
            k(f"ds_read_b64_tr_b16 v[{b+tn*4}:{b+tn*4+1}], v{8+tn%NB} offset:{o}")
            k(f"ds_read_b64_tr_b16 v[{b+tn*4+2}:{b+tn*4+3}], v{8+tn%NB} offset:{o+4*RB}")
        for tm in range(TM):
            k(f"ds_read_b128 v[{b+TN*4+tm*4}:{b+TN*4+tm*4+3}], v{4+kk} offset:{tm*4096}")
    def mfmas(buf, extra):
        b = FR + buf * nfr
        for tm in range(TM):
            for tn in range(TN):
                a = ACC + (tm * TN + tn) * 16
                k(f"v_mfma_f32_32x32x16_bf16 v[{a}:{a+15}], v[{b+tn*4}:{b+tn*4+3}], v[{b+TN*4+tm*4}:{b+TN*4+tm*4+3}], v[{a}:{a+15}]")
                if extra:
                    for t in extra.pop(0): k(t)
    def epi_addr():
        k(f"s_mul_i32 s7, s5, {TM*32}"); k("s_add_u32 s7, s7, s23")
        k("v_add_u32 v14, s7, v12")
        k("v_mul_lo_u32 v15, v14, s21")
        k(f"s_mul_i32 s7, s6, {TN*32}"); k("s_add_u32 s7, s7, s25")
        esz = 2 if mode == 'f32' else 1
        k(f"s_lshl_b32 s7, s7, {esz}")
        k("v_add_u32 v15, s7, v15"); k("v_lshl_add_u32 v16, v13, 4, v15")
        k("v_lshl_add_u32 v17, v13, 3, v15")
        k("v_lshlrev_b32 v18, 1, v17")
        k("s_lshl_b32 s47, s21, 5")
    NPART = 2; PB = ACC + TM * TN * 16; PSZ = 8 + 16 * NPART
    def partial_loads():
        epi_addr()
        for tm in range(TM):
            if tm:
                k("v_add_u32 v17, s47, v17"); k("v_lshlrev_b32 v18, 1, v17")
            for tn in range(TN):
                X = PB + (tm * TN + tn) * PSZ
                for q in range(4):
                    k(f"buffer_load_dwordx2 v[{X+2*q}:{X+2*q+1}], v17, s[32:35], 0 offen offset:{tn*64+q*16}")
                    for pi in range(NPART):
                        so = ["0", "s39", "s50", "s51"][pi]
                        R = X + 8 + 16 * pi + 4 * q
                        k(f"buffer_load_dwordx4 v[{R}:{R+3}], v18, s[28:31], {so} offen offset:{tn*128+q*32}")
    ND = IA + IB
    for i in range(4 + NREG): k(f"v_mov_b32 v{AB+i}, v{4+i}")
    k("s_mov_b32 s48, 0")
    for i in range(NS - 1): dma()
    def kstep(xw):
        k(f"s_waitcnt vmcnt({(NS-2)*ND + xw})"); k("s_barrier")
        k("s_add_u32 s45, s45, 1")
        reads(0, 0)
        nrd = 2 * TN + TM
        dl = dma_list()
        per = max((ND + 3) // 4, min(ND, TM * TN))
        for kk in range(4):
            if kk < 3:
                reads(kk + 1, (kk + 1) % 2); k(f"s_waitcnt lgkmcnt({nrd})")
            else: k("s_waitcnt lgkmcnt(0)")
            ex = dl[:per]; dl = dl[per:]
            mfmas(kk % 2, ex)
            assert not ex
        k(f"s_add_u32 s48, s48, {STG}"); k(f"s_cmp_ge_u32 s48, {NS*STG}"); k("s_cselect_b32 s48, 0, s48")
        for i in range(4 + NREG): k(f"v_add_u32 v{4+i}, s48, v{AB+i}")
    if mode == 'final':
        partial_loads()
        for _ in range(NS - 1): kstep(TM * TN * 4 * (1 + NPART))
    lp = k.new("loop"); k.label(lp)
    kstep(0)
    k(f"s_cmp_lt_u32 s45, {ksteps}"); k(f"s_cbranch_scc1 {lp}")
    k("s_waitcnt vmcnt(0)")
    epi_addr()
    k("s_nop 7"); k("s_nop 7")
    for tm in range(TM):
        if tm:
            k("v_add_u32 v16, s47, v16"); k("v_add_u32 v17, s47, v17"); k("v_lshlrev_b32 v18, 1, v17")
        if mode == 'f32':
            for tn in range(TN):
                a = ACC + (tm * TN + tn) * 16
                for q in range(4):
                    k(f"buffer_store_dwordx4 v[{a+4*q}:{a+4*q+3}], v16, s[16:19], 0 offen offset:{tn*128+q*32}")
            continue
        for tn in range(TN):
            a = ACC + (tm * TN + tn) * 16
            if mode == 'final':
                X = PB + (tm * TN + tn) * PSZ; P0 = X + 8; P1 = X + 24
                for j in range(16):
                    k(f"v_add_f32 v{P0+j}, v{P0+j}, v{P1+j}")
                for j in range(8):
                    k(f"v_lshlrev_b32 v{P1+2*j}, 16, v{X+j}"); k(f"v_and_b32 v{P1+2*j+1}, 0xffff0000, v{X+j}")
                for j in range(16):
                    k(f"v_add_f32 v{a+j}, v{a+j}, v{P1+j}"); k(f"v_add_f32 v{a+j}, v{a+j}, v{P0+j}")
            else:
                for j in range(16):
                    k(f"v_max_f32 v{a+j}, s22, v{a+j}"); k(f"v_mul_f32 v{a+j}, s38, v{a+j}")
            for j in range(8): k(f"v_cvt_pk_bf16_f32 v{a+j}, v{a+2*j}, v{a+2*j+1}")
            k("s_nop 1")
            for qq in range(2):
                b = a + 4 * qq
                k(f"v_permlane32_swap_b32 v{b}, v{b+2}"); k(f"v_permlane32_swap_b32 v{b+1}, v{b+3}")
            for qq in range(2):
                b = a + 4 * qq
                k(f"buffer_store_dwordx4 v[{b}:{b+3}], v16, s[16:19], 0 offen offset:{tn*64+qq*32}")
    return (PB + TM * TN * PSZ if mode == 'final' else ACC + TM * TN * 16), STG * NS

def simple_kernel(name, nwg, fn, npf=0):
    k = K(name)
    load_args(k)
    k(f"s_cmp_ge_u32 s2, {nwg+npf}"); k(f"s_cbranch_scc1 {name}_end")
    k("s_waitcnt lgkmcnt(0)")
    if npf:
        k(f"s_cmp_lt_u32 s2, {nwg}"); k(f"s_cbranch_scc1 {name}_main")
        st = npf * 512 * 16
        k(f"s_sub_u32 s4, s2, {nwg}"); k("s_lshl_b32 s4, s4, 9"); k("v_add_u32 v1, s4, v0"); k("v_lshlrev_b32 v1, 4, v1")
        k.srd(24, 74, 3584 * 2048); k.srd(28, 68, 1024 * 2048)
        n = 0
        for sr, nb in ((24, 3584 * 2048), (28, 1024 * 2048)):
            for j in range((nb + st - 1) // st):
                k(f"v_add_u32 v{2+n}, 0x{j*st:x}, v1")
                k(f"buffer_load_dwordx4 v[{40+4*n}:{43+4*n}], v{2+n}, s[{sr}:{sr+3}], 0 offen"); n += 1
        assert n <= 30
        k("s_waitcnt vmcnt(0)"); k("s_endpgm")
        k.label(f"{name}_main")
    nv, lds = fn(k)
    k.label(f"{name}_end"); k("s_endpgm")
    return k.text(nv), lds

def setup_g1(BM, BN):
    nq = 3072 // BN; nt = 6656 // BN
    def f(k):
        k("s_and_b32 s23, s2, 7"); k("s_mul_i32 s23, s23, 26"); k("s_lshr_b32 s24, s2, 3"); k("s_add_u32 s24, s24, s23")
        k("s_and_b32 s23, s24, 7"); k("s_lshl_b32 s23, s23, 8")
        k("s_lshr_b32 s24, s24, 3"); k("s_lshl_b32 s24, s24, 8")
        k.srd(8, 80, 2048 * 2048, XN_OFF)
        k("s_mov_b32 s36, 0"); k("s_mov_b32 s37, 0"); k("s_mov_b32 s38, 1.0")
        l1, l2 = k.new("ffn"), k.new("j")
        k("s_cmp_ge_u32 s24, 3072"); k(f"s_cbranch_scc1 {l1}")
        k.srd(12, 66, 1024 * 6144); k.srd(16, 80, 2048 * QKVP, QKV_OFF)
        k("s_mov_b32 s20, 6144"); k(f"s_mov_b32 s21, {QKVP}"); k("s_mov_b32 s22, 0xff800000"); k("s_mov_b32 s25, s24")
        k("s_cmp_lt_u32 s24, 1024"); k("s_cselect_b32 s38, 0x3e8293ee, s38")
        k(f"s_branch {l2}")
        k.label(l1)
        k.srd(12, 72, 1024 * 7168); k.srd(16, 80, 2048 * CATP, CAT_OFF)
        k("s_mov_b32 s20, 7168"); k(f"s_mov_b32 s21, {CATP}"); k("s_mov_b32 s22, 0")
        k("s_sub_u32 s24, s24, 3072"); k("s_add_u32 s25, s24, 1024")
        k.label(l2)
    return f

PART_OFF = 0x2400000
def setup_ffn2(k):
    k("s_lshr_b32 s7, s2, 3")
    k("s_and_b32 s23, s7, 7"); k("s_lshr_b32 s24, s2, 1"); k("s_and_b32 s24, s24, 1"); k("s_lshl_b32 s24, s24, 3")
    k("s_add_u32 s23, s23, s24"); k("s_lshl_b32 s23, s23, 7")
    k("s_lshr_b32 s24, s7, 3"); k("s_and_b32 s7, s2, 1"); k("s_lshl_b32 s7, s7, 2"); k("s_add_u32 s24, s24, s7"); k("s_lshl_b32 s24, s24, 7")
    k("s_lshr_b32 s7, s2, 2"); k("s_and_b32 s7, s7, 1")
    k.srd(8, 80, 2048 * CATP, CAT_OFF); k.srd(12, 74, 3584 * 2048)
    k.srd(16, 80, 2 * 2048 * 4096, PART_OFF)
    k("s_mul_i32 s36, s7, 3584"); k("s_add_u32 s36, s36, 2048")
    k(f"s_mul_i32 s37, s7, {1792*2048}")
    k("s_mov_b32 s20, 2048"); k("s_mov_b32 s21, 4096")
    k(f"s_mul_i32 s25, s7, {2048*1024}"); k("s_add_u32 s25, s25, s24")

def setup_final(BM, BN):
    def f(k):
        nn = 1024 // BN
        k(f"s_and_b32 s24, s2, {nn-1}"); k(f"s_mul_i32 s24, s24, {BN}")
        k(f"s_lshr_b32 s23, s2, {nn.bit_length()-1}"); k(f"s_lshl_b32 s23, s23, {BM.bit_length()-1}")
        k.srd(8, 80, 2048 * CATP, CAT_OFF)
        k.srd(12, 68, 1024 * 2048); k.srd(28, 80, 2 * 2048 * 4096, PART_OFF)
        k.srd(16, 76, 2048 * 2048); k.srd(32, 64, 2048 * 2048)
        k("s_mov_b32 s20, 2048"); k("s_mov_b32 s21, 2048"); k("s_mov_b32 s25, s24")
        k("s_mov_b32 s36, 0"); k("s_mov_b32 s37, 0"); k(f"s_mov_b32 s39, {2048*4096}"); k(f"s_mov_b32 s50, {2*2048*4096}"); k(f"s_mov_b32 s51, {3*2048*4096}")
    return f

def attn_body(k, wgid="s2"):
    Q, ONE, KF, VF, S, P, O, Lr, MB = 24, 20, 32, 48, 64, 128, 160, 176, 192
    k("v_lshrrev_b32 v1, 6, v0"); k("v_and_b32 v0, 63, v0"); k("s_nop 0")
    k("v_readfirstlane_b32 s4, v1")
    k(f"s_and_b32 s5, {wgid}, 31"); k(f"s_lshr_b32 s6, {wgid}, 5")
    k.srd(8, 80, 2048 * QKVP, QKV_OFF); k.srd(16, 80, 2048 * CATP, CAT_OFF)
    k("v_and_b32 v12, 31, v0"); k("v_lshrrev_b32 v13, 5, v0")
    k("s_lshl_b32 s7, s6, 7"); k("s_lshl_b32 s20, s4, 5"); k("s_add_u32 s7, s7, s20")
    k("v_add_u32 v14, s7, v12")
    k(f"s_mov_b32 s21, {QKVP}"); k("v_mul_lo_u32 v15, v14, s21")
    k("s_lshl_b32 s22, s5, 6"); k("v_add_u32 v15, s22, v15"); k("v_lshl_add_u32 v15, v13, 4, v15")
    k(f"buffer_load_dwordx4 v[{Q}:{Q+3}], v15, s[8:11], 0 offen")
    k(f"buffer_load_dwordx4 v[{Q+4}:{Q+7}], v15, s[8:11], 0 offen offset:32")
    k("v_lshrrev_b32 v4, 2, v0"); k("s_lshl_b32 s7, s4, 4"); k("v_add_u32 v4, s7, v4")
    k("v_mul_lo_u32 v4, v4, s21"); k("v_add_u32 v4, s22, v4")
    k("v_and_b32 v5, 3, v0"); k("v_lshrrev_b32 v6, 4, v0"); k("v_xor_b32 v6, v6, v5")
    k("v_lshl_add_u32 v2, v6, 4, v4"); k("v_add_u32 v2, 2048, v2")
    k("v_lshl_add_u32 v3, v5, 4, v4"); k("v_add_u32 v3, 4096, v3")
    k("v_lshrrev_b32 v7, 2, v0"); k("v_and_b32 v7, 3, v7")
    for kk in range(2):
        k(f"v_add_u32 v8, {2*kk}, v13"); k("v_xor_b32 v8, v8, v7"); k("v_lshlrev_b32 v8, 4, v8")
        k(f"v_lshl_add_u32 v{4+kk}, v12, 6, v8")
    k("v_lshl_add_u32 v8, v13, 2, v7"); k("v_lshlrev_b32 v8, 6, v8")
    k("v_lshrrev_b32 v9, 4, v0"); k("v_and_b32 v9, 1, v9"); k("v_lshl_add_u32 v8, v9, 5, v8")
    k("v_and_b32 v9, 3, v0"); k("v_lshl_add_u32 v8, v9, 3, v8"); k("v_add_u32 v6, 16384, v8")
    for i in range(4): k(f"v_mov_b32 v{ONE+i}, 0x3f803f80")
    for i in range(32): k(f"v_mov_b32 v{O+i}, 0")
    k("v_mov_b32 v10, 0")
    k("s_mov_b32 s40, 0"); k("s_mov_b32 s41, 0"); k("s_lshl_b32 s44, s4, 10"); k("s_mov_b32 s45, 0")
    k("s_mov_b32 s30, 0x3e8293ee")
    k("s_mov_b64 s[34:35], 0"); k("s_mov_b32 s31, 0x41000000")
    BLK = 64 * QKVP
    def dmaK(par):
        k(f"s_add_u32 m0, s44, {par*4096}"); k("s_nop 0")
        k("buffer_load_dwordx4 v2, s[8:11], s40 offen lds"); k(f"s_add_u32 s40, s40, {BLK}")
    def dmaV(par):
        k(f"s_add_u32 m0, s44, {16384+par*4096}"); k("s_nop 0")
        k("buffer_load_dwordx4 v3, s[8:11], s41 offen lds"); k(f"s_add_u32 s41, s41, {BLK}")
    def readK(par):
        for kt in range(2):
            for kk in range(2):
                b = KF + (kt * 2 + kk) * 4
                k(f"ds_read_b128 v[{b}:{b+3}], v{4+kk} offset:{par*4096+kt*2048}")
    def readV(par):
        for b in range(4):
            r = VF + b * 4
            k(f"ds_read_b64_tr_b16 v[{r}:{r+1}], v6 offset:{par*4096+b*1024}")
            k(f"ds_read_b64_tr_b16 v[{r+2}:{r+3}], v6 offset:{par*4096+b*1024+512}")
    def mfA(par, first=False):
        r = []
        for kt in range(2):
            b = KF + kt * 8; s = S + par * 32 + kt * 16
            c = "0" if first else f"v[{MB}:{MB+15}]"
            r.append(f"v_mfma_f32_32x32x16_bf16 v[{s}:{s+15}], v[{b}:{b+3}], v[{Q}:{Q+3}], {c}")
            r.append(f"v_mfma_f32_32x32x16_bf16 v[{s}:{s+15}], v[{b+4}:{b+7}], v[{Q+4}:{Q+7}], v[{s}:{s+15}]")
        return r
    def mfC(par):
        r = []
        for b in range(4):
            p = P + par * 16 + b * 4
            r.append(f"v_mfma_f32_32x32x16_bf16 v[{O}:{O+15}], v[{VF+b*4}:{VF+b*4+3}], v[{p}:{p+3}], v[{O}:{O+15}]")
            r.append(f"v_mfma_f32_32x32x16_bf16 v[{Lr}:{Lr+15}], v[{ONE}:{ONE+3}], v[{p}:{p+3}], v[{Lr}:{Lr+15}]")
        return r
    def maxB(par, first):
        s = S + par * 32
        k(f"v_max3_f32 v11, v{s}, v{s+1}, v{s+2}")
        k(f"v_max3_f32 v9, v{s+15}, v{s+16}, v{s+17}")
        for i in range(6):
            k(f"v_max3_f32 v11, v11, v{s+3+2*i}, v{s+4+2*i}")
            k(f"v_max3_f32 v9, v9, v{s+18+2*i}, v{s+19+2*i}")
        k(f"v_max3_f32 v9, v9, v{s+30}, v{s+31}")
        k("v_max_f32 v11, v11, v9"); k("v_mov_b32 v9, v11"); k("s_nop 1"); k("v_permlane32_swap_b32 v11, v9")
        k("v_max_f32 v11, v11, v9")
        sk = k.new("nochg")
        if not first:
            k("v_cmp_lt_f32 s[34:35], s31, v11")
            k("v_max_f32 v11, 0, v11")
            k("s_cmp_eq_u64 s[34:35], 0"); k(f"s_cbranch_scc1 {sk}")
        for i in range(32): k(f"v_sub_f32 v{s+i}, v{s+i}, v11")
        k("v_add_f32 v10, v10, v11"); k("v_exp_f32 v17, -v11")
        for i in range(16): k(f"v_sub_f32 v{MB+i}, 0, v10")
        k.label(sk)
    def valuB(par):
        s = S + par * 32; p = P + par * 16; r = []
        for g in range(5):
            if g < 4:
                for i in range(8): r.append(f"v_exp_f32 v{s+8*g+i}, v{s+8*g+i}")
            if g > 0:
                for i in range(4): r.append(f"v_cvt_pk_bf16_f32 v{p+4*(g-1)+i}, v{s+8*(g-1)+2*i}, v{s+8*(g-1)+2*i+1}")
        return r
    def rescale():
        sk = k.new("skip")
        k("s_cmp_eq_u64 s[34:35], 0"); k(f"s_cbranch_scc1 {sk}")
        for i in range(17): k(f"v_mul_f32 v{O+i}, v{O+i}, v17")
        k.label(sk)
    def body(i4, doA, doB, doC, first=False, fast=False):
        par = i4 % 2
        k("s_waitcnt vmcnt(4)"); k("s_barrier")
        if doA: readK((i4 + 1) % 4)
        if doC: readV((i4 - 1) % 4)
        if doB: dmaK(i4 % 4); dmaV((i4 + 2) % 4)
        if doC and not fast: rescale()
        mf = []
        if doA: mf += [("s_waitcnt lgkmcnt(%d)" % (8 if doC else 0), m) if i == 0 else (None, m) for i, m in enumerate(mfA(1 - par))]
        if doC: mf += [("s_waitcnt lgkmcnt(0)", m) if i == 0 else (None, m) for i, m in enumerate(mfC(1 - par))]
        if doB and (first or not fast): maxB(par, first)
        va = valuB(par) if doB else []
        step = max(1, (len(va) - 6) // max(1, len(mf)))
        import os
        if fast and os.environ.get('XS'): step = int(os.environ['XS'])
        pos = 2
        for i, v in enumerate(va):
            if mf and i == pos:
                w, m = mf.pop(0)
                if w: k(w)
                k(m); pos += step
            k(v)
        for w, m in mf:
            if w: k(w)
            k(m)
    def run(fast):
        dmaK(0); dmaK(1); dmaK(2); dmaV(0); dmaK(3); dmaV(1)
        k("s_waitcnt vmcnt(4)"); k("s_barrier")
        readK(0); k("s_waitcnt lgkmcnt(0)")
        for m in mfA(0, True): k(m)
        k("s_nop 7"); k("s_nop 3")
        body(0, True, True, False, True, fast)
        lp = k.new("loop"); k.label(lp)
        for i4 in (1, 2, 3, 0): body(i4, True, True, True, False, fast)
        k("s_add_u32 s45, s45, 1"); k("s_cmp_lt_u32 s45, 7"); k(f"s_cbranch_scc1 {lp}")
        body(1, True, True, True, False, fast); body(2, True, True, True, False, fast)
        body(3, False, True, True, False, fast)
        body(0, False, False, True, False, fast)
    run(True)
    done = k.new("done")
    k("s_nop 7"); k("s_nop 7")
    k("s_mov_b32 s7, 0x5f800000")
    k(f"v_cmp_nlt_f32 s[34:35], v{Lr}, s7")
    k("s_cmp_lg_u64 s[34:35], 0"); k("s_cselect_b32 s7, 1, 0")
    k("v_mov_b32 v9, s7"); k("s_lshl_b32 s7, s4, 2"); k("s_add_u32 s7, s7, 40960"); k("v_mov_b32 v11, s7")
    k("ds_write_b32 v11, v9")
    k("s_waitcnt vmcnt(0) lgkmcnt(0)"); k("s_barrier")
    k("v_mov_b32 v11, 40960"); k("ds_read_b128 v[32:35], v11"); k("s_waitcnt lgkmcnt(0)")
    k("v_or3_b32 v9, v32, v33, v34"); k("v_or_b32 v9, v9, v35"); k("s_nop 0")
    k("v_readfirstlane_b32 s7, v9"); k("s_cmp_eq_u32 s7, 0"); k(f"s_cbranch_scc1 {done}")
    for i in range(32): k(f"v_mov_b32 v{O+i}, 0")
    k("v_mov_b32 v10, 0")
    k("s_mov_b32 s40, 0"); k("s_mov_b32 s41, 0"); k("s_mov_b32 s45, 0"); k("s_mov_b64 s[34:35], 0")
    run(False)
    k.label(done)
    k("s_waitcnt vmcnt(0)")
    k(f"s_mov_b32 s21, {CATP}"); k("v_mul_lo_u32 v15, v14, s21"); k("v_add_u32 v15, s22, v15")
    k("v_lshl_add_u32 v15, v13, 4, v15")
    k("s_nop 7"); k("s_nop 7")
    k(f"v_rcp_f32 v9, v{Lr}"); k("s_nop 0")
    for i in range(16): k(f"v_mul_f32 v{O+i}, v{O+i}, v9")
    for j in range(8): k(f"v_cvt_pk_bf16_f32 v{O+j}, v{O+2*j}, v{O+2*j+1}")
    k("s_nop 1")
    for qq in range(2):
        b = O + 4 * qq
        k(f"v_permlane32_swap_b32 v{b}, v{b+2}"); k(f"v_permlane32_swap_b32 v{b+1}, v{b+3}")
    for qq in range(2):
        k(f"buffer_store_dwordx4 v[{O+4*qq}:{O+4*qq+3}], v15, s[16:19], 0 offen offset:{qq*32}")
    return 208

def mid_kernel():
    k = K("mid_kernel")
    load_args(k)
    k("s_cmp_ge_u32 s2, 768"); k("s_cbranch_scc1 mid_kernel_end")
    k("s_waitcnt lgkmcnt(0)")
    k("s_cmp_ge_u32 s2, 256"); k("s_cbranch_scc1 mid_kernel_attn")
    import os
    if "A" in os.environ.get("XP", ""): k("s_endpgm")
    if os.environ.get("XQ") == "1": k("s_setprio 1")
    nv, lds = gemm_body(k, 128, 128, 2, 2, setup_ffn2, CATP, 28, 'f32')
    k("s_endpgm")
    k.label("mid_kernel_attn")
    k("s_sub_u32 s3, s2, 256")
    if os.environ.get("XQ") == "1":
        lq = k.new("pr"); k("s_cmp_ge_u32 s2, 512"); k(f"s_cbranch_scc1 {lq}"); k("s_setprio 3"); k.label(lq)
    else: k("s_setprio 3")
    nv2 = attn_body(k, "s3")
    k.label("mid_kernel_end"); k("s_endpgm")
    return k.text(max(nv, nv2)), max(lds, 16384)

def main():
    out = sys.argv[1] if len(sys.argv) > 1 else f"cdna_kernels/{NAME}.s"
    hdr = [l for l in open(f"cdna_kernels/{NAME}.s.ref").read().split("\n") if l.startswith(";") and "@launch" not in l]
    g1, lds1 = simple_kernel("gemm1_kernel", 208, lambda k: gemm_body(k, 256, 256, 4, 2, setup_g1(256, 256), 2048, 16, "bf16"), 48)
    md, ldsm = mid_kernel()
    g2, lds2 = simple_kernel("final_kernel", 256, lambda k: gemm_body(k, 128, 64, 2, 2, setup_final(128, 64), CATP, 16, 'final', NS=4))
    hdr += ["; @launch kernel=ln_kernel grid=(512,1,1) block=(256,1,1) lds=0",
            f"; @launch kernel=gemm1_kernel grid=(256,1,1) block=(512,1,1) lds={lds1}",
            f"; @launch kernel=mid_kernel grid=(768,1,1) block=(256,1,1) lds={ldsm}",
            f"; @launch kernel=final_kernel grid=(256,1,1) block=(256,1,1) lds={lds2}"]
    txt = "\n".join(hdr) + "\n.amdgcn_target \"amdgcn-amd-amdhsa--gfx950\"\n" + ln_kernel() + g1 + md + g2
    open(out, "w").write(txt)
main()
```
